```python
import torch

def _softmax(x, axis=-1):
    return torch.softmax(x, dim=axis)
def _gelu(x):
    return torch.nn.functional.gelu(x, approximate="tanh")
def _silu(x):
    return torch.nn.functional.silu(x)
def _sigmoid(x):
    return torch.sigmoid(x)
def _layernorm(x, axis=-1, eps=1e-5):
    m = x.mean(dim=axis, keepdim=True)
    v = x.var(dim=axis, keepdim=True, unbiased=False)
    return (x - m) / torch.sqrt(v + eps)
def _scatter_add(tgt, idx, src, axis=0):
    return tgt.clone().index_add_(axis, idx, src)
def _segment_sum(src, seg, n):
    out = torch.zeros((n,) + src.shape[1:], dtype=src.dtype)
    return out.index_add_(0, seg, src)
def _pad(x, pw):
    flat = tuple(v for pair in reversed(pw) for v in pair)
    return torch.nn.functional.pad(x, flat)

kernel_name = 'gated_mix__ssm_conv_s4d__geglu_ffn__prompt'

def setup_inputs():

    _w = (lambda a: (lambda t: t.to(torch.bfloat16) if t.is_floating_point() else t)(torch.as_tensor(a)))
    def _A_setup():
        Bsz, L, D, N = 1, 2048, 640, 192
        return {
            "u": _w((lambda *s: torch.randn(*s, dtype=torch.bfloat16) * 0.05)(Bsz, L, D)),
            "log_A_real": _w((lambda *s: torch.randn(*s, dtype=torch.bfloat16) * 6.4)(D, N) * 0.5),
            "A_imag": _w((lambda *s: torch.randn(*s, dtype=torch.bfloat16) * 0.05)(D, N) * 3.14),
            "C_real": _w((lambda *s: torch.randn(*s, dtype=torch.bfloat16) * 0.05)(D, N) / N ** 0.5),
            "C_imag": _w((lambda *s: torch.randn(*s, dtype=torch.bfloat16) * 0.05)(D, N) / N ** 0.5),
            "log_dt": _w((lambda *s: torch.randn(*s, dtype=torch.bfloat16) * 0.05)(D) * 0.5 - 4.0),
            "D_skip": _w((lambda *s: torch.randn(*s, dtype=torch.bfloat16) * 0.05)(D)),
        }
    _A_in = _A_setup()

    def _B_setup():
        B, S, D, F = 1, 2048, 640, 1536
        return {
            "x": _w((lambda *s: torch.randn(*s, dtype=torch.bfloat16) * 0.05)(B, S, D)),
            "w_gate": _w((lambda *s: torch.randn(*s, dtype=torch.bfloat16) * 0.05)(D, F)),
            "w_up": _w((lambda *s: torch.randn(*s, dtype=torch.bfloat16) * 0.05)(D, F)),
            "w_down": _w((lambda *s: torch.randn(*s, dtype=torch.bfloat16) * 0.05)(F, D)),
        }
    _B_in = _B_setup()

    return {
        "A_u": _A_in["u"],
        "A_log_A_real": _A_in["log_A_real"],
        "A_A_imag": _A_in["A_imag"],
        "A_C_real": _A_in["C_real"],
        "A_C_imag": _A_in["C_imag"],
        "A_log_dt": _A_in["log_dt"],
        "A_D_skip": _A_in["D_skip"],
        "B_x": _B_in["x"],
        "B_w_gate": _B_in["w_gate"],
        "B_w_up": _B_in["w_up"],
        "B_w_down": _B_in["w_down"],
        "gate_w": _w((lambda *s: torch.randn(*s, dtype=torch.bfloat16) * 0.05)(640) * 16.0),
    }

def reference(A_u, A_log_A_real, A_A_imag, A_C_real, A_C_imag, A_log_dt, A_D_skip, B_x, B_w_gate, B_w_up, B_w_down, gate_w):
    def _A_ref(u, log_A_real, A_imag, C_real, C_imag, log_dt, D_skip):
        L = u.shape[1]
        dt = torch.exp(log_dt)
        A = -torch.exp(log_A_real) + 1j * A_imag
        C = (C_real + 1j * C_imag) * dt[:, None]
        pos = (lambda x, dt: x.to(dt))(torch.arange(L), log_dt.dtype)
        P = torch.exp((A * dt[:, None])[:, :, None] * pos[None, None, :])
        K = 2.0 * torch.einsum("dn,dnl->dl", C, P).real
        L2 = 2 * L
        u_t = (lambda x, *d: x.permute(*d))(u, 0, 2, 1)
        Kf = (lambda x, *a, **k: torch.fft.rfft(x.float(), *a, **k))(K, L2)
        Uf = (lambda x, *a, **k: torch.fft.rfft(x.float(), *a, **k))(u_t, L2)
        y = (lambda x, *a, **k: torch.fft.irfft(x, *a, **k).to(torch.bfloat16))(Uf * Kf[None, :, :], L2)[:, :, :L]
        y = (lambda x, *d: x.permute(*d))(y, 0, 2, 1)
        return y + u * D_skip[None, None, :]

    def _B_ref(x, w_gate, w_up, w_down):
        return (_gelu(x @ w_gate) * (x @ w_up)) @ w_down

    x = A_u
    g = _sigmoid((x * gate_w).sum(-1, keepdims=True))
    a = _A_ref(x, A_log_A_real, A_A_imag, A_C_real, A_C_imag, A_log_dt, A_D_skip)
    b = _B_ref(x, B_w_gate, B_w_up, B_w_down)
    return g * a + (1 - g) * b
```

```python
import re

def v(i, n=1):
    return f"v{i}" if n == 1 else f"v[{i}:{i+n-1}]"
def s(i, n=1):
    return f"s{i}" if n == 1 else f"s[{i}:{i+n-1}]"
def a(i, n=1):
    return f"a{i}" if n == 1 else f"a[{i}:{i+n-1}]"

class Asm:
    def __init__(self):
        self.lines = []
        self.uid = 0
    def __call__(self, txt):
        for ln in txt.split("\n"):
            ln = ln.strip()
            if ln:
                self.lines.append(ln)
    def label(self, base):
        self.uid += 1
        return f"L_{base}_{self.uid}"
    def text(self):
        return "\n".join(self.lines) + "\n"

TRANS = ("v_exp_f32", "v_log_f32", "v_rcp_f32", "v_rsq_f32", "v_sqrt_f32", "v_sin_f32", "v_cos_f32", "v_rcp_iflag_f32",
         "v_exp_f16", "v_log_f16", "v_rcp_f16", "v_rsq_f16", "v_sqrt_f16", "v_sin_f16", "v_cos_f16")
DPPMOD = re.compile(r"\b(quad_perm|row_shl|row_shr|row_ror|wave_shl|wave_shr|wave_rol|wave_ror|row_mirror|row_half_mirror|row_bcast|row_newbcast)\b")

def split_ops(t):
    out, depth, cur = [], 0, ""
    for ch in t:
        if ch == "[": depth += 1
        if ch == "]": depth -= 1
        if ch == "," and depth == 0:
            out.append(cur.strip()); cur = ""
        else:
            cur += ch
    if cur.strip(): out.append(cur.strip())
    return out

def regs_of(tok):
    tok = tok.strip()
    tok = tok.lstrip("-").lstrip("|")
    if tok.startswith("neg(") or tok.startswith("abs("): tok = tok[4:]
    m = re.match(r"^([vsa])\[(\d+):(\d+)\]", tok)
    if m: return {(m.group(1), i) for i in range(int(m.group(2)), int(m.group(3)) + 1)}
    m = re.match(r"^([vsa])(\d+)\b", tok)
    if m: return {(m.group(1), int(m.group(2)))}
    if re.match(r"^vcc_lo\b", tok): return {("s", "vcc_lo")}
    if re.match(r"^vcc_hi\b", tok): return {("s", "vcc_hi")}
    if re.match(r"^vcc\b", tok): return {("s", "vcc_lo"), ("s", "vcc_hi")}
    if re.match(r"^exec_lo\b", tok): return {("s", "exec_lo")}
    if re.match(r"^exec_hi\b", tok): return {("s", "exec_hi")}
    if re.match(r"^exec\b", tok): return {("s", "exec_lo"), ("s", "exec_hi")}
    if re.match(r"^m0\b", tok): return {("s", "m0")}
    return set()

class Ins:
    pass

def parse(line):
    raw = line
    line = line.split(";")[0].split("//")[0].strip()
    if not line or line.startswith("."): return None
    if line.endswith(":"):
        I = Ins(); I.kind = "label"; I.name = line[:-1]; I.raw = raw; return I
    parts = line.split(None, 1)
    mn = parts[0]; rest = parts[1] if len(parts) > 1 else ""
    ops = split_ops(rest)
    I = Ins(); I.raw = raw; I.mn = mn; I.ops = ops
    I.w = set(); I.r = set(); I.states = 1; I.kind = "other"
    I.srcA = I.srcB = I.srcC = set(); I.passes = 0; I.dpp = False; I.trans = False; I.selmove = False
    I.widestore = set(); I.m0lds = False; I.lanesel = set(); I.target = None
    base = re.sub(r"_(e32|e64|dpp|sdwa)$", "", mn)
    R = [regs_of(o) for o in ops]
    if mn == "s_nop":
        I.kind = "nop"; I.states = int(ops[0], 0) + 1
    elif mn.startswith("v_mfma") or mn.startswith("v_smfmac"):
        I.kind = "mfma"; I.w = R[0]; I.srcA = R[1]; I.srcB = R[2]; I.srcC = R[3] if len(R) > 3 else set()
        I.r = I.srcA | I.srcB | I.srcC
        I.passes = 8 if "32x32" in mn else 4
    elif mn.startswith("v_"):
        I.kind = "valu"
        I.dpp = bool(DPPMOD.search(rest))
        I.trans = base in TRANS
        if "dst_sel" in rest and "dst_sel:DWORD" not in rest: I.selmove = True
        if base.startswith("v_cmp"):
            I.w = R[0]; I.r = set().union(*R[1:])
            if base.startswith("v_cmpx"): I.w |= {("s", "exec_lo"), ("s", "exec_hi")}
        elif base in ("v_readfirstlane_b32", "v_readlane_b32"):
            I.kind = "valu"; I.w = R[0]; I.r = set().union(*R[1:]); I.rdlane = True
            if base == "v_readlane_b32": I.lanesel = R[2]
        elif base == "v_writelane_b32":
            I.w = R[0]; I.r = set().union(*R); I.lanesel = R[2]
        elif base.startswith("v_permlane"):
            I.w = R[0] | R[1]; I.r = R[0] | R[1]; I.perm = True
        elif re.match(r"v_(add|sub|subrev)_co_u32|v_(addc|subb|subbrev)_co_u32|v_div_scale|v_mad_u64_u32|v_mad_i64_i32", base):
            I.w = R[0] | R[1]; I.r = set().union(*R[2:])
        else:
            I.w = R[0]; I.r = set().union(*R[1:]) if len(R) > 1 else set()
            if re.match(r"v_(fmac|mac|dot2c|dot4c|pk_fmac|fmaak|madak)", base) and not base.startswith("v_fmaak") and not base.startswith("v_madak"):
                I.r |= R[0]
            if base == "v_cndmask_b32" and len(ops) == 3: I.r |= {("s", "vcc_lo"), ("s", "vcc_hi")}
            if I.dpp or "dst_unused:UNUSED_PRESERVE" in rest or base.endswith("_hi_b16") : I.r |= R[0]
            if "op_sel" in rest and not base.startswith("v_pk_") and not base.startswith("v_dot") and not base.startswith("v_fma_mix") :
                I.selmove = True; I.r |= R[0]
            if base.startswith("v_fma_mixhi") or base.startswith("v_fma_mixlo"): I.selmove = True; I.r |= R[0]
        if base.startswith("v_dot"): I.dot = True
    elif mn.startswith("ds_"):
        I.kind = "ds"
        if "addtid" in mn:
            I.m0lds = True
            if "write" in mn: I.r = R[0]
            else: I.w = R[0]
        elif mn.startswith("ds_read") or mn.startswith("ds_bpermute") or mn.startswith("ds_permute") or mn.startswith("ds_swizzle") or "_rtn" in mn:
            I.w = R[0]; I.r = set().union(*R[1:])
        else:
            I.r = set().union(*R)
    elif mn.startswith("buffer_") or mn.startswith("global_") or mn.startswith("flat_"):
        I.kind = "vmem"
        islds = bool(re.search(r"\blds\b", rest)) or "_lds_" in mn
        if islds:
            I.m0lds = True; I.r = set().union(*R)
        elif "load" in mn:
            I.w = R[0]; I.r = set().union(*R[1:])
        elif "atomic" in mn:
            I.r = set().union(*R)
            if re.search(r"\bsc0\b", rest): I.w = R[0]
        elif "store" in mn:
            I.r = set().union(*R)
            if "x3" in mn or "x4" in mn:
                I.widestore = R[0] if mn.startswith("buffer_") else R[1]
        else:
            I.r = set().union(*R) if R else set()
    elif mn.startswith("s_"):
        I.kind = "salu"
        if mn.startswith("s_cbranch") or mn == "s_branch":
            I.kind = "branch"; I.target = ops[0]
        elif mn.startswith("s_cmp") or mn.startswith("s_bitcmp") or mn in ("s_waitcnt", "s_barrier", "s_endpgm", "s_setprio", "s_sleep", "s_sethalt"):
            I.r = set().union(*R) if R else set()
        else:
            I.w = R[0] if R else set(); I.r = set().union(*R[1:]) if len(R) > 1 else set()
            if "saveexec" in mn: I.w |= {("s", "exec_lo"), ("s", "exec_hi")}
    return I

def isv(x): return x[0] in ("v", "a")
def iss(x): return x[0] == "s"
EXEC = {("s", "exec_lo"), ("s", "exec_hi")}

def need(P, C):
    n = 0
    if P.kind == "valu":
        pv = {x for x in P.w if isv(x)}; ps = {x for x in P.w if iss(x)}
        if C.kind == "mfma" and pv & C.r: n = max(n, 2)
        if C.kind == "mfma" and ps & EXEC: n = max(n, 4)
        if C.kind == "valu":
            if P.trans and not C.trans and pv & (C.r): n = max(n, 1)
            if C.dpp and pv & C.r: n = max(n, 2)
            if C.dpp and ps & EXEC: n = max(n, 5)
            if getattr(C, "perm", False) and pv & C.r: n = max(n, 2)
            if getattr(C, "perm", False) and ps & EXEC: n = max(n, 4)
            if getattr(C, "rdlane", False) and pv & C.r: n = max(n, 1)
            if (getattr(C, "rdlane", False) or C.lanesel) and ps & EXEC: n = max(n, 4)
            if ps & C.lanesel: n = max(n, 4)
            if ps & C.r: n = max(n, 2)
            if P.selmove and pv & (C.r | C.w): n = max(n, 1)
            if getattr(P, "dot", False) and pv & (C.r | C.w):
                same = (re.sub(r"_(e32|e64)$", "", P.mn) == re.sub(r"_(e32|e64)$", "", C.mn))
                srcc = regs_of(C.ops[-1]) if not C.mn.startswith("v_dot2c") else C.w
                okc = same and not (pv & (C.r - srcc))
                if not okc: n = max(n, 3)
        if C.kind == "vmem" and ps & C.r: n = max(n, 5)
        if C.kind == "salu" and ps & C.r: n = max(n, 1)
        if C.kind in ("vmem", "ds", "mfma") and getattr(P, "dot", False) and pv & C.r: n = max(n, 3)
    if P.kind == "salu":
        if ("s", "m0") in P.w and C.m0lds: n = max(n, 1)
    if P.kind == "vmem" and P.widestore:
        if C.kind in ("valu", "mfma") and P.widestore & C.w: n = max(n, 2)
        elif P.widestore & C.w: n = max(n, 1)
    if P.kind == "mfma":
        far = 12 if P.passes == 8 else 8
        if C.kind == "mfma":
            if P.w & (C.srcA | C.srcB): n = max(n, far)
            if P.w & C.srcC:
                if not (P.w == C.srcC and P.passes == C.passes): n = max(n, 10 if P.passes == 8 else 6)
            elif P.w & C.w:
                n = max(n, far)
        elif C.kind in ("valu", "ds", "vmem"):
            if P.w & (C.r | C.w): n = max(n, far)
            if C.kind == "valu" and P.srcC & C.w: n = max(n, 7 if P.passes == 8 else 3)
    return n

WIN = 14
def req_nops(hist, C):
    d = 0; want = 0; why = None
    for P in reversed(hist):
        k = need(P, C)
        if k - d > want: want = k - d; why = P
        d += P.states
        if d >= WIN: break
    return want, why

def fix_hazards(lines, verbose=False):
    out = []; ins = []
    hist = []
    nins = 0
    for ln in lines:
        I = parse(ln)
        if I is None:
            out.append(ln); continue
        if I.kind == "label":
            out.append(ln); ins.append(I); continue
        want, why = req_nops(hist, I)
        if want > 0:
            nins += 1
            if verbose: print(f"hazard: +{want} before '{ln}' due to '{why.raw}'")
            N = parse(f"s_nop {want-1}"); out.append(N.raw); ins.append(N); hist.append(N)
        out.append(ln); ins.append(I); hist.append(I)
        if I.mn in ("s_endpgm", "s_branch"): hist = []
        hist = hist[-24:]
    pos = {I.name: k for k, I in enumerate(ins) if I.kind == "label"}
    errs = []
    for k, I in enumerate(ins):
        if I.kind == "branch" and I.target in pos:
            h = [J for J in ins[max(0, k - 30):k + 1] if J.kind != "label"]
            d = 0; j = pos[I.target]
            while j < len(ins) and d < WIN:
                J = ins[j]; j += 1
                if J.kind == "label": continue
                want, why = req_nops(h, J)
                if want > 0: errs.append(f"edge {I.raw}: need +{want} before '{J.raw}' due to '{why.raw}'")
                h.append(J); d += J.states
                if J.kind == "branch" and J.mn == "s_branch": break
                if J.mn == "s_endpgm": break
    if errs:
        raise RuntimeError("branch-edge hazards:\n" + "\n".join(errs))
    return out, nins
```

```python
import sys
sys.path.insert(0, "work")
from asmlib import *

NAME = "gated_mix__ssm_conv_s4d__geglu_ffn__prompt"
WS_SYNC = 0x0
WS_H    = 0x100000
WS_AT   = 0x800000
WS_WD   = 0xC00000
WS_G    = 0xF00000
WS_TS   = 0x1000000
H_BYTES, AT_BYTES, WD_BYTES, G_BYTES = 2048*1536*2, 640*2048*2, 1536*640*2, 2048*8
X_BYTES = 2048*1280
P_U, P_LA, P_AI, P_CR, P_CI, P_DT, P_DS, P_BX = 36, 38, 40, 42, 44, 46, 48, 50
P_WG, P_WU, P_WD, P_GW, P_OUT, P_DBG, P_WS = 52, 54, 56, 58, 60, 62, 64
S_WAVE = 66
LOG2E = 1.4426950408889634

import struct
def fbits(x): return "0x%08x" % struct.unpack("<I", struct.pack("<f", x))[0]

def prologue(A, nwg):
    A(f"""
    s_load_dwordx16 s[36:51], s[0:1], 0
    s_load_dwordx8 s[52:59], s[0:1], 64
    s_load_dwordx4 s[60:63], s[0:1], 96
    s_load_dwordx2 s[64:65], s[0:1], 112
    s_cmp_ge_u32 s2, {nwg}
    s_cbranch_scc1 L_exit_{A.kname}
    v_lshrrev_b32 v1, 6, v0
    v_and_b32 v0, 63, v0
    v_readfirstlane_b32 s{S_WAVE}, v1
    s_waitcnt lgkmcnt(0)
    """)

def srd(A, dst, ptr, off, nbytes):
    if off:
        A(f"s_add_u32 s{dst}, s{ptr}, {off}\ns_addc_u32 s{dst+1}, s{ptr+1}, 0")
    else:
        A(f"s_mov_b32 s{dst}, s{ptr}\ns_mov_b32 s{dst+1}, s{ptr+1}")
    A(f"s_mov_b32 s{dst+2}, {nbytes}\ns_mov_b32 s{dst+3}, 0x20000")

def role_prep_wd(A, sidx, sc=""):
    srd(A, 4, P_WD, 0, WD_BYTES)
    srd(A, 8, P_WS, WS_WD, WD_BYTES)
    A(f"""
    v_lshrrev_b32 v1, 4, v0                 ; lane>>4
    v_and_b32 v2, 15, v0
    s_lshr_b32 s70, s{S_WAVE}, 1
    s_lshl_b32 s70, s70, 2
    v_or_b32 v3, s70, v1                    ; f
    v_lshlrev_b32 v3, 1, v3
    v_xor_b32 v3, v3, v2
    v_lshlrev_b32 v3, 4, v3
    s_lshl_b32 s71, s{S_WAVE}, 2
    v_add_u32 v4, s71, v1
    v_mul_u32_u24 v4, 1280, v4
    v_add_u32 v4, v4, v3                    ; voffset
    s_mul_i32 s72, s{sidx}, 40960
    s_lshl_b32 s73, s{S_WAVE}, 10
    """)
    for i in range(10):
        A(f"s_add_u32 m0, s73, {i*4096}\ns_add_u32 s74, s72, {(i&1)*16*1280 + (i>>1)*256}\nbuffer_load_dwordx4 v4, s[4:7], s74 offen lds")
    A(f"""
    v_bfe_u32 v5, v0, 2, 2                  ; r
    v_and_b32 v6, 3, v0                     ; c
    v_lshl_add_u32 v7, v1, 3, v5            ; row = 8g+r
    v_lshlrev_b32 v7, 8, v7
    v_lshl_add_u32 v7, v6, 3, v7            ; + 8c
    v_and_b32 v8, 1, v1
    v_lshl_or_b32 v8, v8, 2, v5             ; f
    v_lshl_or_b32 v7, v8, 5, v7             ; vbase
    v_lshlrev_b32 v9, 4, v0                 ; lane*16
    s_lshl_b32 s75, s{sidx}, 10
    s_mul_i32 s76, s{S_WAVE}, 49152
    s_add_u32 s75, s75, s76                 ; (w*48 + S)*1024
    s_lshl_b32 s77, s{S_WAVE}, 5
    v_xor_b32 v10, s77, v7                  ; p5 = w     (even i)
    v_xor_b32 v11, 0x80, v10                ; p5 = w + 4 (odd i)
    s_waitcnt vmcnt(0)
    s_barrier
    """)
    for i in range(10):
        G = i >> 1
        r = 16 + 4*i
        va = 10 + (i & 1)
        A(f"ds_read_b64_tr_b16 {v(r,2)}, v{va} offset:{G*8192}\nds_read_b64_tr_b16 {v(r+2,2)}, v{va} offset:{G*8192+1024}")
    for i in range(10):
        r = 16 + 4*i
        A(f"s_add_u32 s78, s75, {i*4*49152}")
        A(f"s_waitcnt lgkmcnt({min(15, 18-2*i)})")
        A(f"buffer_store_dwordx4 {v(r,4)}, v9, s[8:11], s78 offen{sc}")

def role_prep_g(A, sidx, sc=""):
    srd(A, 4, P_U, 0, X_BYTES)
    srd(A, 8, P_GW, 0, 1280)
    srd(A, 12, P_WS, WS_G, G_BYTES)
    A(f"""
    v_lshrrev_b32 v1, 4, v0
    v_and_b32 v2, 15, v0
    v_lshlrev_b32 v2, 4, v2                 ; c*16
    s_lshl_b32 s70, s{sidx}, 5
    s_lshl_b32 s71, s{S_WAVE}, 3
    s_add_u32 s70, s70, s71
    v_add_u32 v3, s70, v1                   ; row
    v_mul_u32_u24 v4, 1280, v3
    v_add_u32 v4, v4, v2
    v_lshlrev_b32 v3, 3, v3
    s_movk_i32 s72, 5120
    """)
    for k in range(5): A(f"buffer_load_dwordx4 {v(16+4*k,4)}, v2, s[8:11], 0 offen offset:{256*k}")
    for k in range(5): A(f"buffer_load_dwordx4 {v(40+4*k,4)}, v4, s[4:7], 0 offen offset:{256*k}")
    for k in range(5): A(f"buffer_load_dwordx4 {v(60+4*k,4)}, v4, s[4:7], s72 offen offset:{256*k}")
    A("v_mov_b32 v8, 0\nv_mov_b32 v9, 0\ns_waitcnt vmcnt(0)")
    for j in range(20):
        A(f"v_dot2_f32_bf16 v8, v{16+j}, v{40+j}, v8\nv_dot2_f32_bf16 v9, v{16+j}, v{60+j}, v9")
    for sh in (8, 4, 2, 1):
        A(f"v_add_f32_dpp v8, v8, v8 row_ror:{sh} row_mask:0xf bank_mask:0xf\nv_add_f32_dpp v9, v9, v9 row_ror:{sh} row_mask:0xf bank_mask:0xf")
    A(f"""
    v_cvt_pk_bf16_f32 v10, v8, v9
    v_lshlrev_b32 v8, 16, v10
    v_and_b32 v9, 0xffff0000, v10
    v_mul_f32 v8, {fbits(-LOG2E)}, v8
    v_mul_f32 v9, {fbits(-LOG2E)}, v9
    v_exp_f32 v8, v8
    v_exp_f32 v9, v9
    v_add_f32 v8, 1.0, v8
    v_add_f32 v9, 1.0, v9
    v_rcp_f32 v8, v8
    v_rcp_f32 v9, v9
    v_cvt_pk_bf16_f32 v10, v8, v9
    v_lshlrev_b32 v12, 16, v10
    v_and_b32 v14, 0xffff0000, v10
    v_sub_f32 v8, 1.0, v12
    v_sub_f32 v9, 1.0, v14
    v_cvt_pk_bf16_f32 v10, v8, v9
    v_lshlrev_b32 v13, 16, v10
    v_and_b32 v15, 0xffff0000, v10
    s_mov_b32 exec_lo, 0x00010001
    s_mov_b32 exec_hi, 0x00010001
    buffer_store_dwordx2 v[12:13], v3, s[12:15], 0 offen{sc}
    buffer_store_dwordx2 v[14:15], v3, s[12:15], 0 offen offset:32{sc}
    s_mov_b64 exec, -1
    """)

G2_RED, G2_AT = 0, 61440
def role_g2(A, stg, sdt, R=4, sc="", ts=None):
    ACC = 16
    BUF = 96
    srd(A, 4, P_WS, WS_H, H_BYTES)
    srd(A, 8, P_WS, WS_WD, WD_BYTES)
    srd(A, 12, P_WS, WS_AT, AT_BYTES)
    srd(A, 16, P_WS, WS_G, G_BYTES)
    srd(A, 20, P_OUT, 0, X_BYTES)
    A(f"""
    v_lshlrev_b32 v1, 4, v0                 ; lane*16
    s_mul_i32 s70, s{S_WAVE}, 12288
    s_mul_i32 s71, s{stg}, {4*49152}
    s_add_u32 s71, s71, s70                 ; h base
    s_mul_i32 s72, s{sdt}, {5*49152}
    s_add_u32 s72, s72, s70
    """)
    for i in range(4): A(f"s_add_u32 s{74+i}, s71, {i*49152}")
    for m in range(5): A(f"s_add_u32 s{78+m}, s72, {m*49152}")
    A("v_add_u32 v2, 4096, v1\nv_add_u32 v3, 8192, v1")
    def loads(k):
        b = BUF + (k % R) * 36
        va = 1 + (k >> 2); off = (k & 3) * 1024
        for m in range(5): A(f"buffer_load_dwordx4 {v(b+16+4*m,4)}, v{va}, s[8:11], s{78+m} offen offset:{off}{sc}")
        for i in range(4): A(f"buffer_load_dwordx4 {v(b+4*i,4)}, v{va}, s[4:7], s{74+i} offen offset:{off}{sc}")
    for k in range(R): loads(k)
    A(f"""
    s_lshl_b32 s83, s{S_WAVE}, 6
    v_add_u32 v4, s83, v0                   ; P = tid
    v_lshrrev_b32 v5, 3, v4                 ; row (0..31)
    v_and_b32 v6, 7, v4                     ; chunk
    v_mul_u32_u24 v7, 160, v5
    v_lshl_add_u32 v7, v6, 4, v7
    v_add_u32 v7, {G2_AT}, v7
    v_lshlrev_b32 v5, 12, v5
    v_lshl_add_u32 v5, v6, 4, v5
    s_mul_i32 s84, s{sdt}, {80*4096}
    s_lshl_b32 s85, s{stg}, 7
    s_add_u32 s84, s84, s85
    s_add_u32 s85, s84, {32*4096}
    s_add_u32 s86, s84, {64*4096}
    v_and_b32 v8, 15, v0                    ; n
    s_lshl_b32 s87, s{stg}, 6
    s_lshl_b32 s88, s{S_WAVE}, 4
    s_add_u32 s87, s87, s88
    v_add_u32 v8, s87, v8                   ; token
    v_lshlrev_b32 v9, 3, v8
    """)
    first = True
    for k in range(12):
        b = BUF + (k % R) * 36
        later = min(R - 1, 11 - k)
        extra = 0
        A(f"s_waitcnt vmcnt({later*9})")
        if ts and k == 0: ts(A, 1)
        for i in range(4):
            for m in range(5):
                acc = v(ACC + (i*5+m)*4, 4)
                A(f"v_mfma_f32_16x16x32_bf16 {acc}, {v(b+16+4*m,4)}, {v(b+4*i,4)}, {acc if k else 0}")
        if k + R < 12: loads(k + R)
    if ts: ts(A, 2)
    T = BUF
    A(f"""
    buffer_load_dwordx4 {v(T,4)}, v5, s[12:15], s84 offen{sc}
    buffer_load_dwordx4 {v(T+4,4)}, v5, s[12:15], s85 offen{sc}
    buffer_load_dwordx2 {v(T+12,2)}, v9, s[16:19], 0 offen{sc}
    s_cmp_ge_u32 s{S_WAVE}, 2
    s_cbranch_scc1 L_g2_skip_{A.kname}
    buffer_load_dwordx4 {v(T+8,4)}, v5, s[12:15], s86 offen{sc}
    L_g2_skip_{A.kname}:
    """)
    A("s_nop 4")
    for d in range(1, 4):
        lab = A.label("rs")
        for w in range(4):
            i = (w + d) & 3
            j = 3 - d
            A(f"s_cmp_lg_u32 s{S_WAVE}, {w}\ns_cbranch_scc1 {lab}_{w}")
            for m in range(5):
                A(f"ds_write_b128 v1, {v(ACC+(i*5+m)*4,4)} offset:{G2_RED + ((i*3+j)*5+m)*1024}")
            A(f"{lab}_{w}:")
    F = BUF + 40
    lab = A.label("own")
    for w in range(4):
        A(f"s_cmp_lg_u32 s{S_WAVE}, {w}\ns_cbranch_scc1 {lab}_{w}")
        for q in range(20): A(f"v_mov_b32 v{F+q}, v{ACC+w*20+q}")
        A(f"{lab}_{w}:")
    A(f"""
    s_waitcnt vmcnt(0)
    ds_write_b128 v7, {v(T,4)} 
    ds_write_b128 v7, {v(T+4,4)} offset:{32*160}
    s_cmp_ge_u32 s{S_WAVE}, 2
    s_cbranch_scc1 L_g2_skip2_{A.kname}
    ds_write_b128 v7, {v(T+8,4)} offset:{64*160}
    L_g2_skip2_{A.kname}:
    s_mul_i32 s83, s{S_WAVE}, 15360
    v_add_u32 v2, s83, v1
    v_lshrrev_b32 v3, 2, v0                 ; 4g + r  (lane>>2)
    v_mul_u32_u24 v3, 160, v3
    v_and_b32 v4, 3, v0
    v_lshl_add_u32 v3, v4, 3, v3            ; + 8c
    s_lshl_b32 s83, s{S_WAVE}, 5
    s_add_u32 s83, s83, {G2_AT}
    v_add_u32 v3, s83, v3                   ; + wave*32
    s_waitcnt lgkmcnt(0)
    s_barrier
    """)
    if ts: ts(A, 3)
    RD = ACC
    for j in range(3):
        for m in range(5):
            A(f"ds_read_b128 {v(RD+(j*5+m)*4,4)}, v2 offset:{G2_RED + (j*5+m)*1024}")
    AT = ACC + 60
    for m in range(5):
        A(f"ds_read_b64_tr_b16 {v(AT+2*m,2)}, v3 offset:{m*16*160}")
    A(f"""
    v_mul_u32_u24 v5, 1280, v8
    v_lshrrev_b32 v6, 4, v0                 ; g
    v_and_b32 v7, 1, v6
    v_lshrrev_b32 v6, 1, v6
    v_lshlrev_b32 v7, 5, v7
    v_lshl_add_u32 v7, v6, 4, v7            ; (g>>1)*16 bytes
    v_add_u32 v7, v5, v7
    v_lshrrev_b32 v6, 4, v0
    v_lshl_add_u32 v6, v6, 3, v5
    s_mul_i32 s84, s{sdt}, 160
    """)
    for j in range(3):
        A(f"s_waitcnt lgkmcnt({min(15, 15 - 5*j)})")
        for q in range(20): A(f"v_add_f32 v{F+q}, v{F+q}, v{RD+j*20+q}")
    A("s_waitcnt lgkmcnt(0)")
    G, OM = T+12, T+13
    O = T + 16
    for m in range(5):
        for h in range(2):
            A(f"""
            v_lshlrev_b32 v10, 16, v{AT+2*m+h}
            v_and_b32 v11, 0xffff0000, v{AT+2*m+h}
            v_mul_f32 v{F+4*m+2*h}, v{OM}, v{F+4*m+2*h}
            v_mul_f32 v{F+4*m+2*h+1}, v{OM}, v{F+4*m+2*h+1}
            v_fmac_f32 v{F+4*m+2*h}, v{G}, v10
            v_fmac_f32 v{F+4*m+2*h+1}, v{G}, v11
            v_cvt_pk_bf16_f32 v{O+2*m+h}, v{F+4*m+2*h}, v{F+4*m+2*h+1}
            """)
    for p in range(2):
        b = O + 4*p
        A(f"v_permlane16_swap_b32 v{b}, v{b+2}\nv_permlane16_swap_b32 v{b+1}, v{b+3}")
        A(f"buffer_store_dwordx4 {v(b,4)}, v7, s[20:23], s84 offen offset:{64*p}")
    A(f"buffer_store_dwordx2 {v(O+8,2)}, v6, s[20:23], s84 offen offset:128")

def kernel(A, kname, body, nvgpr=256):
    A.kname = kname
    A(f".globl {kname}\n.p2align 8\n.type {kname},@function\n{kname}:")
    body(A)
    A(f"L_exit_{kname}:\ns_endpgm")

def descriptor(kname, nvgpr=256, acc=256):
    return f""".amdhsa_kernel {kname}
  .amdhsa_next_free_vgpr {nvgpr}
  .amdhsa_next_free_sgpr 102
  .amdhsa_accum_offset {acc}
  .amdhsa_group_segment_fixed_size 0
  .amdhsa_kernarg_size 120
  .amdhsa_user_sgpr_count 2
  .amdhsa_user_sgpr_kernarg_segment_ptr 1
  .amdhsa_system_sgpr_workgroup_id_x 1
.end_amdhsa_kernel
"""

def build_file(kernels, verbose=False):
    head = []
    if len(kernels) == 1 and kernels[0][0] == NAME + "_kernel":
        head.append(f"; @launch grid=({kernels[0][1]},1,1) block=(256,1,1) lds={kernels[0][2]}")
    else:
        for (n, g, l, b) in kernels: head.append(f"; @launch kernel={n} grid=({g},1,1) block=(256,1,1) lds={l}")
    head.append('.amdgcn_target "amdgcn-amd-amdhsa--gfx950"\n.text')
    A = Asm()
    seen = []
    for (n, g, l, b) in kernels:
        if n in seen: continue
        seen.append(n); kernel(A, n, b)
    lines, nn = fix_hazards(A.lines, verbose)
    out = "\n".join(head) + "\n" + "\n".join(lines) + '\n.section .rodata,"a"\n'
    for n in seen: out += ".p2align 6\n" + descriptor(n)
    return out

def k_prep(A):
    prologue(A, 112)
    A("s_cmp_ge_u32 s2, 48\ns_cbranch_scc1 L_pg")
    role_prep_wd(A, 2)
    A(f"s_branch L_exit_{A.kname}\nL_pg:\ns_sub_u32 s3, s2, 48")
    role_prep_g(A, 3)

def k_g2(A):
    prologue(A, 256)
    A("s_and_b32 s67, s2, 7\ns_lshl_b32 s67, s67, 2\ns_lshr_b32 s68, s2, 3\ns_and_b32 s69, s68, 3\ns_add_u32 s67, s67, s69\ns_lshr_b32 s68, s68, 2")
    role_g2(A, 67, 68)

C1 = -2.0 * LOG2E * 0.7978845608028654
C2 = C1 * 0.044715
def role_g1(A, sline, sc0, snc, srot, sc="", on_store=None, ts=None):
    AR, ACC0, BR = 96, 64, 32
    RS, RA, KBAR = 8, 6, 16
    W0 = 64
    SB = 80
    srd(A, 4, P_U, 0, X_BYTES)
    srd(A, 8, P_WG, 0, 640*3072)
    srd(A, 12, P_WU, 0, 640*3072)
    srd(A, 16, P_WS, WS_H, H_BYTES)
    A(f"""
    v_lshrrev_b32 v1, 3, v0                 ; lane>>3
    v_and_b32 v13, 7, v0                    ; chunk
    s_lshl_b32 s70, s{S_WAVE}, 4
    v_add_u32 v14, s70, v1
    v_mul_u32_u24 v64, 3072, v14
    v_lshl_add_u32 v64, v13, 4, v64
    s_lshl_b32 s71, s{sline}, 7
    v_add_u32 v64, s71, v64
    v_add_u32 v65, 24576, v64
    s_mov_b32 s72, s{srot}
    """)
    for b in range(10):
        A(f"""
        s_lshl_b32 s{SB+b}, s72, 7
        s_mul_i32 s73, s72, {64*3072}
        s_add_u32 s72, s72, 1
        s_cmp_ge_u32 s72, 10
        s_cselect_b32 s72, 0, s72
        """)
        for i in range(4):
            A(f"buffer_load_dwordx4 {v(AR+16*b+4*i,4)}, v{64+(i>>1)}, s[{8+4*(i&1)}:{11+4*(i&1)}], s73 offen")
    A(f"""
    s_lshl_b32 s70, s{S_WAVE}, 3
    v_add_u32 v10, s70, v1
    v_bfe_u32 v15, v10, 1, 3                ; swz
    v_xor_b32 v15, v15, v13
    v_mul_u32_u24 v10, 1280, v10
    v_lshl_add_u32 v10, v15, 4, v10
    s_mul_i32 s73, s{sc0}, 40960
    v_add_u32 v10, s73, v10
    s_lshl_b32 s74, s{S_WAVE}, 10           ; m0 base
    s_mov_b32 s75, s{snc}
    s_mov_b32 s90, 40960
    """)
    def dma(slot, hf):
        for kb in range(5):
            A(f"s_add_u32 m0, s74, {slot*20480 + kb*4096}\ns_nop 0\nbuffer_load_dwordx4 v10, s[4:7], s{SB+5*hf+kb} offen lds")
    def adv():
        A(f"""
        s_sub_u32 s75, s75, 1
        s_cmp_gt_i32 s75, 0
        s_cselect_b32 s76, s90, 0x8000000
        v_add_u32 v10, s76, v10
        """)
    dma(0, 0); dma(1, 1); adv()
    A(f"""
    v_bfe_u32 v15, v0, 4, 1
    v_lshlrev_b32 v15, 1, v15               ; 2*((row>>1)&1)
    v_xor_b32 v15, v15, v13
    v_lshlrev_b32 v66, 7, v14
    v_lshl_add_u32 v66, v15, 4, v66
    v_add_u32 v66, 40960, v66
    v_xor_b32 v67, 64, v66
    v_add_u32 v67, 8192, v67
    v_bfe_u32 v16, v0, 4, 1                 ; mat
    v_lshrrev_b32 v17, 5, v0                ; h
    v_bfe_u32 v18, v0, 2, 2                 ; r
    v_and_b32 v19, 1, v0                    ; c&1
    v_bfe_u32 v20, v0, 1, 1                 ; c>>1
    s_lshl_b32 s70, s{S_WAVE}, 1
    v_or_b32 v19, s70, v19                  ; chunk
    v_and_b32 v21, 2, v18
    v_lshl_or_b32 v21, v16, 2, v21          ; swz
    v_xor_b32 v19, v19, v21
    v_lshl_add_u32 v22, v17, 3, v18         ; 8h + r
    v_lshlrev_b32 v68, 7, v22
    v_lshl_add_u32 v68, v19, 4, v68
    v_lshl_add_u32 v68, v20, 3, v68
    v_lshl_add_u32 v68, v16, 13, v68
    v_add_u32 v68, 40960, v68
    v_and_b32 v16, 31, v0                   ; n
    v_bfe_u32 v18, v0, 1, 3                 ; (n>>1)&7
    v_xor_b32 v18, v18, v17
    v_lshlrev_b32 v2, 7, v16
    v_lshl_add_u32 v2, v18, 4, v2
    v_xor_b32 v3, 32, v2
    v_xor_b32 v4, 64, v2
    v_xor_b32 v5, 96, v2
    v_add_u32 v6, 40960, v2
    v_add_u32 v7, 40960, v3
    v_add_u32 v8, 40960, v4
    v_add_u32 v9, 40960, v5
    v_bfe_u32 v18, v0, 4, 1                 ; n>>4
    v_mul_u32_u24 v11, 49152, v18
    s_and_b32 s70, s{S_WAVE}, 1
    s_lshl_b32 s70, s70, 1
    v_add_u32 v18, s70, v17                 ; 2(w&1)+h
    v_lshlrev_b32 v18, 4, v18
    v_and_or_b32 v18, v0, 15, v18
    v_lshl_add_u32 v11, v18, 4, v11
    s_lshl_b32 s77, s{sline}, 1
    s_lshr_b32 s70, s{S_WAVE}, 1
    s_add_u32 s77, s77, s70
    s_lshl_b32 s77, s77, 10
    s_mul_i32 s70, s{sc0}, 98304
    s_add_u32 s77, s77, s70
    s_mov_b32 s78, 0x8000000
    v_mov_b32 v12, {fbits(C2)}
    """)
    for b in range(10):
        so = (b & 1) * 20480
        A(f"s_waitcnt vmcnt({4*(9-b) + 10})")
        for i in range(4):
            A(f"ds_write_b128 v{66+(i&1)}, {v(AR+16*b+4*i,4)} offset:{so + (i>>1)*1024}")
        A("s_waitcnt lgkmcnt(0)\ns_barrier")
        for ks in range(4):
            for hh in range(2):
                A(f"ds_read_b64_tr_b16 {v(AR+16*b+4*ks+2*hh,2)}, v68 offset:{so + (16*ks+4*hh)*128}")
    if ts: ts(A, 1)
    dma(2, 0)
    A("s_waitcnt vmcnt(10) lgkmcnt(0)\ns_barrier")
    if ts: ts(A, 2)
    dma(3, 1); adv()

    def bread(P, j):
        if j >= 40: P ^= 1; jj = j - 40
        else: jj = j
        st = jj // 20; kk = jj % 20
        A(f"ds_read_b128 {v(BR+4*(ring[0]%RS),4)}, v{2+4*P+(kk&3)} offset:{st*20480 + (kk>>2)*4096}")
        ring[0] += 1
    def epi_ops(acc):
        ops = []
        T = 16
        for g0 in (0, 4):
            E = range(g0, g0+4)
            ops += [f"v_mul_f32 v{T+e-g0}, v{acc+e}, v{acc+e}" for e in E]
            ops += [f"v_mul_f32 v{acc+8+e}, v{acc+e}, v{acc+8+e}" for e in E]
            ops += [f"v_fmaak_f32 v{T+e-g0}, v12, v{T+e-g0}, {fbits(C1)}" for e in E]
            ops += [f"v_mul_f32 v{T+e-g0}, v{T+e-g0}, v{acc+e}" for e in E]
            ops += [f"v_exp_f32 v{T+e-g0}, v{T+e-g0}" for e in E]
            ops += [f"v_add_f32 v{T+e-g0}, 1.0, v{T+e-g0}" for e in E]
            ops += [f"v_rcp_f32 v{T+e-g0}, v{T+e-g0}" for e in E]
            ops += [f"v_mul_f32 v{acc+8+e}, v{acc+8+e}, v{T+e-g0}" for e in E]
            ops += [f"v_cvt_pk_bf16_f32 v{24+(g0>>1)+p}, v{acc+8+g0+2*p}, v{acc+8+g0+2*p+1}" for p in range(2)]
        ops.append(f"buffer_store_dwordx4 v[24:27], v11, s[16:19], s78 offen{sc}")
        return ops
    ring = [0]
    for j in range(RA): bread(0, j)
    top = A.label("g1top")
    A(f"{top}:")
    tails = []
    for P in range(2):
        acc = ACC0 + 16*P
        ops = epi_ops(ACC0 + 16*(P ^ 1))
        w = [2.0 if ("exp" in o or "rcp" in o) else 1.0 for o in ops]
        tot = sum(w); oi = 0; done = 0.0
        issued = RA
        for k in range(40):
            kk = k % 20; st = k // 20
            A(f"s_waitcnt lgkmcnt({issued - k - 1})")
            A(f"v_mfma_f32_32x32x16_bf16 {v(acc,16)}, {v(AR+4*k,4)}, {v(BR+4*((40*P+k)%RS),4)}, {v(acc,16) if k else 0}")
            if kk == KBAR:
                A("s_waitcnt vmcnt(10) lgkmcnt(0)\ns_barrier")
            lim = 20*(st+1) if kk < KBAR else 99
            n = 0
            while issued < min(k + 1 + RA, lim) and n < 3:
                bread(P, issued); issued += 1; n += 1
            if kk == KBAR:
                dma(2*P + st, st)
                if st == 1: adv()
            if k >= 1:
                tgt = tot * k / 38.0
                while oi < len(ops) and done < tgt:
                    A(ops[oi]); done += w[oi]; oi += 1
        while oi < len(ops):
            A(ops[oi]); oi += 1
        if on_store: on_store(A)
        tl = A.label("g1tail"); tails.append(tl)
        A(f"""
        s_mov_b32 s78, s77
        s_add_u32 s77, s77, 98304
        s_sub_u32 s{snc}, s{snc}, 1
        s_cmp_eq_u32 s{snc}, 0
        s_cbranch_scc1 {tl}
        """)
    assert ring[0] == 80 + RA
    A(f"s_branch {top}")
    end = A.label("g1end")
    for P in range(2):
        A(f"{tails[P]}:\ns_nop 7")
        if ts: ts(A, 3)
        for o in epi_ops(ACC0 + 16*P): A(o)
        if P == 0: A(f"s_branch {end}")
    A(f"{end}:")

def k_g1_test(A):
    prologue(A, 240)
    A("""
    s_mul_i32 s67, s2, 2731
    s_lshr_b32 s67, s67, 16            ; wg/24
    s_mul_i32 s68, s67, 24
    s_sub_u32 s68, s2, s68             ; line
    s_mul_i32 s69, s67, 64
    s_mul_i32 s69, s69, 6554
    s_lshr_b32 s69, s69, 16            ; c0 = 64*grp/10
    s_add_u32 s79, s67, 1
    s_mul_i32 s79, s79, 64
    s_mul_i32 s79, s79, 6554
    s_lshr_b32 s79, s79, 16
    s_sub_u32 s79, s79, s69            ; nc
    """)
    role_g1(A, 68, 69, 79, 67)

def cmul(A, r, x, y, t, conj_out=False):
    i1 = f"v_pk_mul_f32 {v(t,2)}, {v(x,2)}, {v(y,2)} op_sel_hi:[0,1]"
    i2 = f"v_pk_fma_f32 {v(r,2)}, {v(x,2)}, {v(y,2)}, {v(t,2)} op_sel:[1,1,0] op_sel_hi:[1,0,1] neg_lo:[0,1,0]"
    if conj_out: i2 += " neg_hi:[0,1,1]"
    return [i1, i2]

def interleave(*streams):
    out = []; idx = [0]*len(streams); tot = sum(len(x) for x in streams)
    while len(out) < tot:
        best = min((idx[i]/len(x), i) for i, x in enumerate(streams) if idx[i] < len(x))[1]
        item = streams[best][idx[best]]; idx[best] += 1
        out.append(item)
    return out

def role_ssm(A, sq, sc="", ts=None):
    UB, TB = 0, 4096
    HI0, LO0 = TB, TB + 21*272
    srd(A, 4, P_U, 0, X_BYTES)
    srd(A, 8, P_LA, 0, 640*384)
    srd(A, 12, P_AI, 0, 640*384)
    srd(A, 16, P_CR, 0, 640*384)
    srd(A, 20, P_CI, 0, 640*384)
    srd(A, 24, P_DT, 0, 1280)
    srd(A, 28, P_DS, 0, 1280)
    srd(A, 32, P_WS, WS_AT, AT_BYTES)
    RAWU = 224
    A(f"""
    s_lshl_b32 s70, s{sq}, 2
    s_add_u32 s70, s70, s{S_WAVE}           ; channel d
    s_mul_i32 s71, s70, 384
    s_lshl_b32 s72, s70, 1
    v_lshlrev_b32 v1, 2, v0
    v_lshlrev_b32 v2, 1, v0
    v_mov_b32 v3, 0
    buffer_load_ushort v16, v3, s[24:27], s72 offen
    buffer_load_dword v4, v1, s[8:11], s71 offen
    buffer_load_ushort v5, v2, s[8:11], s71 offen offset:256
    buffer_load_dword v6, v1, s[12:15], s71 offen
    buffer_load_ushort v7, v2, s[12:15], s71 offen offset:256
    buffer_load_dword v8, v1, s[16:19], s71 offen
    buffer_load_ushort v9, v2, s[16:19], s71 offen offset:256
    buffer_load_dword v10, v1, s[20:23], s71 offen
    buffer_load_ushort v11, v2, s[20:23], s71 offen offset:256
    buffer_load_ushort v17, v3, s[28:31], s72 offen
    s_lshl_b32 s73, s{S_WAVE}, 6
    v_add_u32 v12, s73, v0                  ; tid
    v_mul_u32_u24 v13, 10240, v12
    s_lshl_b32 s74, s{sq}, 3
    s_add_u32 s75, s74, 5120
    """)
    for j in range(8):
        A(f"buffer_load_dwordx2 {v(RAWU+2*j,2)}, v13, s[4:7], s{74 + (j>>2)} offen offset:{(j&3)*1280}")
    A(f"""
    s_mul_i32 s76, s{S_WAVE}, 20480
    s_mov_b32 m0, s76
    v_and_b32 v14, 1, v12
    v_lshrrev_b32 v15, 1, v12
    v_lshlrev_b32 v15, 4, v15
    v_lshl_add_u32 v240, v14, 11, v15
    v_and_b32 v14, 31, v0
    v_mul_u32_u24 v14, 272, v14
    v_lshrrev_b32 v15, 5, v0
    v_lshl_add_u32 v14, v15, 4, v14
    v_add_u32 v241, s76, v14
    s_waitcnt vmcnt(8)
    """)
    Z, C = 20, 26
    A(f"""
    v_lshlrev_b32 v16, 16, v16
    v_mul_f32 v16, {fbits(LOG2E)}, v16
    v_exp_f32 v16, v16
    v_lshlrev_b32 v{Z}, 16, v4
    v_and_b32 v{Z+2}, 0xffff0000, v4
    v_lshlrev_b32 v{Z+4}, 16, v5
    v_cvt_pk_bf16_f32 v16, v16, v16
    v_lshlrev_b32 v16, 16, v16              ; dt
    """)
    for t in range(3): A(f"v_mul_f32 v{Z+2*t}, {fbits(LOG2E)}, v{Z+2*t}")
    for t in range(3): A(f"v_exp_f32 v{Z+2*t}, v{Z+2*t}")
    A(f"""
    v_lshlrev_b32 v{Z+1}, 16, v6
    v_and_b32 v{Z+3}, 0xffff0000, v6
    v_lshlrev_b32 v{Z+5}, 16, v7
    v_cvt_pk_bf16_f32 v4, v{Z}, v{Z+2}
    v_cvt_pk_bf16_f32 v5, v{Z+4}, v{Z+4}
    v_lshlrev_b32 v{Z}, 16, v4
    v_and_b32 v{Z+2}, 0xffff0000, v4
    v_lshlrev_b32 v{Z+4}, 16, v5
    v_lshlrev_b32 v{C}, 16, v8
    v_and_b32 v{C+2}, 0xffff0000, v8
    v_lshlrev_b32 v{C+4}, 16, v9
    v_lshlrev_b32 v{C+1}, 16, v10
    v_and_b32 v{C+3}, 0xffff0000, v10
    v_lshlrev_b32 v{C+5}, 16, v11
    v_add_f32 v18, v16, v16                 ; 2 dt
    v_lshlrev_b32 v242, 16, v17
    """)
    for q in range(6): A(f"v_mul_f32 v{Z+q}, v16, v{Z+q}")
    for q in range(6): A(f"v_mul_f32 v{C+q}, v18, v{C+q}")
    for t in range(3):
        A(f"v_mul_f32 v{Z+2*t}, {fbits(-LOG2E)}, v{Z+2*t}\nv_mul_f32 v{Z+2*t+1}, {fbits(0.15915494309189535)}, v{Z+2*t+1}")
    E1, E256, E2, E4, E8 = 32, 34, 36, 38, 40
    def exps():
        return [
            f"v_exp_f32 v4, v{Z}",
            f"v_fract_f32 v5, v{Z+1}",
            f"v_mul_f32 v6, 0x43800000, v{Z}",
            f"v_mul_f32 v7, 0x43800000, v{Z+1}",
            f"v_cos_f32 v8, v5",
            f"v_sin_f32 v9, v5",
            f"v_fract_f32 v7, v7",
            f"v_exp_f32 v6, v6",
            f"v_cos_f32 v10, v7",
            f"v_sin_f32 v11, v7",
            f"v_mul_f32 v{E1}, v4, v8",
            f"v_mul_f32 v{E1+1}, v4, v9",
            f"v_mul_f32 v{E256}, v6, v10",
            f"v_mul_f32 v{E256+1}, v6, v11",
        ]
    for o in exps(): A(o)
    KA = 48
    FA, FB = 64, 96
    for q in range(16): A(f"v_mov_b32 v{KA+q}, 0")
    A("v_mov_b32 v19, 0x3f80\ns_mov_b32 s77, 3")
    top = A.label("kgen")
    A(f"{top}:")
    pk = [0, 0]
    def emit(val, row_off):
        z = 0 if row_off >= LO0 else 1
        r = 128 + 4*z + (pk[z] % 4); pk[z] += 1
        return [f"v_cvt_pk_bf16_f32 v{r}, v{val}, v{val+1}", f"ds_write_addtid_b32 v{r} offset:{row_off}"]
    pre = cmul(A, E2, E1, E1, 42) + [f"ds_write_addtid_b32 v19 offset:{LO0}"] + emit(C, HI0) + cmul(A, E4, E2, E2, 42) + cmul(A, E8, E4, E4, 42, conj_out=True)
    for o in pre: A(o)
    L, LT = 136, 138
    lo = emit(E8, LO0 + 272) + cmul(A, L, E8, E8, LT) + emit(L, LO0 + 2*272)
    for i in range(3, 32): lo += cmul(A, L, L, E8, LT) + emit(L, LO0 + i*272)
    H, HT, G, GT = 140, 142, 144, 146
    hi = []
    src = C
    for j in range(1, 8):
        hi += cmul(A, H, src, E1, HT) + emit(H, HI0 + j*272); src = H
    hi += cmul(A, G, C, E256, GT) + emit(G, HI0 + 16*272)
    hi += cmul(A, H, G, E2, HT) + emit(H, HI0 + 17*272)
    hi += cmul(A, H, H, E2, HT) + emit(H, HI0 + 18*272)
    hi += cmul(A, H, H, E2, HT) + emit(H, HI0 + 19*272)
    hi += cmul(A, G, G, E256, GT) + emit(G, HI0 + 8*272)
    hi += cmul(A, H, G, E4, HT) + emit(H, HI0 + 9*272)
    hi += cmul(A, G, G, E256, GT) + emit(G, HI0 + 12*272)
    hi += cmul(A, H, G, E4, HT) + emit(H, HI0 + 13*272)
    for row in (10, 11, 14, 15, 20):
        hi += cmul(A, G, G, E256, GT) + emit(G, HI0 + row*272)
    for o in interleave(lo, hi): A(o)
    for q in range(4): A(f"v_mov_b32 v{Z+q}, v{Z+2+q}\nv_mov_b32 v{C+q}, v{C+2+q}")
    A("s_waitcnt lgkmcnt(0)")
    for k in range(8):
        A(f"ds_read_b128 {v(FA+4*k,4)}, v241 offset:{HI0 + 32*k}\nds_read_b128 {v(FB+4*k,4)}, v241 offset:{LO0 + 32*k}")
    ex = exps()
    for k in range(8):
        for o in ex[2*k:2*k+2]: A(o)
        A(f"s_waitcnt lgkmcnt({14-2*k})")
        A(f"v_mfma_f32_32x32x16_bf16 {v(KA,16)}, {v(FA+4*k,4)}, {v(FB+4*k,4)}, {v(KA,16)}")
    A(f"s_sub_u32 s77, s77, 1\ns_cmp_lg_u32 s77, 0\ns_cbranch_scc1 {top}")
    if ts: ts(A, 1)
    A("s_mov_b32 s78, 0x05040100\ns_mov_b32 s79, 0x07060302\ns_waitcnt vmcnt(0)")
    for c in range(4):
        for p in range(4):
            A(f"v_perm_b32 v{64+4*c+p}, v{RAWU+4*p+2+(c>>1)}, v{RAWU+4*p+(c>>1)}, s{78+(c&1)}")
        A(f"ds_write_b128 v240, {v(64+4*c,4)} offset:{c*20480}")
    A(f"""
    v_and_b32 v4, 31, v0                    ; i
    v_lshrrev_b32 v5, 5, v0                 ; h
    v_lshlrev_b32 v6, 4, v4
    s_add_u32 s78, s76, {TB}
    v_add_u32 v6, s78, v6                   ; T + 16 i
    v_lshl_add_u32 v7, v5, 10, v6           ; seg3 base (+1024 h)
    v_lshl_add_u32 v8, v5, 9, v6            ; seg2 base (+512 h)
    v_lshl_add_u32 v9, v5, 3, v6            ; seg0
    v_cmp_eq_u32 vcc, 0, v0
    v_mov_b32 v10, 0
    v_cndmask_b32 v10, v10, v242, vcc
    v_mov_b32_dpp v12, v{KA+6} quad_perm:[0,0,2,2] row_mask:0xf bank_mask:0xf
    v_mov_b32_dpp v13, v{KA+7} quad_perm:[0,0,2,2] row_mask:0xf bank_mask:0xf
    v_add_f32 v{KA}, v{KA}, v10
    v_cvt_pk_bf16_f32 v80, v12, v{KA+6}
    v_cvt_pk_bf16_f32 v81, v{KA+6}, v{KA+6}
    v_cvt_pk_bf16_f32 v84, v13, v{KA+7}
    v_cvt_pk_bf16_f32 v85, v{KA+7}, v{KA+7}
    v_mov_b32 v82, v81
    v_mov_b32 v83, v81
    v_mov_b32 v86, v85
    v_mov_b32 v87, v85
    v_add_u32 v11, 2040, v7
    ds_write2_b64 v11, v[80:81], v[82:83] offset0:0 offset1:1
    ds_write2_b64 v11, v[84:85], v[86:87] offset0:64 offset1:65
    v_cvt_pk_bf16_f32 v88, v{KA+8}, v{KA+8} ; (a,a) seg1 / K(2048)
    v_cvt_pk_bf16_f32 v89, v{KA+9}, v{KA+10}
    v_cvt_pk_bf16_f32 v90, v{KA+10}, v{KA+10}
    v_cvt_pk_bf16_f32 v91, v{KA+11}, v{KA+11}
    v_cvt_pk_bf16_f32 v92, v{KA+4}, v{KA+4}
    v_cvt_pk_bf16_f32 v93, v{KA+4}, v{KA+5}
    v_cvt_pk_bf16_f32 v94, v{KA+5}, v{KA+5}
    v_cvt_pk_bf16_f32 v96, v{KA}, v{KA+1}
    v_cvt_pk_bf16_f32 v97, v{KA+2}, v{KA+3}
    v_add_u32 v11, 1020, v8
    s_mov_b32 exec_lo, 0
    s_mov_b32 exec_hi, 1
    ds_write2_b32 v6, v88, v88 offset0:0 offset1:1
    """.replace("ds_write2_b32 v6, v88, v88 offset0:0 offset1:1", "ds_write_b32 v6, v88 offset:4088\nds_write_b32 v6, v88 offset:4092"))
    A(f"""
    s_mov_b64 exec, -1
    ds_write2_b32 v11, v92, v92 offset0:0 offset1:1
    ds_write2_b32 v11, v93, v94 offset0:2 offset1:3
    s_mov_b32 exec_hi, 0
    ds_write_b64 v6, v[88:89] offset:512
    ds_write_b32 v6, v90 offset:520
    ds_write_b16 v6, v91 offset:524
    ds_write_b16 v6, v88 offset:510
    s_mov_b64 exec, -1
    ds_write_b64 v9, v[96:97]
    ; ---- copies 1..3
    v_lshlrev_b32 v4, 4, v0
    v_add_u32 v4, s78, v4                   ; T + 16 lane
    v_subrev_u32 v5, 8, v4
    v_xor_b32 v6, 64, v4
    v_xor_b32 v7, 128, v4
    v_xor_b32 v8, 192, v4
    """)
    for it in range(4):
        b = 64 + 8*it
        A(f"ds_read_b64 {v(b,2)}, v5 offset:{it*1024}\nds_read_b128 {v(b+2,4)}, v4 offset:{it*1024}")
    A(f"""
    v_lshrrev_b32 v10, 4, v0                ; g
    v_and_b32 v11, 1, v10                   ; g&1
    v_lshrrev_b32 v12, 1, v10               ; g>>1
    v_lshl_or_b32 v13, v11, 1, v12          ; pi(g)
    v_bfe_u32 v14, v0, 2, 2                 ; r
    v_and_b32 v15, 3, v0                    ; c
    v_lshlrev_b32 v16, 12, v14
    v_lshl_add_u32 v16, v15, 3, v16
    v_lshlrev_b32 v17, 4, v13
    v_sub_u32 v16, v16, v17
    s_add_u32 s79, s78, 32
    v_add_u32 v243, s79, v16
    v_lshlrev_b32 v244, 6, v14              ; r<<6
    v_and_b32 v15, 15, v0                   ; n / b
    v_add_u32 v245, v15, v11
    v_subrev_u32 v245, 1, v245              ; idx = n - 1 + (g&1)
    v_lshlrev_b32 v246, 4, v245
    v_lshl_add_u32 v246, v12, 11, v246
    s_add_u32 s79, s76, 256
    v_add_u32 v246, s79, v246
    v_lshlrev_b32 v17, 3, v13
    v_sub_u32 v17, v15, v17
    v_add_u32 v17, 16, v17                  ; m = 16 + b - 8 pi
    v_lshlrev_b32 v247, 5, v15
    v_lshl_add_u32 v247, v11, 9, v247
    v_lshl_add_u32 v247, v12, 4, v247
    v_mov_b32 v18, 0xffff
    """)
    MK = 248
    for jj in range(4):
        A(f"""
        v_cmp_eq_u32 vcc, {2*jj}, v17
        v_cndmask_b32 v{MK+jj}, 0, v18, vcc
        v_cmp_lt_i32 vcc, {2*jj}, v17
        v_cndmask_b32 v{MK+jj}, v{MK+jj}, -1, vcc
        """.replace(f"v_cndmask_b32 v{MK+jj}, v{MK+jj}, -1, vcc", f"v_cndmask_b32_e64 v{MK+jj}, v{MK+jj}, -1, vcc"))
    for it in range(4):
        b = 64 + 8*it; o = 96 + 12*it
        A(f"s_waitcnt lgkmcnt({6-2*it + 3*it})")
        for j in range(4): A(f"v_alignbit_b32 v{o+j}, v{b+2+j}, v{b+1+j}, 16")
        for j in range(4): A(f"v_mov_b32 v{o+4+j}, v{b+1+j}")
        for j in range(4): A(f"v_alignbit_b32 v{o+8+j}, v{b+1+j}, v{b+j}, 16")
        for r in range(1, 4):
            A(f"ds_write_b128 v{5+r}, {v(o+4*(r-1),4)} offset:{r*4096 + it*1024}")
    A("s_waitcnt lgkmcnt(0)\ns_barrier")
    if ts: ts(A, 2)
    ACC = 16
    BUF = [64, 128]
    def addr_ops():
        return ["v_xor_b32 v4, v243, v244", "v_subrev_u32 v5, 8, v243", "v_subrev_u32 v6, 256, v246", "v_xor_b32 v5, v5, v244", "v_max_i32 v6, 0, v6"]
    def adv_ops():
        return ["v_add_u32 v243, 64, v243", "v_subrev_u32 v246, 32, v246"]
    def reads(buf):
        R = []
        order = [0, 1, 2, 3, 4, 5, 6, 7]
        R.append(f"ds_read_b128 {v(buf+32,4)}, v6")
        for i in order:
            R.append(f"ds_read_b64_tr_b16 {v(buf+4*i,2)}, v4 offset:{512*i}")
            R.append(f"ds_read_b64_tr_b16 {v(buf+4*i+2,2)}, v5 offset:{512*i}")
            if i < 7: R.append(f"ds_read_b128 {v(buf+32+4*(i+1),4)}, v246 offset:{256*i}")
        return R
    def fix_ops(buf):
        o = ["v_cmp_le_i32 vcc, 0, v245", "v_subrev_u32 v245, 2, v245"]
        o += [f"v_and_b32 v{buf+j}, v{buf+j}, v{MK+j}" for j in range(4)]
        o += [f"v_cndmask_b32 v{buf+32+j}, 0, v{buf+32+j}, vcc" for j in range(4)]
        return o
    for q in range(32): A(f"v_mov_b32 v{ACC+q}, 0")
    for o in addr_ops(): A(o)
    for o in reads(BUF[0]): A(o)
    for o in adv_ops(): A(o)
    A("s_mov_b32 s77, 4")
    top = A.label("conv")
    A(f"{top}:")
    for P in range(2):
        buf = BUF[P]; nb = BUF[P ^ 1]
        for o in addr_ops(): A(o)
        A("s_waitcnt lgkmcnt(0)")
        for o in fix_ops(buf): A(o)
        for j in range(4): A(f"v_mov_b32 v{MK+j}, -1")
        R = reads(nb) + adv_ops()
        mf = []
        for i in range(7, -1, -1):
            for T in range(7, i - 1, -1):
                mf.append(f"v_mfma_f32_16x16x32_bf16 {v(ACC+4*T,4)}, {v(buf+4*i,4)}, {v(buf+32+4*(T-i),4)}, {v(ACC+4*T,4)}")
        ri = 0
        for k, m in enumerate(mf):
            A(m)
            if ri < len(R): A(R[ri]); ri += 1
    A(f"s_sub_u32 s77, s77, 1\ns_cmp_lg_u32 s77, 0\ns_cbranch_scc1 {top}")
    if ts: ts(A, 3)
    A("s_lshl_b32 s78, s70, 12\ns_nop 4")
    for p in range(4):
        o = 64 + 4*p
        for T in (2*p, 2*p+1):
            for h in range(2):
                A(f"v_cvt_pk_bf16_f32 v{o+2*(T&1)+h}, v{ACC+4*T+2*h}, v{ACC+4*T+2*h+1}")
    for p in range(4):
        o = 64 + 4*p
        A(f"v_permlane16_swap_b32 v{o}, v{o+2}\nv_permlane16_swap_b32 v{o+1}, v{o+3}")
        A(f"buffer_store_dwordx4 {v(o,4)}, v247, s[32:35], s78 offen offset:{1024*p}{sc}")

def k_ssm_test(A):
    prologue(A, 160)
    role_ssm(A, 2)

TSR = 92
def ts_mark(A, i):
    A(f"s_memtime s[68:69]\ns_waitcnt lgkmcnt(0)\ns_mov_b32 s{TSR+2+i}, s68" if False else
      f"s_waitcnt lgkmcnt(0)\ns_memtime vcc\ns_waitcnt lgkmcnt(0)\ns_mov_b32 s{TSR+2+i}, vcc_lo")
def ts_begin(A):
    A(f"s_memrealtime vcc\ns_waitcnt lgkmcnt(0)\ns_mov_b32 s{TSR}, vcc_lo")
    for i in range(8): A(f"s_mov_b32 s{TSR+2+i}, 0")
    ts_mark(A, 0)
def ts_end(A, base=0):
    A("s_waitcnt vmcnt(0)")
    ts_mark(A, 7)
    A(f"s_memrealtime vcc\ns_waitcnt lgkmcnt(0)\ns_mov_b32 s{TSR+1}, vcc_lo")
    srd(A, 4, P_WS, WS_TS + base, 0x100000)
    A(f"s_lshl_b32 s8, s2, 2\ns_add_u32 s8, s8, s{S_WAVE}\ns_lshl_b32 s8, s8, 6\nv_mov_b32 v1, 0")
    for i in range(10): A(f"v_mov_b32 v{2+i}, s{TSR+i}")
    A("s_getreg_b32 s9, hwreg(HW_REG_HW_ID)\ns_getreg_b32 s10, hwreg(HW_REG_XCC_ID)\nv_mov_b32 v12, s9\nv_mov_b32 v13, s10")
    A("s_mov_b64 exec, 1")
    for i in range(3): A(f"buffer_store_dwordx4 {v(2+4*i,4)}, v1, s[4:7], s8 offen offset:{16*i}")

SPLIT = (9, 8, 5, 5, 5)
def make_k1(split=SPLIT, dbg=False):
    def k1(A):
        prologue(A, 512)
        if dbg: ts_begin(A)
        ts = ts_mark if dbg else None
        st = [sum(split[:i]) for i in range(5)]
        pack_c0 = sum(st[i] << (6*i) for i in range(5)); pack_nc = sum(split[i] << (6*i) for i in range(5))
        A(f"""
        s_and_b32 s3, s2, 7                  ; xcd
        s_bfe_u32 s67, s2, 0x50003           ; j
        s_cmp_ge_u32 s2, 256
        s_cbranch_scc1 L_half1
        s_cmp_ge_u32 s67, 30
        s_cbranch_scc1 L_prepA
        s_mul_i32 s68, s67, 43
        s_lshr_b32 s68, s68, 8               ; slot = j/6
        s_mul_i32 s69, s68, 6
        s_sub_u32 s69, s67, s69              ; j%6
        s_lshr_b32 s70, s3, 1
        s_mul_i32 s70, s70, 6
        s_add_u32 s69, s69, s70              ; line
        s_mul_i32 s70, s68, 6
        s_lshr_b32 s79, {pack_nc}, s70
        s_and_b32 s79, s79, 63               ; nc
        s_lshr_b32 s68, {pack_c0}, s70
        s_and_b32 s68, s68, 63
        s_and_b32 s70, s3, 1
        s_lshl_b32 s70, s70, 5
        s_add_u32 s68, s68, s70              ; c0
        s_mul_i32 s67, s67, 3
        s_add_u32 s67, s67, s3
        s_mul_i32 s70, s67, 205
        s_lshr_b32 s70, s70, 11
        s_mul_i32 s70, s70, 10
        s_sub_u32 s67, s67, s70              ; rot
        """)
        role_g1(A, 69, 68, 79, 67, ts=ts)
        A(f"""
        s_branch L_done
        L_prepA:
        s_lshl_b32 s3, s3, 1
        s_add_u32 s3, s3, s67
        s_add_u32 s3, s3, 66                 ; 96 + 2x + j - 30
        s_branch L_prep
        L_half1:
        s_cmp_ge_u32 s67, 12
        s_cbranch_scc1 L_ssm
        s_lshl_b32 s67, s67, 3
        s_add_u32 s3, s3, s67                ; 8j + x
        L_prep:
        s_cmp_ge_u32 s3, 48
        s_cbranch_scc1 L_pg
        """)
        role_prep_wd(A, 3)
        A("s_branch L_done\nL_pg:\ns_sub_u32 s3, s3, 48")
        role_prep_g(A, 3)
        A(f"""
        s_branch L_done
        L_ssm:
        s_mul_i32 s3, s3, 20
        s_add_u32 s3, s3, s67
        s_sub_u32 s3, s3, 12
        """)
        role_ssm(A, 3, ts=ts)
        A("L_done:")
        if dbg: ts_end(A)
    return k1
def make_k2(dbg=False):
    def k2(A):
        prologue(A, 256)
        if dbg: ts_begin(A)
        A("s_and_b32 s67, s2, 7\ns_lshl_b32 s67, s67, 2\ns_lshr_b32 s68, s2, 3\ns_and_b32 s69, s68, 3\ns_add_u32 s67, s67, s69\ns_lshr_b32 s68, s68, 2")
        role_g2(A, 67, 68, ts=ts_mark if dbg else None)
        if dbg: ts_end(A, 0x40000)
    return k2

if __name__ == "__main__":
    src = build_file([("phase1_kernel", 512, 81920, make_k1()), ("phase2_kernel", 256, 81920, make_k2())])
    open(f"cdna_kernels/{NAME}.s", "w").write(src)
    print("written", len(src))
```

```python
from gen import *
def k_empty(A): pass
k1 = make_k1(); k2 = make_k2()
def W(name, ks): open(f"cdna_kernels/{name}.s","w").write(build_file(ks))
W("v_empty_first", [("e_kernel",8,0,k_empty),("phase1_kernel",512,81920,k1),("phase2_kernel",256,81920,k2)])
W("v_k1_twice", [("phase1_kernel",512,81920,k1),("phase1_kernel",512,81920,k1),("phase2_kernel",256,81920,k2)])
W("v_k2_twice", [("phase1_kernel",512,81920,k1),("phase2_kernel",256,81920,k2),("phase2_kernel",256,81920,k2)])
W("v_empty_last", [("phase1_kernel",512,81920,k1),("phase2_kernel",256,81920,k2),("e_kernel",8,0,k_empty)])
```

```python
import sys, struct
sys.path.insert(0, "work")
from asmlib import *

NAME = "gated_mix__ssm_conv_s4d__geglu_ffn__prompt"
WS_H    = 0x100000
WS_AT   = 0x800000
WS_WD   = 0xC00000
WS_G    = 0xF00000
WS_UT   = 0x1000000
WS_TS   = 0x1400000
AT_ROW = 4224
UT_CH = 10368
H_BYTES, AT_BYTES, WD_BYTES, G_BYTES, UT_BYTES = 2048*1536*2, 640*AT_ROW, 1536*640*2, 2048*8, 256*UT_CH
X_BYTES = 2048*1280
FL_BYTES = 0x2000
F_EP, F_WD, F_U, F_H, F_A, F_T = 0x0, 0x200, 0x1000, 0x400, 0xA00, 0x1400
P_U, P_LA, P_AI, P_CR, P_CI, P_DT, P_DS, P_BX = 36, 38, 40, 42, 44, 46, 48, 50
P_WG, P_WU, P_WD, P_GW, P_OUT, P_DBG, P_WS = 52, 54, 56, 58, 60, 62, 64
S_WAVE, S_J, S_X, S_TAG = 66, 67, 3, 1
LOG2E = 1.4426950408889634
SC = " sc1"
SPIN = 20000
CFG = dict(split=(8, 8, 6, 5, 5), wmod=" nt", wdmod=" nt", rot=(0,2,4,6,8), rotx=1, rotl=7, gostep=10, slp=6, slpH=1, nbU=3, kprio=3, nbA=3, nbB=12,
           umod="", wdelay=2, kmf0=40, warmat=2, nTA=0, nT0=1, waitT=True, tpub=2, slpI=16, marks='kuePHM', swap=False, pubit=1, cprio=3, xtouch=True, prio=True, skip=(), dbg=False, pk=True, hsc=SC, psc=SC)
def fbits(x): return "0x%08x" % struct.unpack("<I", struct.pack("<f", x))[0]

def srd(A, dst, ptr, off, nbytes):
    if off:
        A(f"s_add_u32 s{dst}, s{ptr}, {off}\ns_addc_u32 s{dst+1}, s{ptr+1}, 0")
    else:
        A(f"s_mov_b32 s{dst}, s{ptr}\ns_mov_b32 s{dst+1}, s{ptr+1}")
    A(f"s_mov_b32 s{dst+2}, {nbytes}\ns_mov_b32 s{dst+3}, 0x20000")

TSR = 92
def ts(A, i):
    if CFG["dbg"]:
        A(f"s_waitcnt lgkmcnt(0)\ns_memtime vcc\ns_waitcnt lgkmcnt(0)\ns_mov_b32 s{TSR+2+i}, vcc_lo")
def tsn(A, n):
    if n in CFG['marks']: ts(A, 1 + CFG['marks'].index(n))
def kwait(A):
    A(f"s_waitcnt lgkmcnt(0)\ns_load_dword s{S_TAG}, s[{P_WS}:{P_WS+1}], {F_EP}")
    if CFG["dbg"]:
        for i in range(1, 8): A(f"s_mov_b32 s{TSR+2+i}, 0")
def ts_end(A):
    A("s_waitcnt vmcnt(0)")
    ts(A, 7)
    A(f"s_memrealtime vcc\ns_waitcnt lgkmcnt(0)\ns_mov_b32 s{TSR+1}, vcc_lo")
    srd(A, 4, P_WS, WS_TS, 0x100000)
    A(f"s_lshl_b32 s8, s2, 2\ns_add_u32 s8, s8, s{S_WAVE}\ns_lshl_b32 s8, s8, 6\nv_mov_b32 v1, 0")
    for i in range(10): A(f"v_mov_b32 v{2+i}, s{TSR+i}")
    A("s_getreg_b32 s9, hwreg(HW_REG_HW_ID)\ns_getreg_b32 s10, hwreg(HW_REG_XCC_ID)\nv_mov_b32 v12, s9\nv_mov_b32 v13, s10")
    A("s_mov_b64 exec, 1")
    for i in range(3): A(f"buffer_store_dwordx4 {v(2+4*i,4)}, v1, s[4:7], s8 offen offset:{16*i}")

def prologue(A, nwg):
    if CFG["dbg"]: A(f"s_memrealtime s[{TSR}:{TSR+1}]\ns_memtime s[{TSR+2}:{TSR+3}]")
    A(f"""
    s_load_dwordx16 s[36:51], s[0:1], 0
    s_load_dwordx8 s[52:59], s[0:1], 64
    s_load_dwordx4 s[60:63], s[0:1], 96
    s_load_dwordx2 s[64:65], s[0:1], 112
    s_cmp_ge_u32 s2, {nwg}
    s_cbranch_scc1 L_exit
    v_lshrrev_b32 v1, 6, v0
    v_and_b32 v0, 63, v0
    v_readfirstlane_b32 s{S_WAVE}, v1
    s_and_b32 s{S_X}, s2, 7
    s_bfe_u32 s{S_J}, s2, 0x50003
    """)

def spin_tail(A, lab, done, cnt, slp=None):
    slp = CFG["slp"] if slp is None else slp
    if slp: A(f"s_sleep {slp}")
    A(f"s_sub_u32 s{cnt}, s{cnt}, 1\ns_cbranch_scc0 {lab}\n{done}:")

def mk_tag(A):
    A(f"s_mul_i32 s{S_TAG}, s{S_TAG}, 0x9e3779b1\ns_add_u32 s{S_TAG}, s{S_TAG}, 0x7f4a7c15\ns_or_b32 s{S_TAG}, s{S_TAG}, 1")

def poll(A, sfl, vt, va, cnt, preissued=False, slp=None):
    lab, done = A.label("poll"), A.label("pollok")
    A(f"s_mov_b32 s{cnt}, {SPIN}")
    if preissued:
        A(f"v_cmp_ne_u32 vcc, s{S_TAG}, v{vt}\ns_cbranch_vccz {done}")
    A(f"""{lab}:
    buffer_load_dword v{vt}, v{va}, s[{sfl}:{sfl+3}], 0 offen{SC}
    s_waitcnt vmcnt(0)
    v_cmp_ne_u32 vcc, s{S_TAG}, v{vt}
    s_cbranch_vccz {done}
    """)
    spin_tail(A, lab, done, cnt, slp)

def publish(A, sfl, soff, vt, vz):
    lab = A.label("pub")
    A(f"""
    s_cmp_lg_u32 s{S_WAVE}, 0
    s_cbranch_scc1 {lab}
    v_mov_b32 v{vt}, s{S_TAG}
    s_mov_b64 exec, 1
    buffer_store_dword v{vt}, v{vz}, s[{sfl}:{sfl+3}], s{soff} offen{SC}
    s_mov_b64 exec, -1
    {lab}:
    """)

IMG = 2688
HALF = "s_mov_b32 exec_lo, 0xffff\ns_mov_b32 exec_hi, 0xffff"
def p8_addr(A):
    A(f"""
    v_lshrrev_b32 v61, 5, v0                ; row&1
    v_and_b32 v62, 31, v0
    v_lshlrev_b32 v62, 4, v62               ; piece*16
    v_mul_u32_u24 v56, 1280, v61
    v_add_u32 v56, v56, v62
    v_mul_u32_u24 v57, 1296, v61
    v_add_u32 v57, v57, v62
    s_mul_i32 s70, s{S_WAVE}, 20480
    v_add_u32 v57, s70, v57
    v_bfe_u32 v58, v0, 3, 1                 ; r>>1
    v_mul_u32_u24 v58, 20480, v58
    v_bfe_u32 v59, v0, 2, 1                 ; r&1
    v_mul_u32_u24 v59, 1296, v59
    v_add_u32 v58, v58, v59
    v_lshrrev_b32 v60, 4, v0                ; g
    v_lshl_add_u32 v58, v60, 5, v58
    v_and_b32 v59, 3, v0
    v_lshl_add_u32 v58, v59, 3, v58
    s_lshl_b32 s70, s{S_WAVE}, 7
    v_add_u32 v58, s70, v58
    v_mul_u32_u24 v60, 49152, v60
    v_and_b32 v59, 15, v0
    v_lshl_add_u32 v60, v59, 4, v60
    v_lshlrev_b32 v59, 4, v0
    s_lshl_b32 s70, s{S_WAVE}, 1
    v_add_u32 v63, s70, v61
    v_mov_b32 v61, 0
    """)
def p8_load(A, dst, sr, soff, mod, va=56):
    A(f"buffer_load_dwordx4 {v(dst,4)}, v{va}, s[{sr}:{sr+3}], {soff} offen{mod}")
    A(f"buffer_load_dwordx4 {v(dst+4,4)}, v{va}, s[{sr}:{sr+3}], {soff} offen offset:512{mod}")
    A(HALF)
    A(f"buffer_load_dwordx4 {v(dst+8,4)}, v{va}, s[{sr}:{sr+3}], {soff} offen offset:1024{mod}")
    A("s_mov_b64 exec, -1")
def p8_write(A, src, slot):
    A(f"ds_write_b128 v57, {v(src,4)} offset:{slot*IMG}\nds_write_b128 v57, {v(src+4,4)} offset:{slot*IMG+512}")
    A(HALF)
    A(f"ds_write_b128 v57, {v(src+8,4)} offset:{slot*IMG+1024}\ns_mov_b64 exec, -1")
def p8_out(A, dst, slot, sr, soff, va, step):
    for q in range(3):
        A(f"ds_read_b64_tr_b16 {v(dst+4*q,2)}, v58 offset:{slot*IMG+q*512}\nds_read_b64_tr_b16 {v(dst+4*q+2,2)}, v58 offset:{slot*IMG+q*512+40960}")
    sk = A.label("p8s")
    for q in range(3):
        if q == 2: A(f"s_cmp_ge_u32 s{S_WAVE}, 2\ns_cbranch_scc1 {sk}")
        A(f"s_waitcnt lgkmcnt({4-2*q})")
        if "pstore" not in CFG["skip"]: A(f"buffer_store_dwordx4 {v(dst+4*q,4)}, v{va}, s[{sr}:{sr+3}], s{soff} offen{CFG['psc']}")
        if q < 2: A(f"s_add_u32 s{soff}, s{soff}, {step}")
    A(f"{sk}:\ns_waitcnt lgkmcnt(0)")
def p8_gate(A, X, W, sr, soff):
    A("v_mov_b32 v52, 0")
    for j in range(12): A(f"v_dot2_f32_bf16 v52, v{X+j}, v{W+j}, v52")
    for sh in (8, 4, 2, 1):
        A(f"v_add_f32_dpp v52, v52, v52 row_ror:{sh} row_mask:0xf bank_mask:0xf")
    A(f"""
    v_add_f32_dpp v52, v52, v52 row_bcast:15 row_mask:0xa bank_mask:0xf
    v_cvt_pk_bf16_f32 v52, v52, v52
    v_lshlrev_b32 v52, 16, v52
    v_mul_f32 v52, {fbits(-LOG2E)}, v52
    v_exp_f32 v52, v52
    v_add_f32 v52, 1.0, v52
    v_rcp_f32 v52, v52
    v_cvt_pk_bf16_f32 v52, v52, v52
    v_lshlrev_b32 v54, 16, v52
    v_sub_f32 v52, 1.0, v54
    v_cvt_pk_bf16_f32 v52, v52, v52
    v_lshlrev_b32 v55, 16, v52
    v_lshlrev_b32 v63, 3, v63
    s_mov_b32 exec_lo, 0x10000
    s_mov_b32 exec_hi, 0x10000
    buffer_store_dwordx2 v[54:55], v63, s[{sr}:{sr+3}], s{soff} offen{SC}
    s_mov_b64 exec, -1
    """)
NWDF = 16
PX, PW, PO = 160, 172, 184
def u_task_issue(A):
    A(f"""
    s_mul_i32 s88, s69, 10240
    s_mul_i32 s89, s{S_WAVE}, 2560
    s_add_u32 s88, s88, s89
    s_mov_b32 s82, {X_BYTES}
    s_mov_b32 s83, 0x20000
    s_mov_b32 s86, 1280
    s_mov_b32 s87, 0x20000
    """)
    for j in range(8, 12): A(f"v_mov_b32 v{PX+j}, 0\nv_mov_b32 v{PW+j}, 0")
    kwait(A)
    A(f"s_mov_b64 s[80:81], s[{P_U}:{P_U+1}]\ns_mov_b64 s[84:85], s[{P_GW}:{P_GW+1}]")
    p8_load(A, PX, 80, "s88", CFG["umod"])
    p8_load(A, PW, 84, "0", "", va=62)
def u_task_finish(A):
    p8_write(A, PX, 0)
    srd(A, 80, P_WS, WS_UT, UT_BYTES)
    srd(A, 84, P_WS, WS_G, G_BYTES)
    A(f"""
    s_mul_i32 s88, s69, {UT_CH}
    s_lshl_b32 s89, s{S_WAVE}, 10
    s_add_u32 s88, s88, s89
    s_lshl_b32 s89, s69, 6
    s_waitcnt lgkmcnt(0)
    s_barrier
    """)
    p8_out(A, PO, 0, 80, 88, 59, 4096)
    p8_gate(A, PX, PW, 84, 89)
def role_prep_w(A):
    A(f"""
    s_setprio 3
    s_lshl_b32 s79, s69, 2
    s_add_u32 s79, s79, {F_WD}
    s_mul_i32 s69, s69, 12
    s_mul_i32 s70, s{S_WAVE}, 3
    s_add_u32 s69, s69, s70
    s_mul_i32 s72, s69, 10240
    v_lshrrev_b32 v1, 3, v0
    v_and_b32 v2, 7, v0
    v_mul_u32_u24 v3, 1280, v1
    v_lshl_add_u32 v3, v2, 4, v3
    v_mul_u32_u24 v4, 144, v1
    v_lshl_add_u32 v4, v2, 4, v4
    s_mul_i32 s70, s{S_WAVE}, 20480
    v_add_u32 v4, s70, v4
    v_bfe_u32 v5, v0, 2, 2
    v_mul_u32_u24 v5, 144, v5
    v_lshrrev_b32 v6, 4, v0                 ; g
    v_lshl_add_u32 v5, v6, 5, v5
    v_and_b32 v7, 3, v0
    v_lshl_add_u32 v5, v7, 3, v5
    v_add_u32 v5, s70, v5
    v_mul_u32_u24 v6, 49152, v6
    v_and_b32 v7, 15, v0
    v_lshl_add_u32 v6, v7, 4, v6
    v_mov_b32 v8, 0
    s_mov_b32 s6, {WD_BYTES}
    s_mov_b32 s7, 0x20000
    """)
    kwait(A)
    A(f"s_mov_b64 s[4:5], s[{P_WD}:{P_WD+1}]")
    for t in range(3):
        for it in range(10):
            A(f"buffer_load_dwordx4 {v(16+40*t+4*it,4)}, v3, s[4:7], s72 offen offset:{128*it}{CFG['wdmod']}")
        if t < 2: A("s_add_u32 s72, s72, 10240")
    srd(A, 8, P_WS, WS_WD, WD_BYTES)
    srd(A, 24, P_WS, 0, FL_BYTES)
    A("s_waitcnt lgkmcnt(0)")
    for t in range(3):
        b = 16 + 40*t
        for it in range(10):
            A(f"s_waitcnt vmcnt({29-it})\nds_write_b128 v4, {v(b+4*it,4)} offset:{1152*it}")
        if t == 0: ts(A, 1)
        A(f"""
        s_lshr_b32 s72, s69, 2
        s_lshl_b32 s72, s72, 10
        s_and_b32 s71, s69, 3
        s_lshl_b32 s71, s71, 8
        s_add_u32 s72, s72, s71
        s_add_u32 s69, s69, 1
        """)
        for it in range(10):
            A(f"ds_read_b64_tr_b16 {v(b+4*it,2)}, v5 offset:{1152*it}\nds_read_b64_tr_b16 {v(b+4*it+2,2)}, v5 offset:{1152*it+576}")
        for it in range(10):
            A(f"s_waitcnt lgkmcnt({min(15, 18-2*it)})")
            A(f"buffer_store_dwordx4 {v(b+4*it,4)}, v6, s[8:11], s72 offen{CFG['psc']}\ns_add_u32 s72, s72, {4*49152}")
    ts(A, 2)
    mk_tag(A)
    A(f"s_waitcnt vmcnt(0)\ns_barrier")
    publish(A, 24, 79, 9, 8)
    ts(A, 3)

def touch(A, k, dst, va, idle):
    base = (48*k) if idle else (48*CFG["nTA"] + 80*k - 48)
    A(f"""
    s_lshl_b32 s88, s{S_J}, 2
    s_add_u32 s88, s88, s{S_WAVE}
    s_add_u32 s88, s88, {base & 0xffffffff}
    s_lshl_b32 s88, s88, 13
    buffer_load_dword v{dst}, v{va}, s[8:11], s88 offen{SC}
    """)

def polln(A, n, va, r, cnt, preissued=False, slp=None):
    lab, done = A.label("poll"), A.label("pollok")
    def chk():
        o = "".join(f"v_xor_b32 v{r+q}, s{S_TAG}, v{r+q}\n" for q in range(n))
        o += f"v_or_b32 v{r}, v{r}, v{r+1}\n" + (f"v_or3_b32 v{r}, v{r}, v{r+2}, v{r+3}\n" if n == 4 else "")
        return o + f"v_cmp_ne_u32 vcc, 0, v{r}\ns_cbranch_vccz {done}"
    A(f"s_mov_b32 s{cnt}, {SPIN}")
    if preissued: A(chk())
    A(f"{lab}:\nbuffer_load_dwordx{n} {v(r,n)}, v{va}, s[24:27], 0 offen{SC}\ns_waitcnt vmcnt(0)")
    A(chk())
    spin_tail(A, lab, done, cnt, slp)
def poll4(A, va, r, cnt, preissued=False): polln(A, 4, va, r, cnt, preissued)
def poll2w(A, va, r, cnt): polln(A, 2, va, r, cnt)

def role_idle(A):
    if CFG["prio"]: A("s_setprio 3")
    p8_addr(A)
    u_task_issue(A)
    srd(A, 8, P_WS, WS_WD, WD_BYTES)
    srd(A, 24, P_WS, 0, FL_BYTES)
    A(f"""
    v_lshlrev_b32 v40, 7, v0
    v_min_u32 v41, 19, v0
    s_lshl_b32 s70, s{S_X}, 7
    s_add_u32 s70, s70, {F_A}
    v_lshl_add_u32 v41, v41, 2, s70
    v_min_u32 v42, 15, v0
    v_lshlrev_b32 v42, 2, v42
    v_add_u32 v42, {F_WD}, v42
    s_lshl_b32 s78, s69, 2
    s_add_u32 s78, s78, {F_U}
    s_waitcnt vmcnt(0)
    """)
    tsn(A, 'p')
    u_task_finish(A)
    mk_tag(A)
    A(f"s_waitcnt vmcnt(0)\ns_barrier")
    publish(A, 24, 78, 16, 61)
    if CFG["prio"]: A("s_setprio 0")
    tsn(A, 's')
    if "idle" in CFG["skip"]: A("s_branch L_done")
    if CFG["nTA"]:
        nw = A.label("nw")
        A(f"s_cmp_lg_u32 s{S_WAVE}, 0\ns_cbranch_scc1 {nw}")
        poll(A, 24, 16, 42, 72, slp=CFG["slpI"])
        A(f"{nw}:\ns_barrier")
        tsn(A, 'k')
        for k in range(CFG["nTA"]): touch(A, k, 237+k, 40, True)
    nw = A.label("nw")
    A(f"s_cmp_lg_u32 s{S_WAVE}, 0\ns_cbranch_scc1 {nw}")
    poll(A, 24, 16, 41 if CFG["waitT"] else 42, 72, slp=CFG["slpI"])
    A(f"{nw}:\ns_barrier")
    A("s_mov_b32 s0, 0")
    tsn(A, 'u')

C1 = -2.0 * LOG2E * 0.7978845608028654
C2 = C1 * 0.044715
def role_g1(A):
    split = CFG["split"]
    st = [sum(split[:i]) for i in range(5)]
    assert sum(split) == 32 and min(split) >= 2
    pack_c0 = sum(st[i] << (6*i) for i in range(5)); pack_nc = sum(split[i] << (6*i) for i in range(5))
    sline, sc0, snc, srot, sflag = 69, 68, 79, 72, 91
    AR, ACC0, BR = 96, 64, 32
    RS, RA, KBAR = 8, 6, 16
    SB = 80
    VW, VX0, VX1, VT0, VT1 = 28, 29, 30, 14, 15
    VTOUCH, VHINT, VZ = 31, 13, 1
    if CFG["prio"]: A("s_setprio 2")
    A(f"""
    s_mul_i32 s68, s{S_J}, 43
    s_lshr_b32 s68, s68, 8               ; slot = j/6
    s_mul_i32 s69, s68, 6
    s_sub_u32 s69, s{S_J}, s69           ; j%6
    s_lshl_b32 s71, s68, 2
    s_lshr_b32 s71, {sum(r << (4*i) for i, r in enumerate(CFG['rot']))}, s71
    s_and_b32 s71, s71, 15               ; rot[slot]
    s_mul_i32 s72, s69, {CFG['rotl']}
    s_lshr_b32 s72, s72, 2
    s_and_b32 s70, s{S_X}, 1
    s_mul_i32 s73, s70, {CFG['rotx']}
    s_add_u32 s71, s71, s73
    s_mul_i32 s73, s70, 5
    s_add_u32 s73, s73, s68
    s_lshl_b32 s{sflag}, s73, 7          ; (half*5+slot)*128
    s_lshr_b32 s73, s{S_X}, 1
    s_mul_i32 s73, s73, 6
    s_add_u32 s69, s69, s73              ; line
    s_lshl_b32 s73, s69, 2
    s_add_u32 s{sflag}, s{sflag}, s73
    s_add_u32 s{sflag}, s{sflag}, {F_H}
    s_mul_i32 s73, s68, 6
    s_lshr_b32 s79, {pack_nc}, s73
    s_and_b32 s79, s79, 63               ; nc
    s_lshr_b32 s68, {pack_c0}, s73
    s_and_b32 s68, s68, 63
    s_lshl_b32 s70, s70, 5
    s_add_u32 s68, s68, s70              ; c0
    s_add_u32 s72, s71, s72
    s_mul_i32 s70, s72, 205
    s_lshr_b32 s70, s70, 11
    s_mul_i32 s70, s70, 10
    s_sub_u32 s72, s72, s70              ; rot
    v_lshrrev_b32 v1, 3, v0                 ; lane>>3
    v_and_b32 v13, 7, v0                    ; chunk
    s_lshr_b32 s70, s{S_WAVE}, 1
    s_lshl_b32 s70, s70, 3
    v_add_u32 v16, s70, v1
    v_mul_u32_u24 v{VW}, 3072, v16
    v_bfe_u32 v17, v0, 4, 1
    s_and_b32 s70, s{S_WAVE}, 1
    s_lshl_b32 s70, s70, 2
    v_lshl_or_b32 v17, v17, 1, s70          ; swz
    v_xor_b32 v17, v17, v13
    v_lshl_add_u32 v{VW}, v17, 4, v{VW}
    s_lshl_b32 s71, s{sline}, 7
    v_add_u32 v{VW}, s71, v{VW}             ; W voffset
    s_lshl_b32 s70, s{S_WAVE}, 3
    v_add_u32 v{VX0}, s70, v1
    v_bfe_u32 v17, v{VX0}, 1, 3             ; swz
    v_xor_b32 v17, v17, v13
    v_mul_u32_u24 v{VX0}, 1280, v{VX0}
    v_lshl_add_u32 v{VX0}, v17, 4, v{VX0}
    s_mul_i32 s73, s{sc0}, 40960
    v_add_u32 v{VX0}, s73, v{VX0}
    s_lshl_b32 s74, s{S_WAVE}, 10           ; m0 base
    """)
    for b in range(10):
        A(f"s_lshl_b32 s{SB+b}, s72, 7\ns_add_u32 s72, s72, 1\ns_cmp_ge_u32 s72, 10\ns_cselect_b32 s72, 0, s72")
    A(f"""
    s_mov_b32 s90, 40960
    v_add_u32 v{VX1}, s90, v{VX0}
    s_sub_u32 s75, s{snc}, 2
    s_cmp_gt_i32 s75, 0
    s_cselect_b32 s76, s90, 0x8000000
    v_add_u32 v10, s76, v{VX1}
    s_and_b32 s70, s{S_WAVE}, 1
    s_lshl_b32 s70, s70, 4
    v_add_u32 v{VTOUCH}, s70, v0
    v_mul_u32_u24 v{VTOUCH}, 1280, v{VTOUCH}
    s_add_u32 s73, s73, s90
    v_add_u32 v{VTOUCH}, s73, v{VTOUCH}
    v_cmp_gt_u32 vcc, 16, v0
    v_mov_b32 v16, 0x8000000
    v_cndmask_b32 v{VTOUCH}, v16, v{VTOUCH}, vcc
    s_cmp_ge_u32 s{S_WAVE}, 2
    s_cselect_b32 s77, s{SB+1}, s{SB}
    v_bfe_u32 v16, v0, 4, 1                 ; mat
    v_lshrrev_b32 v17, 5, v0                ; h
    v_bfe_u32 v18, v0, 2, 2                 ; r
    v_and_b32 v19, 1, v0                    ; c&1
    v_bfe_u32 v20, v0, 1, 1                 ; c>>1
    s_lshl_b32 s70, s{S_WAVE}, 1
    v_or_b32 v19, s70, v19                  ; chunk
    v_and_b32 v21, 2, v18
    v_lshl_or_b32 v21, v16, 2, v21          ; swz
    v_xor_b32 v19, v19, v21
    v_lshl_add_u32 v22, v17, 1, v16         ; mat + 2h
    v_lshlrev_b32 v{VT0}, 10, v22
    v_lshl_add_u32 v{VT0}, v18, 7, v{VT0}
    v_lshl_add_u32 v{VT0}, v19, 4, v{VT0}
    v_lshl_add_u32 v{VT0}, v20, 3, v{VT0}
    v_add_u32 v{VT1}, s90, v{VT0}
    v_and_b32 v16, 31, v0                   ; n
    v_bfe_u32 v18, v0, 1, 3                 ; (n>>1)&7
    v_xor_b32 v18, v18, v17
    v_lshlrev_b32 v2, 7, v16
    v_lshl_add_u32 v2, v18, 4, v2
    v_xor_b32 v3, 32, v2
    v_xor_b32 v4, 64, v2
    v_xor_b32 v5, 96, v2
    v_add_u32 v6, s90, v2
    v_add_u32 v7, s90, v3
    v_add_u32 v8, s90, v4
    v_add_u32 v9, s90, v5
    v_bfe_u32 v18, v0, 4, 1                 ; n>>4
    v_mul_u32_u24 v11, 49152, v18
    s_and_b32 s70, s{S_WAVE}, 1
    s_lshl_b32 s70, s70, 1
    v_add_u32 v18, s70, v17                 ; 2(w&1)+h
    v_lshlrev_b32 v18, 4, v18
    v_and_or_b32 v18, v0, 15, v18
    v_lshl_add_u32 v11, v18, 4, v11
    s_lshl_b32 s78, s{sline}, 1
    s_lshr_b32 s70, s{S_WAVE}, 1
    s_add_u32 s78, s78, s70
    s_lshl_b32 s78, s78, 10
    s_mul_i32 s70, s{sc0}, 98304
    s_add_u32 s78, s78, s70
    v_mov_b32 v12, {fbits(C2)}
    v_mov_b32 v{VZ}, 0
    s_mov_b32 s10, {640*3072}
    s_mov_b32 s11, 0x20000
    s_mov_b32 s6, {X_BYTES}
    s_mov_b32 s7, 0x20000
    s_mul_i32 s73, s{SB}, 1536
    s_mov_b32 m0, s74
    """)
    kwait(A)
    A(f"""
    s_bitcmp1_b32 s{S_WAVE}, 0
    s_cselect_b32 s8, s{P_WU}, s{P_WG}
    s_cselect_b32 s9, s{P_WU+1}, s{P_WG+1}
    """)
    steps = []
    for b in range(10):
        stp = [("W", b, ks) for ks in range(4)] + [("X0", b, 0)]
        if b >= 4: stp.append(("X1", b-4, 0))
        steps.append(stp)
    steps.append([("X1", b, 0) for b in range(6, 10)])
    seq = [p for stp in steps for p in stp]
    assert len(seq) == 60
    page = {p: i % 20 for i, p in enumerate(seq)}
    for g in range(4):
        for kb in range(5): seq.append(("M", g, kb))
    adv_ops = ["s_sub_u32 s75, s75, 1", "s_cmp_gt_i32 s75, 0", "s_cselect_b32 s76, s90, 0x8000000", "v_add_u32 v10, s76, v10"]
    def piece(i):
        p = seq[i]; pg = i % 20
        pre = []
        if p[0] == "W":
            if p[2] == 0: pre.append(f"s_mul_i32 s73, s{SB+p[1]}, 1536")
            else: pre.append(f"s_add_u32 s73, s73, 49152")
            iss = [f"buffer_load_dwordx4 v{VW}, s[8:11], s73 offen{CFG['wmod']} lds"]
        elif p[0] in ("X0", "X1"):
            iss = [f"buffer_load_dwordx4 v{VX0 if p[0] == 'X0' else VX1}, s[4:7], s{SB+p[1]} offen lds"]
        else:
            iss = [f"buffer_load_dwordx4 v10, s[4:7], s{SB+5*(p[1]&1)+p[2]} offen lds"]
            if (p[1] & 1) and p[2] == 4: iss += adv_ops
        pre.append(f"s_add_u32 m0, s74, {pg*4096}")
        return pre, iss
    vm = []
    def wait_for(npieces):
        pos = vm.index(npieces - 1)
        return len(vm) - 1 - pos
    for i in range(20):
        pre, iss = piece(i)
        if i == 0: pre = []
        for o in pre + iss: A(o)
        vm.append(i)
        if i == 0:
            A(f"s_mov_b32 s4, s{P_U}\ns_mov_b32 s5, s{P_U+1}")
        if i == 5:
            srd(A, 16, P_WS, WS_H, H_BYTES); srd(A, 24, P_WS, 0, FL_BYTES)
        if i == 9 and CFG["xtouch"]:
            A(f"buffer_load_dword v16, v{VTOUCH}, s[4:7], s77 offen"); vm.append(None)
    def epi_ops(acc):
        ops = []
        T = 16
        for g0 in (0, 4):
            E = range(g0, g0+4)
            ops += [f"v_mul_f32 v{T+e-g0}, v{acc+e}, v{acc+e}" for e in E]
            ops += [f"v_mul_f32 v{acc+8+e}, v{acc+e}, v{acc+8+e}" for e in E]
            ops += [f"v_fmaak_f32 v{T+e-g0}, v12, v{T+e-g0}, {fbits(C1)}" for e in E]
            ops += [f"v_mul_f32 v{T+e-g0}, v{T+e-g0}, v{acc+e}" for e in E]
            ops += [f"v_exp_f32 v{T+e-g0}, v{T+e-g0}" for e in E]
            ops += [f"v_add_f32 v{T+e-g0}, 1.0, v{T+e-g0}" for e in E]
            ops += [f"v_rcp_f32 v{T+e-g0}, v{T+e-g0}" for e in E]
            ops += [f"v_mul_f32 v{acc+8+e}, v{acc+8+e}, v{T+e-g0}" for e in E]
            ops += [f"v_cvt_pk_bf16_f32 v{24+(g0>>1)+p}, v{acc+8+g0+2*p}, v{acc+8+g0+2*p+1}" for p in range(2)]
        ops.append(f"buffer_store_dwordx4 v[24:27], v11, s[16:19], s78 offen{CFG['hsc']}")
        ops.append("s_add_u32 s78, s78, 98304")
        return ops
    def wgt(o): return 2.0 if ("v_exp" in o or "v_rcp" in o) else (0.0 if o.startswith("s_") else 1.0)
    def bread_at(pg, ks, slot):
        return f"ds_read_b128 {v(BR+4*(slot%RS),4)}, v{2+4*(pg>=10)+ks} offset:{(pg%10)*4096}"
    mf = []
    for s_, stp in enumerate(steps):
        L0 = [(0, 4*b+ks, page[(n, b, 0)], ks) for (n, b, _) in stp if n == "X0" for ks in range(4)]
        L1 = [(1, 4*b+ks, page[(n, b, 0)], ks) for (n, b, _) in stp if n == "X1" for ks in range(4)]
        if L0 and L1: L = [x for pr in zip(L0, L1) for x in pr]
        else: L = L0 + L1
        mf.append(L)
    allm = [m for L in mf for m in L]
    def frag_read(j):
        if j < 80: return bread_at(allm[j][2], allm[j][3], j)
        jj = j - 80
        return bread_at(jj >> 2, jj & 3, j)
    nissued = 20; rd = 0; mi = 0
    E = 0
    started = [False, False]
    def emit(o):
        A(o)
        if o.startswith("buffer_store"): vm.append(None)
    def issue(i):
        pre, iss = piece(i); return pre, iss
    for s_ in range(12):
        if s_ <= 10:
            E += len(steps[s_])
            A(f"s_waitcnt vmcnt({wait_for(E)}) lgkmcnt(0)\ns_barrier")
            if s_ == 0: ts(A, 1)
            trs = []
            for (n, b, ks) in steps[s_]:
                if n == "W":
                    pg = page[(n, b, ks)]
                    for hh in range(2):
                        trs.append(f"ds_read_b64_tr_b16 {v(AR+16*b+4*ks+2*hh,2)}, v{VT1 if pg >= 10 else VT0} offset:{(pg%10)*4096 + hh*512}")
            ndma = len(steps[s_-1]) if s_ else 0
            rlim = sum(len(mf[i]) for i in range(s_+1))
        else:
            trs = []; ndma = 0
        ms = mf[s_-1] if s_ else []
        dm = list(range(nissued, nissued + ndma)); nissued += ndma
        last = (s_ == 11)
        ops = epi_ops(ACC0) if last else []
        tot = sum(wgt(o) for o in ops); oi = 0; done = 0.0
        def rd_more(limit, maxn):
            nonlocal rd
            n = 0
            while rd < limit and rd < mi + RS and n < maxn:
                A(frag_read(rd)); rd += 1; n += 1
        if not ms:
            rd_more(rlim, 99)
            for o in trs: A(o)
            continue
        if not last: rd_more(rlim, 99)
        for k, (ac, kidx, pg, ks) in enumerate(ms):
            acc = ACC0 + 16*ac
            pi = dm.pop(0) if dm else None
            pre, iss = piece(pi) if pi is not None else ([], [])
            for o in pre: A(o)
            if last: A(f"s_waitcnt lgkmcnt({min(15, rd - mi - 1)})")
            A(f"v_mfma_f32_32x32x16_bf16 {v(acc,16)}, {v(AR+4*kidx,4)}, {v(BR+4*(mi%RS),4)}, {v(acc,16) if started[ac] else 0}")
            started[ac] = True; mi += 1
            if last:
                if k == 12:
                    A(f"s_waitcnt vmcnt({wait_for(65)}) lgkmcnt(0)\ns_barrier")
                lim = 80 if k < 12 else 80 + RA
                rd_more(min(lim, mi + (RS if k < 12 else RA)), 3)
                if k >= 1:
                    tgt = tot * k / 14.0
                    while oi < len(ops) and done < tgt:
                        emit(ops[oi]); done += wgt(ops[oi]); oi += 1
            else:
                rd_more(rlim, 1)
                ntr = -(-len(trs) // (len(ms) - k))
                for _ in range(ntr): A(trs.pop(0))
            for o in iss: A(o)
            if pi is not None: vm.append(pi)
        while dm:
            pi = dm.pop(0)
            pre, iss = piece(pi)
            for o in pre + iss: A(o)
            vm.append(pi)
        while oi < len(ops):
            emit(ops[oi]); oi += 1
    assert rd == 80 + RA and mi == 80 and nissued == 76, (rd, mi, nissued)
    ts(A, 2)
    tails = [A.label("g1tail"), A.label("g1tail")]
    A(f"s_sub_u32 s{snc}, s{snc}, 2\ns_cmp_eq_u32 s{snc}, 0\ns_cbranch_scc1 {tails[1]}")
    top = A.label("g1top")
    A(f"{top}:")
    cnt = RA
    for P in range(2):
        acc = ACC0 + 16*P
        ops = epi_ops(ACC0 + 16*(P ^ 1))
        tot = sum(wgt(o) for o in ops); oi = 0; done = 0.0
        issued = RA
        for k in range(40):
            kk = k % 20; stg = k // 20
            gs = 2*P + stg
            pi = None
            if kk == KBAR: pi = 60 + 5*gs
            elif kk in (0, 4, 8, 12): pi = 60 + 5*((gs - 1) & 3) + 1 + kk // 4
            pre, iss = piece(pi) if pi is not None else ([], [])
            for o in pre: A(o)
            A(f"s_waitcnt lgkmcnt({issued - k - 1})")
            A(f"v_mfma_f32_32x32x16_bf16 {v(acc,16)}, {v(AR+4*k,4)}, {v(BR+4*((40*P+k)%RS),4)}, {v(acc,16) if k else 0}")
            if kk == KBAR:
                A("s_waitcnt vmcnt(10) lgkmcnt(0)\ns_barrier")
            lim = 20*(stg+1) if kk < KBAR else 99
            n = 0
            while issued < min(k + 1 + RA, lim) and n < 3:
                j = (40*P + issued) % 80
                A(bread_at(j >> 2, j & 3, cnt)); cnt += 1; issued += 1; n += 1
            for o in iss: A(o)
            if k >= 1:
                tgt = tot * k / 38.0
                while oi < len(ops) and done < tgt:
                    A(ops[oi]); done += wgt(ops[oi]); oi += 1
        while oi < len(ops):
            A(ops[oi]); oi += 1
        A(f"s_sub_u32 s{snc}, s{snc}, 1\ns_cmp_eq_u32 s{snc}, 0\ns_cbranch_scc1 {tails[P]}" if P == 0 else
          f"s_sub_u32 s{snc}, s{snc}, 1\ns_cmp_lg_u32 s{snc}, 0\ns_cbranch_scc1 {top}")
    end = A.label("g1end")
    for P in (1, 0):
        A(f"{tails[P]}:\ns_nop 8")
        for o in epi_ops(ACC0 + 16*P): A(o)
        if P == 1: A(f"s_branch {end}")
    A(f"{end}:\ns_waitcnt vmcnt(0) lgkmcnt(0)\ns_barrier")
    if "prep" not in CFG["skip"]:
        mk_tag(A)
        publish(A, 24, sflag, 31, VZ)
    if CFG["prio"]: A("s_setprio 0")
    ts(A, 3)

def cmul(r, x, y, t, conj_out=False, pk=True):
    if pk:
        i1 = f"v_pk_mul_f32 {v(t,2)}, {v(x,2)}, {v(y,2)} op_sel_hi:[0,1]"
        i2 = f"v_pk_fma_f32 {v(r,2)}, {v(x,2)}, {v(y,2)}, {v(t,2)} op_sel:[1,1,0] op_sel_hi:[1,0,1] neg_lo:[0,1,0]"
        if conj_out: i2 += " neg_hi:[0,1,1]"
        return [i1, i2]
    o = [f"v_mul_f32 v{t}, v{x+1}, v{y+1}", f"v_mul_f32 v{t+1}, v{x+1}, v{y}"]
    if r == x or r == y:
        assert r == x and r != y
        o += [f"v_fma_f32 v{r+1}, v{x}, v{y+1}, v{t+1}" if not conj_out else f"v_fma_f32 v{r+1}, -v{x}, v{y+1}, -v{t+1}",
              f"v_fma_f32 v{r}, v{x}, v{y}, -v{t}"]
    else:
        o += [f"v_fma_f32 v{r+1}, v{x}, v{y+1}, v{t+1}" if not conj_out else f"v_fma_f32 v{r+1}, -v{x}, v{y+1}, -v{t+1}",
              f"v_fma_f32 v{r}, v{x}, v{y}, -v{t}"]
    return o

def interleave(*streams):
    out = []; idx = [0]*len(streams); tot = sum(len(x) for x in streams)
    while len(out) < tot:
        best = min((idx[i]/len(x), i) for i, x in enumerate(streams) if idx[i] < len(x))[1]
        out.append(streams[best][idx[best]]); idx[best] += 1
    return out

def role_ssm(A):
    sq = 68
    TB = 5760
    HI0, LO0 = TB, TB + 21*272
    TBL, CS, MB = 5760, 1984, 9856
    C1_ = CS + 2
    WM = 216
    VF0, VF1, VG, VWA, VWB, VMW, VMR, VOUT = 243, 244, 245, 246, 249, 248, 250, 247
    PK = CFG["pk"]
    KA = 48
    FA, FB = 64, 96
    if CFG["prio"]: A(f"s_setprio {CFG['kprio']}")
    p8_addr(A)
    A(f"""
    s_lshl_b32 s70, s{sq}, 2
    s_add_u32 s70, s70, s{S_WAVE}           ; channel d
    s_mul_i32 s71, s70, 384
    s_lshl_b32 s72, s70, 1
    v_lshlrev_b32 v1, 2, v0
    v_lshlrev_b32 v2, 1, v0
    v_mov_b32 v3, 0
    s_mul_i32 s76, s{S_WAVE}, 20480
    s_mov_b32 m0, s76
    s_add_u32 s78, s76, {TBL}
    """)
    for d in (8, 12, 16, 20): A(f"s_mov_b32 s{d+2}, {640*384}\ns_mov_b32 s{d+3}, 0x20000")
    for d in (4, 32): A(f"s_mov_b32 s{d+2}, 1280\ns_mov_b32 s{d+3}, 0x20000")
    A("""
    v_and_b32 v45, 15, v0                   ; lane & 15
    v_lshrrev_b32 v40, 4, v0                ; g
    v_lshlrev_b32 v41, 3, v40               ; 8g
    v_sub_u32 v42, v41, v45
    v_add_u32 v42, 16, v42
    v_min_u32 v42, 31, v42
    """)
    BANDS = [(11, 13), (3, 5), (6, 10), (5, 11), (4, 12), (12, 13)]
    def band(q):
        lo, hi = BANDS[q]
        A(f"s_mov_b32 s79, {(((1 << (hi-lo+1)) - 1) << lo) << 16}\nv_lshrrev_b32 v43, v42, s79")
        for r in range(4):
            A(f"v_bfe_u32 v44, v43, {2*r}, 1\nv_bfe_u32 v46, v43, {2*r+1}, 1\nv_lshl_or_b32 v44, v46, 16, v44\nv_mul_u32_u24 v{WM+4*q+r}, 0x3f80, v44")
    for q in range(3): band(q)
    u_task_issue(A)
    for d, p in ((4, P_DT), (8, P_LA), (12, P_AI), (16, P_CR), (20, P_CI), (32, P_DS)):
        A(f"s_mov_b64 s[{d}:{d+1}], s[{p}:{p+1}]")
    pm = CFG.get("pmod", " nt")
    A(f"""
    buffer_load_ushort v16, v3, s[4:7], s72 offen
    buffer_load_dword v4, v1, s[8:11], s71 offen{pm}
    buffer_load_ushort v5, v2, s[8:11], s71 offen offset:256{pm}
    buffer_load_dword v6, v1, s[12:15], s71 offen{pm}
    buffer_load_ushort v7, v2, s[12:15], s71 offen offset:256{pm}
    buffer_load_dword v8, v1, s[16:19], s71 offen{pm}
    buffer_load_ushort v9, v2, s[16:19], s71 offen offset:256{pm}
    buffer_load_dword v10, v1, s[20:23], s71 offen{pm}
    buffer_load_ushort v11, v2, s[20:23], s71 offen offset:256{pm}
    buffer_load_ushort v17, v3, s[32:35], s72 offen
    """)
    for q in range(3, 6): band(q)
    A(f"""
    v_and_b32 v14, 31, v0
    v_mul_u32_u24 v14, 272, v14
    v_lshrrev_b32 v15, 5, v0
    v_lshl_add_u32 v14, v15, 4, v14
    v_add_u32 v241, s76, v14
    ; conv addresses
    v_and_b32 v43, 1, v0
    v_mul_u32_u24 v43, {C1_}, v43
    v_add_u32 v43, v43, v41
    v_lshlrev_b32 v44, 1, v45
    v_sub_u32 v43, v43, v44
    v_add_u32 v{VF0}, s78, v43
    v_add_u32 v{VF1}, 1024, v{VF0}
    v_mul_u32_u24 v43, 272, v45
    v_add3_u32 v{VG}, v43, v41, s76
    v_lshl_add_u32 v43, v45, 4, v41         ; 16k + 8g
    v_add_u32 v44, 624, v43
    v_lshrrev_b32 v46, 7, v44
    v_lshlrev_b32 v46, 4, v46
    v_lshl_add_u32 v44, v44, 1, v46
    v_add_u32 v{VWA}, s76, v44
    v_add_u32 v44, 616, v43
    v_lshrrev_b32 v46, 7, v44
    v_lshlrev_b32 v46, 4, v46
    v_lshl_add_u32 v44, v44, 1, v46
    v_add_u32 v{VWB}, s76, v44
    s_add_u32 s79, s76, {MB}
    v_mul_u32_u24 v43, 528, v45
    v_lshl_add_u32 v43, v40, 4, v43
    v_add_u32 v{VMW}, s79, v43
    v_lshrrev_b32 v43, 3, v45
    v_add_u32 v43, v43, v40
    v_lshlrev_b32 v43, 4, v43
    v_lshl_add_u32 v43, v45, 6, v43
    v_add_u32 v{VMR}, s79, v43
    v_and_b32 v41, 1, v40                   ; g&1
    v_lshrrev_b32 v42, 1, v40               ; g>>1
    v_lshlrev_b32 v{VOUT}, 5, v45
    v_lshl_add_u32 v{VOUT}, v41, 9, v{VOUT}
    v_lshl_add_u32 v{VOUT}, v42, 4, v{VOUT}
    v_lshlrev_b32 v252, 4, v0
    v_add_u32 v252, {F_U}, v252
    v_min_u32 v251, {NWDF//2 - 1}, v0
    v_lshlrev_b32 v251, 3, v251
    v_add_u32 v251, {F_WD}, v251
    v_lshlrev_b32 v255, 7, v0
    v_lshrrev_b32 v43, 2, v0
    v_mul_u32_u24 v253, {UT_CH}, v43
    v_and_b32 v44, 3, v0
    v_lshl_add_u32 v253, v44, 4, v253
    v_mul_u32_u24 v240, 20480, v44
    v_lshl_add_u32 v240, v43, 4, v240
    s_mul_i32 s79, s{S_WAVE}, 1088
    s_add_u32 s79, s79, 1360
    v_add_u32 v240, s79, v240
    v_mov_b32 v254, 0
    """)
    for q in range(64): A(f"v_mov_b32 v{FA+q}, 0")
    srd(A, 24, P_WS, 0, FL_BYTES)
    A("s_waitcnt vmcnt(10)")
    u_task_finish(A)
    for q in range(16): A(f"v_mov_b32 v{KA+q}, 0")
    w3 = A.label("w3")
    A(f"s_waitcnt vmcnt(4)\ns_cmp_lt_u32 s{S_WAVE}, 2\ns_cbranch_scc1 {w3}\ns_waitcnt vmcnt(3)\n{w3}:")
    mk_tag(A)
    tsn(A, 'p')
    if "kgen" in CFG["skip"]: A("s_branch L_done")
    srd(A, 4, P_WS, WS_UT, UT_BYTES)
    srd(A, 32, P_WS, WS_AT, AT_BYTES)
    srd(A, 8, P_WS, WS_WD, WD_BYTES)
    A(f"s_lshl_b32 s79, s69, 2\ns_add_u32 s79, s79, {F_U}")
    Z, C = 20, 26
    A(f"""
    v_lshlrev_b32 v16, 16, v16
    v_mul_f32 v16, {fbits(LOG2E)}, v16
    v_exp_f32 v16, v16
    v_lshlrev_b32 v{Z}, 16, v4
    v_and_b32 v{Z+2}, 0xffff0000, v4
    v_lshlrev_b32 v{Z+4}, 16, v5
    v_cvt_pk_bf16_f32 v16, v16, v16
    v_lshlrev_b32 v16, 16, v16              ; dt
    """)
    for t in range(3): A(f"v_mul_f32 v{Z+2*t}, {fbits(LOG2E)}, v{Z+2*t}")
    for t in range(3): A(f"v_exp_f32 v{Z+2*t}, v{Z+2*t}")
    A(f"""
    v_lshlrev_b32 v{Z+1}, 16, v6
    v_and_b32 v{Z+3}, 0xffff0000, v6
    v_lshlrev_b32 v{Z+5}, 16, v7
    v_cvt_pk_bf16_f32 v4, v{Z}, v{Z+2}
    v_cvt_pk_bf16_f32 v5, v{Z+4}, v{Z+4}
    v_lshlrev_b32 v{Z}, 16, v4
    v_and_b32 v{Z+2}, 0xffff0000, v4
    v_lshlrev_b32 v{Z+4}, 16, v5
    v_lshlrev_b32 v{C}, 16, v8
    v_and_b32 v{C+2}, 0xffff0000, v8
    v_lshlrev_b32 v{C+4}, 16, v9
    v_lshlrev_b32 v{C+1}, 16, v10
    v_and_b32 v{C+3}, 0xffff0000, v10
    v_lshlrev_b32 v{C+5}, 16, v11
    v_add_f32 v18, v16, v16                 ; 2 dt
    v_lshlrev_b32 v242, 16, v17             ; D skip (persist)
    """)
    for q in range(6): A(f"v_mul_f32 v{Z+q}, v16, v{Z+q}")
    for q in range(6): A(f"v_mul_f32 v{C+q}, v18, v{C+q}")
    for t in range(3):
        A(f"v_mul_f32 v{Z+2*t}, {fbits(-LOG2E)}, v{Z+2*t}\nv_mul_f32 v{Z+2*t+1}, {fbits(0.15915494309189535)}, v{Z+2*t+1}")
    E1, E256, E2, E4, E8 = 32, 34, 36, 38, 40
    def exps():
        return [
            f"v_exp_f32 v4, v{Z}", f"v_fract_f32 v5, v{Z+1}", f"v_mul_f32 v6, 0x43800000, v{Z}", f"v_mul_f32 v7, 0x43800000, v{Z+1}",
            f"v_cos_f32 v8, v5", f"v_sin_f32 v9, v5", f"v_fract_f32 v7, v7", f"v_exp_f32 v6, v6", f"v_cos_f32 v10, v7", f"v_sin_f32 v11, v7",
            f"v_mul_f32 v{E1}, v4, v8", f"v_mul_f32 v{E1+1}, v4, v9", f"v_mul_f32 v{E256}, v6, v10", f"v_mul_f32 v{E256+1}, v6, v11"]
    for o in exps(): A(o)
    A("v_mov_b32 v19, 0x3f80\ns_mov_b32 s77, 3")
    top = A.label("kgen")
    A(f"{top}:")
    tsn(A, 'a')
    pkc = [0, 0]
    def emit(val, row_off):
        z = 0 if row_off >= LO0 else 1
        r = 128 + 4*z + (pkc[z] % 4); pkc[z] += 1
        return [f"v_cvt_pk_bf16_f32 v{r}, v{val}, v{val+1}", f"ds_write_addtid_b32 v{r} offset:{row_off}"]
    cm = lambda r, x, y, t, conj_out=False: cmul(r, x, y, t, conj_out, PK)
    pre = cm(E2, E1, E1, 42) + [f"ds_write_addtid_b32 v19 offset:{LO0}"] + emit(C, HI0) + cm(E4, E2, E2, 42) + cm(E8, E4, E4, 42, True)
    L, LT = 136, 138
    lo = emit(E8, LO0 + 272) + cm(L, E8, E8, LT) + emit(L, LO0 + 2*272)
    for i in range(3, 32): lo += cm(L, L, E8, LT) + emit(L, LO0 + i*272)
    H, HT, G, GT = 140, 142, 144, 146
    hi = []
    src = C
    for j in range(1, 8):
        hi += cm(H, src, E1, HT) + emit(H, HI0 + j*272); src = H
    hi += cm(G, C, E256, GT) + emit(G, HI0 + 16*272)
    hi += cm(H, G, E2, HT) + emit(H, HI0 + 17*272)
    hi += cm(H, H, E2, HT) + emit(H, HI0 + 18*272)
    hi += cm(H, H, E2, HT) + emit(H, HI0 + 19*272)
    hi += cm(G, G, E256, GT) + emit(G, HI0 + 8*272)
    hi += cm(H, G, E4, HT) + emit(H, HI0 + 9*272)
    hi += cm(G, G, E256, GT) + emit(G, HI0 + 12*272)
    hi += cm(H, G, E4, HT) + emit(H, HI0 + 13*272)
    for row in (10, 11, 14, 15, 20):
        hi += cm(G, G, E256, GT) + emit(G, HI0 + row*272)
    st = pre + interleave(lo, hi)
    DL = CFG["wdelay"]
    out = []; pend = []
    for o in st:
        if o.startswith("ds_write"): pend.append([o, DL])
        else:
            out.append(o)
            for x in pend: x[1] -= 1
            while pend and pend[0][1] <= 0: out.append(pend.pop(0)[0])
    out += [x[0] for x in pend]
    kmf = lambda k: f"v_mfma_f32_32x32x16_bf16 {v(KA,16)}, {v(FA+4*k,4)}, {v(FB+4*k,4)}, {v(KA,16)}"
    nw = 0; k = 0
    for n, o in enumerate(out):
        if k < 8 and n >= CFG["kmf0"] + 14*k:
            A(f"s_waitcnt lgkmcnt({min(15, 14 - 2*k + nw)})\n" + kmf(k)); k += 1
        A(o)
        if o.startswith("ds_write"): nw += 1
    tsn(A, 'b')
    for q in range(4): A(f"v_mov_b32 v{Z+q}, v{Z+2+q}\nv_mov_b32 v{C+q}, v{C+2+q}")
    ex = exps()
    for k in range(8):
        A(f"ds_read_b128 {v(FA+4*k,4)}, v241 offset:{HI0 + 32*k}\nds_read_b128 {v(FB+4*k,4)}, v241 offset:{LO0 + 32*k}")
        for o in ex[2*k:2*k+2]: A(o)
    tsn(A, 'd')
    nopub = A.label("nopub")
    A(f"s_sub_u32 s77, s77, 1\ns_cmp_lg_u32 s77, {CFG['pubit']}\ns_cbranch_scc1 {nopub}\ns_waitcnt vmcnt(0)\ns_barrier")
    publish(A, 24, 79, 202, 254)
    tsn(A, 's')
    A(f"{nopub}:\ns_cmp_lg_u32 s77, 0\ns_cbranch_scc1 {top}")
    nw_ = A.label("nw")
    A(f"s_cmp_lg_u32 s{S_WAVE}, 0\ns_cbranch_scc1 {nw_}")
    A(f"buffer_load_dwordx4 v[196:199], v252, s[24:27], 0 offen{SC}")
    A(f"{nw_}:")
    side = f"""
    v_lshlrev_b32 v4, 4, v0
    v_add_u32 v5, s78, v4
    v_add_u32 v4, s76, v4
    v_mov_b32 v8, 0
    v_mov_b32 v9, 0
    v_mov_b32 v10, 0
    v_mov_b32 v11, 0
    ds_write_b128 v5, v[8:11]
    ds_write_b128 v5, v[8:11] offset:1024
    ds_write_b128 v5, v[8:11] offset:2048
    ds_write_b128 v5, v[8:11] offset:3072
    ds_write_b128 v4, v[8:11]
    s_mov_b64 exec, 0x1fffff
    ds_write_b128 v4, v[8:11] offset:1024
    s_mov_b64 exec, -1
    v_and_b32 v4, 31, v0                    ; i
    v_lshrrev_b32 v5, 5, v0                 ; h
    v_lshlrev_b32 v6, 4, v4
    v_sub_u32 v6, s78, v6                   ; base - 16 i   (seg1)
    v_lshlrev_b32 v7, 3, v5
    v_sub_u32 v7, v6, v7                    ; seg0
    v_add_u32 v12, {CS + 1084}, v7
    v_add_u32 v13, {C1_ + 566}, v6
    v_and_b32 v14, 30, v0                   ; 2 i2
    v_sub_u32 v14, s78, v14
    v_lshlrev_b32 v15, 5, v5
    v_sub_u32 v14, v14, v15                 ; base - 32h - 2 i2
    v_sub_u32 v15, v14, v15                 ; base - 64h - 2 i2
    v_and_b32 v18, 1, v0
    v_cmp_eq_u32 vcc, 1, v18
    v_mov_b32 v18, 1474
    v_mov_b32 v19, 1184
    v_mov_b32 v20, {1794 - 32}
    v_mov_b32 v24, 1280
    v_mov_b32 v25, 1376
    v_mov_b32 v26, {1632 - 32}
    v_cndmask_b32 v18, v18, v24, vcc
    v_cndmask_b32 v19, v19, v25, vcc
    v_cndmask_b32 v20, v20, v26, vcc
    v_add_u32 v18, v14, v18                 ; VA
    v_add_u32 v19, v14, v19                 ; VB
    v_add_u32 v20, v15, v20                 ; VC7
    v_add_u32 v21, 32, v20                  ; VC6
    s_add_u32 s72, s78, 1410
    s_add_u32 s73, s78, 1824
    v_mov_b32 v24, s72
    v_mov_b32 v25, s73
    v_cmp_eq_u32 vcc, 0, v0
    v_cndmask_b32 v18, v18, v24, vcc
    v_cndmask_b32 v21, v21, v25, vcc
    v_cndmask_b32 v22, v254, v242, vcc      ; skip term on lag 0
    """.strip().split("\n")
    side = [x.strip() for x in side]
    nw = 0; per = -(-len(side) // 8)
    for k in range(8):
        A(f"s_waitcnt lgkmcnt({min(15, 14 - 2*k + nw)})\n" + kmf(k))
        for o in side[per*k:per*(k+1)]:
            A(o)
            if o.startswith("ds_write"): nw += 1
    if CFG["prio"]: A(f"s_setprio {CFG['cprio']}")
    tsn(A, 'k')
    if "conv" in CFG["skip"]: A("s_branch L_done")
    A(f"""
    s_mul_i32 s72, s{S_WAVE}, {64*UT_CH}
    s_lshl_b32 s73, s{sq}, 6
    s_add_u32 s72, s72, s73
    s_mul_i32 s78, s70, {AT_ROW}
    """)
    nw_ = A.label("nw")
    A(f"s_cmp_lg_u32 s{S_WAVE}, 0\ns_cbranch_scc1 {nw_}\ns_waitcnt vmcnt(0)")
    poll4(A, 252, 196, 73, preissued=True)
    A(f"{nw_}:\ns_barrier")
    tsn(A, 'f')
    for j in range(4):
        A(f"buffer_load_dwordx4 {v(160+4*j,4)}, v253, s[4:7], s72 offen{SC}")
        if j < 3: A(f"s_add_u32 s72, s72, {16*UT_CH}")
    A(f"buffer_load_dwordx2 v[196:197], v251, s[24:27], 0 offen{SC}")
    a0, a1, a2, a3 = KA, KA+1, KA+2, KA+3
    b0, b1, b2, b3 = KA+8, KA+9, KA+10, KA+11
    A(f"""
    v_cmp_eq_u32 vcc, 0, v0
    v_add_f32 v{a0}, v{a0}, v22
    v_cndmask_b32 v24, v{KA+4}, v{KA+6}, vcc
    v_cvt_pk_bf16_f32 v64, v{b3}, v{b2}
    v_cvt_pk_bf16_f32 v65, v{b2}, v{b2}
    v_cvt_pk_bf16_f32 v66, v{b1}, v{b0}
    v_cvt_pk_bf16_f32 v67, v{b0}, v{b0}
    v_cvt_pk_bf16_f32 v68, v{b2}, v{b1}
    v_cvt_pk_bf16_f32 v69, v{KA+4}, v{KA+4}
    v_cvt_pk_bf16_f32 v70, v24, v{KA+5}
    v_cvt_pk_bf16_f32 v71, v{KA+6}, v{KA+7}
    v_cvt_pk_bf16_f32 v72, v{a3}, v{a2}
    v_cvt_pk_bf16_f32 v73, v{a1}, v{a0}
    v_cvt_pk_bf16_f32 v74, v{a2}, v{a1}
    s_mov_b32 exec_hi, 0
    ds_write2_b32 v6, v64, v65 offset0:141 offset1:142
    ds_write2_b32 v6, v66, v67 offset0:143 offset1:144
    ds_write_b16 v6, v64 offset:{C1_ + 564}
    ds_write2_b32 v13, v65, v68 offset0:0 offset1:1
    ds_write_b32 v6, v67 offset:{C1_ + 574}
    ds_write_b16 v6, v67 offset:{C1_ + 578}
    s_mov_b32 exec_lo, 1
    ds_write2_b32 v6, v69, v69 offset0:15 offset1:16
    ds_write_b16 v6, v69 offset:{C1_ + 60}
    ds_write_b32 v6, v69 offset:{C1_ + 62}
    ds_write_b16 v6, v69 offset:{C1_ + 66}
    s_mov_b32 exec_lo, 0
    s_mov_b32 exec_hi, 1
    ds_write_b16 v6, v67 offset:1666
    ds_write_b16 v6, v67 offset:{1666 + C1_}
    s_mov_b64 exec, -1
    ds_write_b16 v7, v72 offset:1082
    ds_write_b32 v7, v74 offset:1084
    ds_write_b16_d16_hi v7, v73 offset:1088
    ds_write2_b32 v12, v72, v73 offset0:0 offset1:1
    """)
    for c in (0, C1_):
        A(f"ds_write_b16 v18, v70 offset:{c}\nds_write_b16_d16_hi v19, v70 offset:{c}\nds_write_b16 v21, v71 offset:{c}\nds_write_b16_d16_hi v20, v71 offset:{c}")
    tsn(A, 'c')
    ACC, GR, FR, WIN, F2, FX = 16, 48, 130, 142, 190, 120
    XA, XB, XU, XF = 48, 72, 96, 112
    lds = []
    def lop(txt, tag=None):
        A(txt); lds.append(tag)
    def lwait(*tags):
        pos = max(max(i for i, t in enumerate(lds) if t == tg) for tg in tags)
        A(f"s_waitcnt lgkmcnt({min(15, len(lds) - 1 - pos)})")
    def fread(dst, Y, h, tag):
        off = 2*Y - 32*h; va = VF0
        if off > 1016: off -= 1024; va = VF1
        lop(f"ds_read2_b32 {v(dst,2)}, v{va} offset0:{off//4} offset1:{off//4+1}", tag)
    def gread(j):
        z = 640 + 16*j
        lop(f"ds_read_b64 {v(GR+2*(j+33),2)}, v{VG} offset:{2*z + 16*(z >> 7)}", ("G", j))
    def aread(s_):
        r = FR + 4*(s_ % 3)
        fread(r, 544, 2*s_+1, ("A", s_)); fread(r+2, 544, 2*s_, ("A", s_))
    aread(0); aread(1)
    for j in range(4):
        A(f"s_waitcnt vmcnt({4-j})"); lop(f"ds_write_b128 v240, {v(160+4*j,4)} offset:{j*272}")
    A(f"s_lshl_b32 s79, s{S_X}, 7\ns_lshl_b32 s72, s{S_J}, 2\ns_add_u32 s79, s79, s72\ns_add_u32 s0, s79, {F_A - 48}")
    A("s_waitcnt lgkmcnt(0)\ns_barrier")
    tsn(A, 'u')
    for j in range(-1, 8): gread(j)
    nTS = -(-(240 - 48*CFG["nTA"]) // 80)
    TD = [214, 215, 15]
    extra = []
    for d in (2, 3, 4):
        r = F2 + 8*(d-2)
        extra += [("F", r, 624, d, "F2"), ("F", r+2, 720, d, "F2"), ("F", r+4, 672, d, "F2"), ("F", r+6, 768, d, "F2")]
    for kt in range(6):
        extra += [("W", WIN+8*kt, VWA, kt), ("W", WIN+8*kt+4, VWB, kt)]
    m16 = lambda d, a, b, c: f"v_mfma_f32_16x16x32_bf16 {v(d,4)}, {v(a,4)}, {v(b,4)}, {c}"
    def warm():
        sk = A.label("nowarm")
        A(f"s_waitcnt vmcnt(0)\nv_xor_b32 v196, s{S_TAG}, v196\nv_xor_b32 v197, s{S_TAG}, v197\nv_or_b32 v196, v196, v197\nv_cmp_ne_u32 vcc, 0, v196\ns_mov_b32 s77, 0\ns_cbranch_vccnz {sk}")
        for k in range(nTS): touch(A, k, TD[k], 255, False)
        A(f"s_mov_b32 s77, 1\n{sk}:")
    for s_ in range(17):
        side = []
        if s_ + 2 <= 16: side.append(lambda s_=s_: aread(s_+2))
        if s_ + 1 <= 16: side += [lambda j=-2*s_-2: gread(j), lambda j=-2*s_-3: gread(j)]
        if s_ >= 3:
            for _ in range(2):
                if extra:
                    x = extra.pop(0)
                    if x[0] == "F": side.append(lambda x=x: fread(x[1], x[2], x[3], x[4]))
                    else: side.append(lambda x=x: lop(f"ds_read_b128 {v(x[1],4)}, v{x[2]} offset:{544*x[3]}", ("W", x[3])))
        for n, T in enumerate(range(8) if s_ == 0 else range(7, -1, -1)):
            j = T - 2*s_ - 1
            if s_ == 0: lwait(("A", 0), ("G", j+1))
            elif n == 0: lwait(("A", s_))
            elif T == 1: lwait(("G", -2*s_))
            elif T == 0: lwait(("G", -2*s_-1))
            A(m16(ACC+4*T, FR+4*(s_%3), GR+2*(j+33), v(ACC+4*T,4) if s_ else 0))
            if n >= 1 and side: side.pop(0)()
        assert not side
        if s_ == CFG["warmat"]: warm()
    assert not extra
    tsn(A, 'g')
    gen = []
    for kt in range(6):
        wa, wb = WIN+8*kt, WIN+8*kt+4
        gen += [(XA+4*kt, wa, 0, kt), (XA+4*kt+2, wa, 1, kt), (XB+4*kt, wa, 2, kt), (XB+4*kt+2, wb, 2, kt)]
        if kt < 4: gen += [(XU+4*kt, wa, 3, kt), (XU+4*kt+2, wb, 4, kt), (XF+2*kt, wa, 5, kt)]
    TMP = [FR, FR+4, FR+8, 124]
    side = [lambda T=T: lop(f"ds_write_b128 v{VMW}, {v(ACC+4*T,4)} offset:{64*T}") for T in range(7, -1, -1)]
    side += [lambda T=T: lop(f"ds_read_b128 {v(ACC+4*T,4)}, v{VMR} offset:{1056*T}", ("C", T)) for T in range(8)]
    side += [lambda: fread(FX, 976, 4, "FX")]
    F3 = WIN
    for d in (4, 5, 6, 7):
        side += [lambda d=d: fread(F3+4*(d-4), 880, d, ("F3", d)), lambda d=d: fread(F3+4*(d-4)+2, 960, d, ("F3", d))]
    LAG = 3
    def cv(q):
        t = TMP[q % 4]; dst = gen[q][0]
        A(f"v_cvt_pk_bf16_f32 v{dst}, v{t}, v{t+1}\nv_cvt_pk_bf16_f32 v{dst+1}, v{t+2}, v{t+3}")
    lwait(("W", 5))
    for q, (dst, w, b, kt) in enumerate(gen):
        A(m16(TMP[q % 4], w, WM+4*b, 0))
        if q >= LAG: cv(q - LAG)
        if q >= 2 and side and (q % 4 != 3 or len(side) > 34 - q): side.pop(0)()
    A(f"v_mov_b32 v{FX+2}, 0\nv_mov_b32 v{FX+3}, 0")
    for q in range(len(gen) - LAG, len(gen)): cv(q)
    assert not side
    main = []
    for T in range(2, 8):
        for d in (2, 3, 4):
            if T - d >= 0: main += [(T, XA+4*(T-d), F2+8*(d-2), None), (T, XB+4*(T-d), F2+8*(d-2)+4, None)]
        for d in (4, 5, 6, 7):
            if T - d >= 0: main.append((T, XU+4*(T-d), F3+4*(d-4), ("F3", d)))
        if T >= 4: main.append((T, XF+2*(T-4), FX, "FX"))
    def fin(p):
        o = WM + 4*p
        r = []
        for T in (2*p, 2*p+1):
            for h in range(2): r.append(f"v_cvt_pk_bf16_f32 v{o+2*(T&1)+h}, v{ACC+4*T+2*h}, v{ACC+4*T+2*h+1}")
        r += [f"v_permlane16_swap_b32 v{o}, v{o+2}", f"v_permlane16_swap_b32 v{o+1}, v{o+3}",
              f"buffer_store_dwordx4 {v(o,4)}, v{VOUT}, s[32:35], s78 offen offset:{1024*p}{SC}"]
        return r
    seen = set(); pend = []; hold = 0
    for q, (T, a, b, tag) in enumerate(main):
        tags = []
        if ("C", T) not in seen: tags.append(("C", T)); seen.add(("C", T))
        if tag and tag not in seen: tags.append(tag); seen.add(tag)
        if tags: lwait(*tags)
        if q == 0: pend += fin(0)
        if q and main[q-1][0] != T and T in (4, 6): pend += fin(T//2 - 1); hold = 4
        A(m16(ACC+4*T, a, b, v(ACC+4*T,4)))
        if hold: hold -= 1
        elif pend: A(pend.pop(0))
    for o in pend: A(o)
    for o in fin(3): A(o)
    tsn(A, 'e')
    if CFG["prio"]: A("s_setprio 0")
    ok = A.label("warmok")
    A(f"s_cmp_lg_u32 s77, 0\ns_cbranch_scc1 {ok}")
    poll2w(A, 251, 196, 72)
    for k in range(nTS): touch(A, k, TD[k], 255, False)
    A(f"{ok}:")

def role_g2(A):
    split = CFG["split"]
    st = [sum(split[:i]) for i in range(5)] + [32]
    slot_of = [max(s for s in range(5) if st[s] <= c) for c in range(32)]
    pk0 = [sum(slot_of[2*t] << (4*(t % 8)) for t in range(8*h, 8*h+8)) for h in range(2)]
    pk1 = [sum(slot_of[2*t+1] << (4*(t % 8)) for t in range(8*h, 8*h+8)) for h in range(2)]
    ACC, WR, HB, AT = 16, 96, 196, 244
    KO = 80
    STG, SDT = 68, 69
    VL, VK0, VK1, VF, VT, VAL, VAG, VTOK, VLW, VZ, VG = 1, 2, 3, 4, 5, 6, 7, 8, 9, 10, 14
    srd(A, 4, P_WS, WS_H, H_BYTES)
    srd(A, 8, P_WS, WS_WD, WD_BYTES)
    srd(A, 12, P_WS, WS_AT, AT_BYTES)
    srd(A, 16, P_WS, WS_G, G_BYTES)
    srd(A, 20, P_OUT, 0, X_BYTES)
    A(f"""
    s_lshr_b32 s70, s{S_J}, 3               ; r
    s_lshl_b32 s{STG}, s{S_X}, 2
    s_add_u32 s{STG}, s{STG}, s70           ; tg
    s_and_b32 s{SDT}, s{S_J}, 7             ; dt
    v_mov_b32 v{VZ}, 0
    v_lshlrev_b32 v{VL}, 4, v0
    s_mul_i32 s72, s70, 3
    s_mul_i32 s73, s{SDT}, 3
    s_lshr_b32 s73, s73, 1
    s_add_u32 s72, s72, s73
    s_cmp_ge_u32 s72, 12
    s_cselect_b32 s73, 12, 0
    s_sub_u32 s72, s72, s73                 ; rot
    """)
    for p in range(12):
        A(f"s_lshl_b32 s{KO+p}, s72, 10")
        if p < 11: A("s_add_u32 s72, s72, 1\ns_cmp_ge_u32 s72, 12\ns_cselect_b32 s72, 0, s72")
    A(f"""
    s_mul_i32 s70, s{S_WAVE}, 12288
    s_mul_i32 s71, s{STG}, {4*49152}
    s_add_u32 s71, s71, s70                 ; h base
    s_mul_i32 s72, s{SDT}, {5*49152}
    s_add_u32 s72, s72, s70
    """)
    for i in range(4):
        A(f"s_add_u32 s73, s{S_WAVE}, {1+i}\ns_and_b32 s73, s73, 3\ns_mul_i32 s73, s73, 49152\ns_add_u32 s{74+i}, s71, s73")
    WS_ = [32, 33, 34, 35, 78]
    for m in range(5): A(f"s_add_u32 s{WS_[m]}, s72, {m*49152}")
    A(f"""
    s_mul_i32 s79, s{S_WAVE}, 20480
    v_add_u32 v{VLW}, s79, v{VL}
    v_and_b32 v{VTOK}, 15, v0
    s_lshl_b32 s70, s{STG}, 6
    s_lshl_b32 s71, s{S_WAVE}, 4
    s_add_u32 s70, s70, s71
    v_add_u32 v{VTOK}, s70, v{VTOK}         ; token
    v_lshlrev_b32 v{VG}, 3, v{VTOK}
    """)
    kv = [0]
    def kaddr(p):
        r = (VK0, VK1)[kv[0] & 1]; kv[0] += 1
        A(f"v_add_u32 v{r}, s{KO+p}, v{VL}")
        return r
    def wload(dst, m, va): return f"buffer_load_dwordx4 {v(dst+4*m,4)}, v{va}, s[8:11], s{WS_[m]} offen{SC}"
    def prefetch(nb):
        plan = [(6, ACC), (7, ACC+20), (8, ACC+40), (9, HB), (0, ACC+60)] + [(1+q, WR+20*q) for q in range(5)]
        n = 0; wr = 0
        for (p, dst) in plan:
            va = kaddr(p)
            for m in range(5):
                if n >= nb: A(f"s_waitcnt vmcnt({nb-1})")
                if n == nb:
                    np_ = A.label("nopub")
                    A(f"s_barrier\ns_cmp_eq_u32 s0, 0\ns_cbranch_scc1 {np_}")
                    publish(A, 24, 0, VT, VZ)
                    A(f"{np_}:")
                while wr < 20 and wr <= n - nb:
                    q, mm = divmod(wr, 5)
                    A(f"ds_write_b128 v{VLW}, {v(plan[q][1]+4*mm,4)} offset:{wr*1024}"); wr += 1
                A(wload(dst, m, va)); n += 1
        assert wr == 20
    slow, jn = A.label("g2slow"), A.label("g2pj")
    A(f"s_cmp_lt_u32 s{S_J}, 12\ns_cbranch_scc1 {slow}")
    prefetch(CFG["nbB"])
    A(f"s_branch {jn}\n{slow}:")
    prefetch(CFG["nbA"])
    A(f"""{jn}:
    s_and_b32 s70, s{STG}, 7
    s_lshl_b32 s70, s70, 2
    s_bitcmp1_b32 s{STG}, 3
    s_mov_b32 s71, {pk0[0]}
    s_cmov_b32 s71, {pk0[1]}
    s_mov_b32 s72, {pk1[0]}
    s_cmov_b32 s72, {pk1[1]}
    s_lshr_b32 s71, s71, s70
    s_lshr_b32 s72, s72, s70
    s_and_b32 s71, s71, 15
    s_and_b32 s72, s72, 15
    s_lshr_b32 s70, s{STG}, 4
    s_mul_i32 s70, s70, 5
    s_add_u32 s71, s71, s70
    s_add_u32 s72, s72, s70
    s_lshl_b32 s71, s71, 7
    s_lshl_b32 s72, s72, 7
    v_mov_b32 v11, s71
    v_mov_b32 v12, s72
    v_cmp_gt_u32 vcc, 32, v0
    v_cndmask_b32 v11, v12, v11, vcc
    v_and_b32 v12, 31, v0
    v_lshl_add_u32 v{VF}, v12, 2, v11
    v_add_u32 v{VF}, {F_H}, v{VF}
    v_and_b32 v11, 7, v0
    s_lshl_b32 s71, s{STG}, 5
    s_add_u32 s71, s71, {F_U}
    v_lshl_add_u32 v11, v11, 2, s71
    v_cmp_gt_u32 vcc, 24, v12
    v_cndmask_b32 v{VF}, v11, v{VF}, vcc
    v_lshrrev_b32 v11, 3, v0
    v_and_b32 v12, 7, v0
    v_mul_u32_u24 v{VAL}, 160, v11
    v_lshl_add_u32 v{VAL}, v12, 4, v{VAL}
    s_add_u32 s70, s79, 15360
    v_add_u32 v{VAL}, s70, v{VAL}
    s_lshl_b32 s70, s{S_WAVE}, 3
    v_add_u32 v11, s70, v11
    v_mul_u32_u24 v{VAG}, {AT_ROW}, v11
    v_lshl_add_u32 v{VAG}, v12, 4, v{VAG}
    v_min_u32 v13, 19, v0
    s_lshl_b32 s70, s{SDT}, 7
    s_add_u32 s70, s70, {F_A}
    v_lshl_add_u32 v13, v13, 2, s70         ; a flags
    s_mul_i32 s70, s{SDT}, {80*AT_ROW}
    s_lshl_b32 s71, s{STG}, 7
    s_add_u32 s70, s70, s71
    s_add_u32 s71, s70, {32*AT_ROW}
    s_add_u32 s72, s70, {64*AT_ROW}
    s_cmp_ge_u32 s{S_WAVE}, 2
    s_cselect_b32 s72, 0x8000000, s72
    s_waitcnt vmcnt(0) lgkmcnt(0)
    """)
    tsn(A, 'P')
    nw = A.label("g2nw")
    A(f"s_cmp_lg_u32 s{S_WAVE}, 0\ns_cbranch_scc1 {nw}")
    poll(A, 24, VT, VF, 73, slp=CFG['slpH'])
    A(f"{nw}:\ns_barrier")
    tsn(A, 'H')
    vm = []
    def vmw(tag):
        pos = max(i for i, t in enumerate(vm) if t == tag)
        return len(vm) - 1 - pos
    def hloads(p):
        va = kaddr(p)
        return [(f"buffer_load_dwordx4 {v(HB+16*(p%3)+4*i,4)}, v{va}, s[4:7], s{74+i} offen{SC}", ("h", p)) for i in range(4)]
    def iss(x):
        A(x[0]); vm.append(x[1])
    for p in range(3):
        for x in hloads(p): iss(x)
    iss((f"buffer_load_dwordx2 v[{VG}:{VG+1}], v{VG}, s[16:19], 0 offen{SC}", "g"))
    iss((f"buffer_load_dword v{VT}, v13, s[24:27], 0 offen{SC}", "fa"))
    aslot = {0: ACC+60, 1: WR, 2: WR+20, 3: WR+40, 4: WR+60, 5: WR+80, 6: WR+40, 7: WR+60, 8: WR+80, 9: WR+40, 10: WR, 11: WR+20}
    def mfma(p, i, m):
        acc = v(ACC + (i*5+m)*4, 4)
        return f"v_mfma_f32_16x16x32_bf16 {acc}, {v(aslot[p]+4*m,4)}, {v(HB+16*(p%3)+4*i,4)}, {acc if p else 0}"
    lds = []
    for p in range(9):
        w = f"s_waitcnt vmcnt({vmw(('h', p))})"
        if p >= 6:
            pos = max(i for i, t in enumerate(lds) if t == p)
            w += f" lgkmcnt({len(lds) - 1 - pos})"
        A(w)
        side = {}
        def add(k, x): side.setdefault(k, []).append(x)
        va = None
        hl = None
        if p in (2, 3):
            q = p + 8
            add(0, ("K", q))
            for m in range(5): add(1 + 3*m, ("WL", q, m))
        if 4 <= p <= 7:
            q = p + 2
            for m in range(5): add(1 + 3*m, ("SR", q, m))
        if p == CFG.get("fap", 5): add(2, ("FA",))
        wva = None
        hq = []
        for i in range(4):
            for m in range(5):
                k = 5*i + m
                A(mfma(p, i, m))
                for x in side.get(k, []):
                    if x[0] == "K": wva = kaddr(x[1])
                    elif x[0] == "WL": iss((wload(aslot[x[1]], x[2], wva), ("w", x[1])))
                    elif x[0] == "SR":
                        A(f"ds_read_b128 {v(aslot[x[1]]+4*x[2],4)}, v{VLW} offset:{((x[1]-6)*5+x[2])*1024}"); lds.append(x[1])
                    elif x[0] == "FA":
                        A(f"s_waitcnt vmcnt({vmw('fa')})")
                        poll(A, 24, VT, 13, 73, preissued=True)
                        for r in range(3):
                            iss((f"buffer_load_dwordx4 {v(AT+4*r,4)}, v{VAG}, s[12:15], s{70+r} offen{SC}", "at"))
                if k == 3:
                    A(f"v_add_u32 v{VF}, s{KO+p+3}, v{VL}")
                if m == 4:
                    iss((f"buffer_load_dwordx4 {v(HB+16*(p%3)+4*i,4)}, v{VF}, s[4:7], s{74+i} offen{SC}", ("h", p+3)))
    pend = []
    A("s_waitcnt lgkmcnt(0)")
    for i in range(4):
        for p in (9, 10, 11):
            if i == 0:
                n = vmw(("h", p))
                if p >= 10: n = min(n, vmw(("w", p)))
                A(f"s_waitcnt vmcnt({n})")
            for m in range(5):
                A(mfma(p, i, m))
                k = 5*(p-9) + m
                if pend and k >= 2 and k % 2 == 0: A(pend.pop(0))
        assert not pend, pend
        if i < 3:
            pend = [f"ds_write_b128 v{VLW}, {v(ACC+(i*5+m)*4,4)} offset:{(i*5+m)*1024}" for m in range(5)]
            if i == 0: pend.append(f"ds_write_b128 v{VAL}, {v(AT,4)}")
            if i == 1: pend.append(f"ds_write_b128 v{VAL}, {v(AT+4,4)} offset:1280")
            if i == 2: pend.append(f"ds_write_b128 v{VAL}, {v(AT+8,4)} offset:2560")
    tsn(A, 'M')
    for d in range(1, 4):
        A(f"s_add_u32 s73, s{S_WAVE}, {d}\ns_and_b32 s73, s73, 3\ns_mul_i32 s73, s73, 20480\nv_add_u32 v{1+d}, s73, v{VL}")
    A(f"""
    v_lshrrev_b32 v11, 5, v0                ; g>>1
    v_mul_u32_u24 v11, 20480, v11
    v_bfe_u32 v12, v0, 2, 3                 ; 4(g&1)+r
    v_mul_u32_u24 v12, 160, v12
    v_add_u32 v11, v11, v12
    v_and_b32 v12, 3, v0
    v_lshl_add_u32 v11, v12, 3, v11
    s_lshl_b32 s73, s{S_WAVE}, 5
    s_add_u32 s73, s73, 15360
    v_add_u32 v11, s73, v11
    s_waitcnt lgkmcnt(0)
    s_barrier
    """)
    RD = WR
    for d in range(1, 4):
        for m in range(5):
            A(f"ds_read_b128 {v(RD+((d-1)*5+m)*4,4)}, v{1+d} offset:{((3-d)*5+m)*1024}")
    AF = HB
    for m in range(5):
        A(f"ds_read_b64_tr_b16 {v(AF+2*m,2)}, v11 offset:{(m&1)*40960 + (m>>1)*1280}")
    A(f"""
    v_mul_u32_u24 v5, 1280, v{VTOK}
    v_lshrrev_b32 v6, 4, v0                 ; g
    v_and_b32 v7, 1, v6
    v_lshrrev_b32 v9, 1, v6
    v_lshlrev_b32 v7, 5, v7
    v_lshl_add_u32 v7, v9, 4, v7
    v_add_u32 v7, v5, v7
    v_lshl_add_u32 v6, v6, 3, v5
    s_mul_i32 s73, s{SDT}, 160
    """)
    F = ACC + 60
    for d in range(3):
        A(f"s_waitcnt lgkmcnt({min(15, 15 - 5*d)})")
        for q in range(20): A(f"v_add_f32 v{F+q}, v{F+q}, v{RD+d*20+q}")
    A("s_waitcnt lgkmcnt(0)")
    G, OM = VG, VG+1
    O = HB + 16
    for m in range(5):
        for h in range(2):
            A(f"""
            v_lshlrev_b32 v12, 16, v{AF+2*m+h}
            v_and_b32 v13, 0xffff0000, v{AF+2*m+h}
            v_mul_f32 v{F+4*m+2*h}, v{OM}, v{F+4*m+2*h}
            v_mul_f32 v{F+4*m+2*h+1}, v{OM}, v{F+4*m+2*h+1}
            v_fmac_f32 v{F+4*m+2*h}, v{G}, v12
            v_fmac_f32 v{F+4*m+2*h+1}, v{G}, v13
            v_cvt_pk_bf16_f32 v{O+2*m+h}, v{F+4*m+2*h}, v{F+4*m+2*h+1}
            """)
        if m & 1:
            b = O + 2*(m-1); p = m >> 1
            A(f"v_permlane16_swap_b32 v{b}, v{b+2}\nv_permlane16_swap_b32 v{b+1}, v{b+3}")
            A(f"buffer_store_dwordx4 {v(b,4)}, v7, s[20:23], s73 offen offset:{64*p}")
    A(f"buffer_store_dwordx2 {v(O+8,2)}, v6, s[20:23], s73 offen offset:128")
    ne = A.label("noep")
    A(f"""
    s_lshl_b32 s70, s{S_X}, 2
    s_or_b32 s70, s70, s{S_WAVE}
    s_xor_b32 s71, s{S_J}, 31
    s_or_b32 s70, s70, s71
    s_cmp_lg_u32 s70, 0
    s_cbranch_scc1 {ne}
    v_min_u32 v2, 59, v0
    v_mul_u32_u24 v3, 43, v2
    v_lshrrev_b32 v3, 8, v3                 ; l/6
    v_mul_u32_u24 v4, 6, v3
    v_sub_u32 v2, v2, v4
    v_lshlrev_b32 v2, 4, v2
    v_lshl_add_u32 v2, v3, 7, v2
    v_add_u32 v2, {F_H}, v2
    """)
    poll4(A, 2, 16, 73)
    A(f"""
    v_mov_b32 v2, s{S_TAG}
    s_mov_b64 exec, 1
    buffer_store_dword v2, v{VZ}, s[24:27], 0 offen{SC}
    s_mov_b64 exec, -1
    {ne}:
    """)

def body(A):
    prologue(A, 512)
    skip = CFG["skip"]
    A(f"""
    s_cmp_{'lt' if CFG['swap'] else 'ge'}_u32 s2, 256
    s_cbranch_scc1 L_half1
    s_cmp_ge_u32 s{S_J}, 30
    s_cbranch_scc1 L_prepC
    """)
    if "g1" in skip: A("s_waitcnt lgkmcnt(0)\ns_branch L_done")
    role_g1(A)
    A(f"""
    s_branch L_done
    L_prepC:
    s_lshl_b32 s69, s{S_X}, 1
    s_add_u32 s69, s69, s{S_J}
    s_sub_u32 s69, s69, 30
    """)
    if "C" in skip: A("s_waitcnt lgkmcnt(0)\ns_branch L_done")
    role_prep_w(A)
    A(f"""
    s_branch L_done
    L_half1:
    {"s_waitcnt lgkmcnt(0)" if "half1" in skip else ""}
    {"s_branch L_done" if "half1" in skip else ""}
    s_and_b32 s69, s{S_X}, 1
    s_lshl_b32 s69, s69, 2
    s_lshr_b32 s70, s{S_X}, 1
    s_add_u32 s69, s69, s70
    s_lshl_b32 s69, s69, 5
    s_add_u32 s69, s69, s{S_J}           ; chunk8 = 128(x&1) + 32(x>>1) + j
    s_cmp_ge_u32 s{S_J}, 12
    s_cbranch_scc1 L_ssm
    """)
    role_idle(A)
    A(f"""
    s_branch L_g2
    L_ssm:
    s_mul_i32 s68, s{S_X}, 20
    s_add_u32 s68, s68, s{S_J}
    s_sub_u32 s68, s68, 12
    """)
    role_ssm(A)
    A("L_g2:")
    if "g2" in skip: A("s_branch L_done")
    role_g2(A)
    A("L_done:")
    if CFG["dbg"]: ts_end(A)
    A("L_exit:\ns_endpgm")

def build(verbose=False):
    kname = NAME + "_kernel"
    A = Asm(); A.kname = kname
    A(f".globl {kname}\n.p2align 8\n.type {kname},@function\n{kname}:")
    body(A)
    lines, nn = fix_hazards(A.lines, verbose)
    head = "; @launch grid=(512,1,1) block=(256,1,1) lds=81920\n.amdgcn_target \"amdgcn-amd-amdhsa--gfx950\"\n.text\n"
    desc = f""".section .rodata,"a"
.p2align 6
.amdhsa_kernel {kname}
  .amdhsa_next_free_vgpr 256
  .amdhsa_next_free_sgpr 102
  .amdhsa_accum_offset 256
  .amdhsa_group_segment_fixed_size 0
  .amdhsa_kernarg_size 120
  .amdhsa_user_sgpr_count 2
  .amdhsa_user_sgpr_kernarg_segment_ptr 1
  .amdhsa_system_sgpr_workgroup_id_x 1
.end_amdhsa_kernel
"""
    return head + "\n".join(lines) + "\n" + desc

if __name__ == "__main__":
    out = sys.argv[1] if len(sys.argv) > 1 else "f.s"
    src = build()
    open(out, "w").write(src)
    print("written", out, len(src))
```

```python
import sys, struct
sys.path.insert(0, "work")
from asmlib import *

NAME = "gated_mix__ssm_conv_s4d__geglu_ffn__prompt"
WS_H    = 0x100000
WS_AT   = 0x800000
WS_WD   = 0xC00000
WS_G    = 0xF00000
WS_UT   = 0x1000000
WS_TS   = 0x1400000
AT_ROW = 4224
UT_CH = 10368
H_BYTES, AT_BYTES, WD_BYTES, G_BYTES, UT_BYTES = 2048*1536*2, 640*AT_ROW, 1536*640*2, 2048*8, 256*UT_CH
X_BYTES = 2048*1280
FL_BYTES = 0x14000
F_EP, F_WD, F_U, F_H, F_A = 0x0, 0x1000, 0x2000, 0x6000, 0x6000 + 240*128
P_U, P_LA, P_AI, P_CR, P_CI, P_DT, P_DS, P_BX = 36, 38, 40, 42, 44, 46, 48, 50
P_WG, P_WU, P_WD, P_GW, P_OUT, P_DBG, P_WS = 52, 54, 56, 58, 60, 62, 64
S_WAVE, S_J, S_X, S_TAG = 66, 67, 3, 1
LOG2E = 1.4426950408889634
SC = " sc1"
SPIN = 20000
CFG = dict(split=(8, 8, 6, 5, 5), wmod=" nt", wdmod=" nt", rot=(0,2,4,6,8), rotx=1, rotl=7, gostep=10, slp=6, slpH=1, nbU=3, kprio=3, nbA=3, nbB=12,
           umod="", wdelay=2, kmf0=40, warmat=2, nTA=0, nT0=1, waitT=True, tpub=2, slpI=16, marks='kuePHM', swap=False, fpos=0.6, dlyI=0, dlyC=0, iprio=3, hi0=12, wsp=8, slpU=16, cprio=3, xtouch=True, prio=True, skip=(), dbg=False, pk=True, hsc=SC, psc=SC)
def fbits(x): return "0x%08x" % struct.unpack("<I", struct.pack("<f", x))[0]

def srd(A, dst, ptr, off, nbytes):
    if off:
        A(f"s_add_u32 s{dst}, s{ptr}, {off}\ns_addc_u32 s{dst+1}, s{ptr+1}, 0")
    else:
        A(f"s_mov_b32 s{dst}, s{ptr}\ns_mov_b32 s{dst+1}, s{ptr+1}")
    A(f"s_mov_b32 s{dst+2}, {nbytes}\ns_mov_b32 s{dst+3}, 0x20000")

TSR = 92
def ts(A, i):
    if CFG["dbg"]:
        A(f"s_waitcnt lgkmcnt(0)\ns_memtime vcc\ns_waitcnt lgkmcnt(0)\ns_mov_b32 s{TSR+2+i}, vcc_lo")
def tsn(A, n):
    if n in CFG['marks']: ts(A, 1 + CFG['marks'].index(n))
def kwait(A):
    A(f"s_waitcnt lgkmcnt(0)\ns_load_dword s{S_TAG}, s[{P_WS}:{P_WS+1}], {F_EP}")
    if CFG["dbg"]:
        for i in range(1, 8): A(f"s_mov_b32 s{TSR+2+i}, 0")
def ts_end(A):
    A("s_waitcnt vmcnt(0)")
    ts(A, 7)
    A(f"s_memrealtime vcc\ns_waitcnt lgkmcnt(0)\ns_mov_b32 s{TSR+1}, vcc_lo")
    srd(A, 4, P_WS, WS_TS, 0x100000)
    A(f"s_lshl_b32 s8, s2, 2\ns_add_u32 s8, s8, s{S_WAVE}\ns_lshl_b32 s8, s8, 6\nv_mov_b32 v1, 0")
    for i in range(10): A(f"v_mov_b32 v{2+i}, s{TSR+i}")
    A("s_getreg_b32 s9, hwreg(HW_REG_HW_ID)\ns_getreg_b32 s10, hwreg(HW_REG_XCC_ID)\nv_mov_b32 v12, s9\nv_mov_b32 v13, s10")
    A("s_mov_b64 exec, 1")
    for i in range(3): A(f"buffer_store_dwordx4 {v(2+4*i,4)}, v1, s[4:7], s8 offen offset:{16*i}")

def prologue(A, nwg):
    if CFG["dbg"]: A(f"s_memrealtime s[{TSR}:{TSR+1}]\ns_memtime s[{TSR+2}:{TSR+3}]")
    A(f"""
    s_load_dwordx16 s[36:51], s[0:1], 0
    s_load_dwordx8 s[52:59], s[0:1], 64
    s_load_dwordx4 s[60:63], s[0:1], 96
    s_load_dwordx2 s[64:65], s[0:1], 112
    s_cmp_ge_u32 s2, {nwg}
    s_cbranch_scc1 L_exit
    v_lshrrev_b32 v1, 6, v0
    v_and_b32 v0, 63, v0
    v_readfirstlane_b32 s{S_WAVE}, v1
    s_and_b32 s{S_X}, s2, 7
    s_bfe_u32 s{S_J}, s2, 0x50003
    """)

def spin_tail(A, lab, done, cnt, slp=None):
    slp = CFG["slp"] if slp is None else slp
    if slp: A(f"s_sleep {slp}")
    A(f"s_sub_u32 s{cnt}, s{cnt}, 1\ns_cbranch_scc0 {lab}\n{done}:")

def mk_tag(A):
    A(f"s_mul_i32 s{S_TAG}, s{S_TAG}, 0x9e3779b1\ns_add_u32 s{S_TAG}, s{S_TAG}, 0x7f4a7c15\ns_or_b32 s{S_TAG}, s{S_TAG}, 1")

def poll(A, sfl, vt, va, cnt, preissued=False, slp=None):
    lab, done = A.label("poll"), A.label("pollok")
    A(f"s_mov_b32 s{cnt}, {12000000 // (64*(CFG['slp'] if slp is None else slp) + 600)}")
    if preissued:
        A(f"v_cmp_ne_u32 vcc, s{S_TAG}, v{vt}\ns_cbranch_vccz {done}")
    A(f"""{lab}:
    buffer_load_dword v{vt}, v{va}, s[{sfl}:{sfl+3}], 0 offen{SC}
    s_waitcnt vmcnt(0)
    v_cmp_ne_u32 vcc, s{S_TAG}, v{vt}
    s_cbranch_vccz {done}
    """)
    spin_tail(A, lab, done, cnt, slp)

def publish(A, sfl, soff, vt, vz):
    lab = A.label("pub")
    A(f"""
    s_cmp_lg_u32 s{S_WAVE}, 0
    s_cbranch_scc1 {lab}
    v_mov_b32 v{vt}, s{S_TAG}
    s_mov_b64 exec, 1
    buffer_store_dword v{vt}, v{vz}, s[{sfl}:{sfl+3}], s{soff} offen{SC}
    s_mov_b64 exec, -1
    {lab}:
    """)

IMG = 2688
HALF = "s_mov_b32 exec_lo, 0xffff\ns_mov_b32 exec_hi, 0xffff"
def p8_addr(A):
    A(f"""
    v_lshrrev_b32 v61, 5, v0                ; row&1
    v_and_b32 v62, 31, v0
    v_lshlrev_b32 v62, 4, v62               ; piece*16
    v_mul_u32_u24 v56, 1280, v61
    v_add_u32 v56, v56, v62
    v_mul_u32_u24 v57, 1296, v61
    v_add_u32 v57, v57, v62
    s_mul_i32 s70, s{S_WAVE}, 20480
    v_add_u32 v57, s70, v57
    v_bfe_u32 v58, v0, 3, 1                 ; r>>1
    v_mul_u32_u24 v58, 20480, v58
    v_bfe_u32 v59, v0, 2, 1                 ; r&1
    v_mul_u32_u24 v59, 1296, v59
    v_add_u32 v58, v58, v59
    v_lshrrev_b32 v60, 4, v0                ; g
    v_lshl_add_u32 v58, v60, 5, v58
    v_and_b32 v59, 3, v0
    v_lshl_add_u32 v58, v59, 3, v58
    s_lshl_b32 s70, s{S_WAVE}, 7
    v_add_u32 v58, s70, v58
    v_mul_u32_u24 v60, 49152, v60
    v_and_b32 v59, 15, v0
    v_lshl_add_u32 v60, v59, 4, v60
    v_lshlrev_b32 v59, 4, v0
    s_lshl_b32 s70, s{S_WAVE}, 1
    v_add_u32 v63, s70, v61
    v_mov_b32 v61, 0
    """)
def p8_load(A, dst, sr, soff, mod, va=56):
    A(f"buffer_load_dwordx4 {v(dst,4)}, v{va}, s[{sr}:{sr+3}], {soff} offen{mod}")
    A(f"buffer_load_dwordx4 {v(dst+4,4)}, v{va}, s[{sr}:{sr+3}], {soff} offen offset:512{mod}")
    A(HALF)
    A(f"buffer_load_dwordx4 {v(dst+8,4)}, v{va}, s[{sr}:{sr+3}], {soff} offen offset:1024{mod}")
    A("s_mov_b64 exec, -1")
def p8_write(A, src, slot):
    A(f"ds_write_b128 v57, {v(src,4)} offset:{slot*IMG}\nds_write_b128 v57, {v(src+4,4)} offset:{slot*IMG+512}")
    A(HALF)
    A(f"ds_write_b128 v57, {v(src+8,4)} offset:{slot*IMG+1024}\ns_mov_b64 exec, -1")
def p8_out(A, dst, slot, sr, soff, va, step):
    for q in range(3):
        A(f"ds_read_b64_tr_b16 {v(dst+4*q,2)}, v58 offset:{slot*IMG+q*512}\nds_read_b64_tr_b16 {v(dst+4*q+2,2)}, v58 offset:{slot*IMG+q*512+40960}")
    sk = A.label("p8s")
    for q in range(3):
        if q == 2: A(f"s_cmp_ge_u32 s{S_WAVE}, 2\ns_cbranch_scc1 {sk}")
        A(f"s_waitcnt lgkmcnt({4-2*q})")
        if "pstore" not in CFG["skip"]: A(f"buffer_store_dwordx4 {v(dst+4*q,4)}, v{va}, s[{sr}:{sr+3}], s{soff} offen{CFG['psc']}")
        if q < 2: A(f"s_add_u32 s{soff}, s{soff}, {step}")
    A(f"{sk}:\ns_waitcnt lgkmcnt(0)")
def p8_gate(A, X, W, sr, soff, first=True):
    A("v_mov_b32 v52, 0")
    for j in range(12): A(f"v_dot2_f32_bf16 v52, v{X+j}, v{W+j}, v52")
    for sh in (8, 4, 2, 1):
        A(f"v_add_f32_dpp v52, v52, v52 row_ror:{sh} row_mask:0xf bank_mask:0xf")
    A(f"""
    v_add_f32_dpp v52, v52, v52 row_bcast:15 row_mask:0xa bank_mask:0xf
    v_cvt_pk_bf16_f32 v52, v52, v52
    v_lshlrev_b32 v52, 16, v52
    v_mul_f32 v52, {fbits(-LOG2E)}, v52
    v_exp_f32 v52, v52
    v_add_f32 v52, 1.0, v52
    v_rcp_f32 v52, v52
    v_cvt_pk_bf16_f32 v52, v52, v52
    v_lshlrev_b32 v54, 16, v52
    v_sub_f32 v52, 1.0, v54
    v_cvt_pk_bf16_f32 v52, v52, v52
    v_lshlrev_b32 v55, 16, v52
    {"v_lshlrev_b32 v63, 3, v63" if first else ""}
    s_mov_b32 exec_lo, 0x10000
    s_mov_b32 exec_hi, 0x10000
    buffer_store_dwordx2 v[54:55], v63, s[{sr}:{sr+3}], s{soff} offen{SC}
    s_mov_b64 exec, -1
    """)
NWDF = 16
PX, PW, PO = 160, 172, 184
def u_task_issue(A, first=None):
    A(f"""
    s_mul_i32 s88, s69, 10240
    s_mul_i32 s89, s{S_WAVE}, 2560
    s_add_u32 s88, s88, s89
    s_mov_b32 s82, {X_BYTES}
    s_mov_b32 s83, 0x20000
    s_mov_b32 s86, 1280
    s_mov_b32 s87, 0x20000
    """)
    for j in range(8, 12): A(f"v_mov_b32 v{PX+j}, 0\nv_mov_b32 v{PW+j}, 0")
    kwait(A)
    if first: first()
    A(f"s_mov_b64 s[80:81], s[{P_U}:{P_U+1}]\ns_mov_b64 s[84:85], s[{P_GW}:{P_GW+1}]")
    p8_load(A, PX, 80, "s88", CFG["umod"])
    p8_load(A, PW, 84, "0", "", va=62)
def u_task_finish(A):
    p8_write(A, PX, 0)
    srd(A, 80, P_WS, WS_UT, UT_BYTES)
    srd(A, 84, P_WS, WS_G, G_BYTES)
    A(f"""
    s_mul_i32 s88, s69, {UT_CH}
    s_lshl_b32 s89, s{S_WAVE}, 10
    s_add_u32 s88, s88, s89
    s_lshl_b32 s89, s69, 6
    s_waitcnt lgkmcnt(0)
    s_barrier
    """)
    tsn(A, 'x')
    p8_out(A, PO, 0, 80, 88, 59, 4096)
    tsn(A, 'y')
    p8_gate(A, PX, PW, 84, 89)
def role_prep_w(A):
    NC = 2
    A(f"""
    s_setprio 3
    s_lshl_b32 s79, s69, 7
    s_add_u32 s79, s79, {F_WD}
    s_mul_i32 s69, s69, {4*NC}
    s_mul_i32 s70, s{S_WAVE}, {NC}
    s_add_u32 s69, s69, s70
    s_mul_i32 s72, s69, 10240
    v_lshrrev_b32 v1, 3, v0
    v_and_b32 v2, 7, v0
    v_mul_u32_u24 v3, 1280, v1
    v_lshl_add_u32 v3, v2, 4, v3
    v_mul_u32_u24 v4, 144, v1
    v_lshl_add_u32 v4, v2, 4, v4
    s_mul_i32 s70, s{S_WAVE}, 20480
    v_add_u32 v4, s70, v4
    v_bfe_u32 v5, v0, 2, 2
    v_mul_u32_u24 v5, 144, v5
    v_lshrrev_b32 v6, 4, v0                 ; g
    v_lshl_add_u32 v5, v6, 5, v5
    v_and_b32 v7, 3, v0
    v_lshl_add_u32 v5, v7, 3, v5
    v_add_u32 v5, s70, v5
    v_mul_u32_u24 v6, 49152, v6
    v_and_b32 v7, 15, v0
    v_lshl_add_u32 v6, v7, 4, v6
    v_mov_b32 v8, 0
    s_mov_b32 s6, {WD_BYTES}
    s_mov_b32 s7, 0x20000
    """)
    kwait(A)
    if CFG["dlyC"]: A(f"s_sleep {CFG['dlyC']}")
    A(f"s_mov_b64 s[4:5], s[{P_WD}:{P_WD+1}]")
    for t in range(NC):
        for it in range(10):
            A(f"buffer_load_dwordx4 {v(16+40*t+4*it,4)}, v3, s[4:7], s72 offen offset:{128*it}{CFG['wdmod']}")
        if t < NC-1: A("s_add_u32 s72, s72, 10240")
    srd(A, 8, P_WS, WS_WD, WD_BYTES)
    srd(A, 24, P_WS, 0, FL_BYTES)
    A("s_waitcnt lgkmcnt(0)")
    for t in range(NC):
        b = 16 + 40*t
        for it in range(10):
            A(f"s_waitcnt vmcnt({10*NC-1-it})\nds_write_b128 v4, {v(b+4*it,4)} offset:{1152*it}")
        if t == 0: ts(A, 1)
        A(f"""
        s_lshr_b32 s72, s69, 2
        s_lshl_b32 s72, s72, 10
        s_and_b32 s71, s69, 3
        s_lshl_b32 s71, s71, 8
        s_add_u32 s72, s72, s71
        s_add_u32 s69, s69, 1
        """)
        for it in range(10):
            A(f"ds_read_b64_tr_b16 {v(b+4*it,2)}, v5 offset:{1152*it}\nds_read_b64_tr_b16 {v(b+4*it+2,2)}, v5 offset:{1152*it+576}")
        for it in range(10):
            A(f"s_waitcnt lgkmcnt({min(15, 18-2*it)})")
            A(f"buffer_store_dwordx4 {v(b+4*it,4)}, v6, s[8:11], s72 offen{CFG['psc']}\ns_add_u32 s72, s72, {4*49152}")
    ts(A, 2)
    mk_tag(A)
    A(f"s_waitcnt vmcnt(0)\ns_barrier")
    publish(A, 24, 79, 9, 8)
    ts(A, 3)
    if not CFG["skip"]:
        ne = A.label("noep")
        A(f"""
        s_sub_u32 s70, s79, {F_WD}
        s_or_b32 s70, s70, s{S_WAVE}
        s_cmp_lg_u32 s70, 0
        s_cbranch_scc1 {ne}
        s_setprio 0
        v_lshlrev_b32 v2, 7, v0
        v_add_u32 v2, {F_H}, v2
        s_mov_b32 s71, 7
        """)
        top = A.label("ep")
        A(f"{top}:\nv_min_u32 v3, {F_H + 399*128}, v2")
        poll(A, 24, 9, 3, 72, slp=32)
        A(f"""
        v_add_u32 v2, {64*128}, v2
        s_sub_u32 s71, s71, 1
        s_cmp_lg_u32 s71, 0
        s_cbranch_scc1 {top}
        v_mov_b32 v2, s{S_TAG}
        s_mov_b64 exec, 1
        buffer_store_dword v2, v8, s[24:27], 0 offen{SC}
        s_mov_b64 exec, -1
        {ne}:
        """)

def touch(A, k, dst, va, idle):
    base = (48*k) if idle else (48*CFG["nTA"] + 80*k - 48)
    A(f"""
    s_lshl_b32 s88, s{S_J}, 2
    s_add_u32 s88, s88, s{S_WAVE}
    s_add_u32 s88, s88, {base & 0xffffffff}
    s_lshl_b32 s88, s88, 13
    buffer_load_dword v{dst}, v{va}, s[8:11], s88 offen{SC}
    """)

def polln(A, n, va, r, cnt, preissued=False, slp=None):
    lab, done = A.label("poll"), A.label("pollok")
    def chk():
        o = "".join(f"v_xor_b32 v{r+q}, s{S_TAG}, v{r+q}\n" for q in range(n))
        o += f"v_or_b32 v{r}, v{r}, v{r+1}\n" + (f"v_or3_b32 v{r}, v{r}, v{r+2}, v{r+3}\n" if n == 4 else "")
        return o + f"v_cmp_ne_u32 vcc, 0, v{r}\ns_cbranch_vccz {done}"
    A(f"s_mov_b32 s{cnt}, {SPIN}")
    if preissued: A(chk())
    A(f"{lab}:\nbuffer_load_dwordx{n} {v(r,n)}, v{va}, s[24:27], 0 offen{SC}\ns_waitcnt vmcnt(0)")
    A(chk())
    spin_tail(A, lab, done, cnt, slp)
def poll4(A, va, r, cnt, preissued=False): polln(A, 4, va, r, cnt, preissued)
def poll2w(A, va, r, cnt): polln(A, 2, va, r, cnt)

def role_idle(A):
    if CFG["prio"]: A(f"s_setprio {CFG['iprio']}")
    p8_addr(A)
    QX, QW, QO = 64, 112, 128
    A(f"""
    s_mul_i32 s70, s{S_J}, 3
    s_lshl_b32 s71, s{S_J}, 1
    s_add_u32 s71, s71, 8
    s_cmp_lt_u32 s{S_J}, 8
    s_cselect_b32 s70, s70, s71
    s_add_u32 s69, s69, s70
    s_mul_i32 s89, s{S_WAVE}, 2560
    s_mul_i32 s88, s69, 10240
    s_add_u32 s88, s88, s89
    s_lshl_b32 s70, s{S_X}, 2
    s_add_u32 s70, s70, s{S_J}
    s_lshl_b32 s70, s70, 1
    s_add_u32 s68, s70, {128 - 16}
    s_mul_i32 s90, s68, 10240
    s_add_u32 s90, s90, s89
    s_mov_b32 s82, {X_BYTES}
    s_mov_b32 s83, 0x20000
    s_mov_b32 s86, 1280
    s_mov_b32 s87, 0x20000
    s_mov_b32 s6, {WD_BYTES}
    s_mov_b32 s7, 0x20000
    """)
    for j in range(8, 12):
        for q in range(3): A(f"v_mov_b32 v{QX+12*q+j}, 0")
        A(f"v_mov_b32 v{QW+j}, 0")
    kwait(A)
    if CFG["dlyI"]: A(f"s_sleep {CFG['dlyI']}")
    A(f"s_mov_b64 s[80:81], s[{P_U}:{P_U+1}]\ns_mov_b64 s[84:85], s[{P_GW}:{P_GW+1}]\ns_mov_b64 s[4:5], s[{P_WD}:{P_WD+1}]")
    tq, jn = A.label("typq"), A.label("idj")
    def common():
        srd(A, 8, P_WS, WS_WD, WD_BYTES)
        srd(A, 24, P_WS, 0, FL_BYTES)
        srd(A, 12, P_WS, WS_UT, UT_BYTES)
        srd(A, 16, P_WS, WS_G, G_BYTES)
        A(f"""
        v_lshlrev_b32 v40, 7, v0
        v_min_u32 v41, 19, v0
        s_mul_i32 s70, s{S_X}, {20*128}
        s_add_u32 s70, s70, {F_A}
        v_lshl_add_u32 v41, v41, 7, s70
        v_min_u32 v42, 15, v0
        v_lshlrev_b32 v42, 7, v42
        v_add_u32 v42, {F_WD}, v42
        s_lshr_b32 s78, s69, 5
        s_mul_i32 s78, s78, 12
        s_add_u32 s78, s78, s{S_J}
        s_lshl_b32 s78, s78, 7
        s_add_u32 s78, s78, {F_U}
        s_mul_i32 s88, s69, {UT_CH}
        s_lshl_b32 s89, s{S_WAVE}, 10
        s_add_u32 s88, s88, s89
        s_lshl_b32 s89, s69, 6
        s_lshr_b32 s90, s68, 2
        s_lshl_b32 s90, s90, 10
        s_and_b32 s70, s68, 3
        s_lshl_b32 s70, s70, 8
        s_add_u32 s90, s90, s70
        s_mul_i32 s70, s{S_WAVE}, {4*49152}
        s_add_u32 s90, s90, s70
        """)
    def prog(nu, nw):
        p8_load(A, QW, 84, "0", "", va=62)
        for q in range(nu):
            p8_load(A, QX+12*q, 80, "s88", CFG["umod"])
            if q < nu-1: A("s_add_u32 s88, s88, 10240")
        for q in range(nw):
            p8_load(A, QX+12*(nu+q), 4, "s90", CFG["wdmod"])
            if q < nw-1: A("s_add_u32 s90, s90, 10240")
        common()
        n = nu + nw
        for q in range(n):
            A(f"s_waitcnt vmcnt({3*(n-1-q)})")
            p8_write(A, QX+12*q, q)
        tsn(A, 'p')
        A("s_waitcnt lgkmcnt(0)\ns_barrier")
        for q in range(nu):
            A(f"s_add_u32 s91, s88, {q*UT_CH}")
            p8_out(A, QO+12*q, q, 12, 91, 59, 4096)
        for q in range(nw):
            A(f"s_add_u32 s91, s90, {q*256}")
            p8_out(A, QO+12*(nu+q), nu+q, 8, 91, 60, 16*49152)
        tsn(A, 'y')
        for q in range(nu):
            p8_gate(A, QX+12*q, QW, 16, 89, q == 0)
            A("s_add_u32 s89, s89, 64")
    A(f"s_cmp_ge_u32 s{S_J}, 8\ns_cbranch_scc1 {tq}")
    prog(3, 0)
    A(f"s_branch {jn}\n{tq}:")
    prog(2, 2)
    A(f"{jn}:")
    mk_tag(A)
    A("s_waitcnt vmcnt(0)\ns_barrier")
    publish(A, 24, 78, 16, 61)
    if CFG["prio"]: A("s_setprio 0")
    tsn(A, 's')
    if "idle" in CFG["skip"]: A("s_branch L_done")
    if CFG["nTA"]:
        nw = A.label("nw")
        A(f"s_cmp_lg_u32 s{S_WAVE}, 0\ns_cbranch_scc1 {nw}")
        poll(A, 24, 16, 42, 72, slp=CFG["slpI"])
        A(f"{nw}:\ns_barrier")
        tsn(A, 'k')
        for k in range(CFG["nTA"]): touch(A, k, 237+k, 40, True)
    nw = A.label("nw")
    A(f"s_cmp_lg_u32 s{S_WAVE}, 0\ns_cbranch_scc1 {nw}")
    poll(A, 24, 16, 41 if CFG["waitT"] else 42, 72, slp=CFG["slpI"])
    A(f"{nw}:\ns_barrier")
    A("s_mov_b32 s0, 0")
    tsn(A, 'u')

C1 = -2.0 * LOG2E * 0.7978845608028654
C2 = C1 * 0.044715
def role_g1(A0):
    def A(x):
        for l in x.split("\n"):
            t = l.strip()
            if "g1m" in CFG["skip"] and t.startswith("v_mfma"): l = "s_nop 7\ns_nop 7\ns_nop 7\ns_nop 5"
            if "g1r" in CFG["skip"] and t.startswith("ds_read"): l = "s_nop 0"
            A0(l)
    A.label = A0.label
    split = CFG["split"]
    st = [sum(split[:i]) for i in range(5)]
    assert sum(split) == 32 and min(split) >= 2
    pack_c0 = sum(st[i] << (6*i) for i in range(5)); pack_nc = sum(split[i] << (6*i) for i in range(5))
    sline, sc0, snc, srot, sflag = 69, 68, 79, 72, 91
    AR, ACC0, BR = 96, 64, 32
    RS, RA, KBAR = 8, 6, 16
    SB = 80
    VW, VX0, VX1, VT0, VT1 = 28, 29, 30, 14, 15
    VTOUCH, VHINT, VZ = 31, 13, 1
    if CFG["prio"]: A("s_setprio 2")
    A(f"""
    s_mul_i32 s68, s{S_J}, 43
    s_lshr_b32 s68, s68, 8               ; slot = j/6
    s_mul_i32 s69, s68, 6
    s_sub_u32 s69, s{S_J}, s69           ; j%6
    s_lshl_b32 s71, s68, 2
    s_lshr_b32 s71, {sum(r << (4*i) for i, r in enumerate(CFG['rot']))}, s71
    s_and_b32 s71, s71, 15               ; rot[slot]
    s_mul_i32 s72, s69, {CFG['rotl']}
    s_lshr_b32 s72, s72, 2
    s_and_b32 s70, s{S_X}, 1
    s_mul_i32 s73, s70, {CFG['rotx']}
    s_add_u32 s71, s71, s73
    s_mul_i32 s73, s70, 5
    s_add_u32 s73, s73, s68
    s_mul_i32 s{sflag}, s73, {24*128}
    s_lshr_b32 s73, s{S_X}, 1
    s_mul_i32 s73, s73, 6
    s_add_u32 s69, s69, s73              ; line
    s_lshl_b32 s73, s69, 7
    s_add_u32 s{sflag}, s{sflag}, s73
    s_add_u32 s{sflag}, s{sflag}, {F_H}
    s_mul_i32 s73, s68, 6
    s_lshr_b32 s79, {pack_nc}, s73
    s_and_b32 s79, s79, 63               ; nc
    s_lshr_b32 s68, {pack_c0}, s73
    s_and_b32 s68, s68, 63
    s_lshl_b32 s70, s70, 5
    s_add_u32 s68, s68, s70              ; c0
    s_add_u32 s72, s71, s72
    s_mul_i32 s70, s72, 205
    s_lshr_b32 s70, s70, 11
    s_mul_i32 s70, s70, 10
    s_sub_u32 s72, s72, s70              ; rot
    v_lshrrev_b32 v1, 3, v0                 ; lane>>3
    v_and_b32 v13, 7, v0                    ; chunk
    s_lshr_b32 s70, s{S_WAVE}, 1
    s_lshl_b32 s70, s70, 3
    v_add_u32 v16, s70, v1
    v_mul_u32_u24 v{VW}, 3072, v16
    v_bfe_u32 v17, v0, 4, 1
    s_and_b32 s70, s{S_WAVE}, 1
    s_lshl_b32 s70, s70, 2
    v_lshl_or_b32 v17, v17, 1, s70          ; swz
    v_xor_b32 v17, v17, v13
    v_lshl_add_u32 v{VW}, v17, 4, v{VW}
    s_lshl_b32 s71, s{sline}, 7
    v_add_u32 v{VW}, s71, v{VW}             ; W voffset
    s_lshl_b32 s70, s{S_WAVE}, 3
    v_add_u32 v{VX0}, s70, v1
    v_bfe_u32 v17, v{VX0}, 1, 3             ; swz
    v_xor_b32 v17, v17, v13
    v_mul_u32_u24 v{VX0}, 1280, v{VX0}
    v_lshl_add_u32 v{VX0}, v17, 4, v{VX0}
    s_mul_i32 s73, s{sc0}, 40960
    v_add_u32 v{VX0}, s73, v{VX0}
    s_lshl_b32 s74, s{S_WAVE}, 10           ; m0 base
    """)
    for b in range(10):
        A(f"s_lshl_b32 s{SB+b}, s72, 7\ns_add_u32 s72, s72, 1\ns_cmp_ge_u32 s72, 10\ns_cselect_b32 s72, 0, s72")
    A(f"""
    s_mov_b32 s90, 40960
    v_add_u32 v{VX1}, s90, v{VX0}
    s_sub_u32 s75, s{snc}, 2
    s_cmp_gt_i32 s75, 0
    s_cselect_b32 s76, s90, 0x8000000
    v_add_u32 v10, s76, v{VX1}
    s_and_b32 s70, s{S_WAVE}, 1
    s_lshl_b32 s70, s70, 4
    v_add_u32 v{VTOUCH}, s70, v0
    v_mul_u32_u24 v{VTOUCH}, 1280, v{VTOUCH}
    s_add_u32 s73, s73, s90
    v_add_u32 v{VTOUCH}, s73, v{VTOUCH}
    v_cmp_gt_u32 vcc, 16, v0
    v_mov_b32 v16, 0x8000000
    v_cndmask_b32 v{VTOUCH}, v16, v{VTOUCH}, vcc
    s_cmp_ge_u32 s{S_WAVE}, 2
    s_cselect_b32 s77, s{SB+1}, s{SB}
    v_bfe_u32 v16, v0, 4, 1                 ; mat
    v_lshrrev_b32 v17, 5, v0                ; h
    v_bfe_u32 v18, v0, 2, 2                 ; r
    v_and_b32 v19, 1, v0                    ; c&1
    v_bfe_u32 v20, v0, 1, 1                 ; c>>1
    s_lshl_b32 s70, s{S_WAVE}, 1
    v_or_b32 v19, s70, v19                  ; chunk
    v_and_b32 v21, 2, v18
    v_lshl_or_b32 v21, v16, 2, v21          ; swz
    v_xor_b32 v19, v19, v21
    v_lshl_add_u32 v22, v17, 1, v16         ; mat + 2h
    v_lshlrev_b32 v{VT0}, 10, v22
    v_lshl_add_u32 v{VT0}, v18, 7, v{VT0}
    v_lshl_add_u32 v{VT0}, v19, 4, v{VT0}
    v_lshl_add_u32 v{VT0}, v20, 3, v{VT0}
    v_add_u32 v{VT1}, s90, v{VT0}
    v_and_b32 v16, 31, v0                   ; n
    v_bfe_u32 v18, v0, 1, 3                 ; (n>>1)&7
    v_xor_b32 v18, v18, v17
    v_lshlrev_b32 v2, 7, v16
    v_lshl_add_u32 v2, v18, 4, v2
    v_xor_b32 v3, 32, v2
    v_xor_b32 v4, 64, v2
    v_xor_b32 v5, 96, v2
    v_add_u32 v6, s90, v2
    v_add_u32 v7, s90, v3
    v_add_u32 v8, s90, v4
    v_add_u32 v9, s90, v5
    v_bfe_u32 v18, v0, 4, 1                 ; n>>4
    v_mul_u32_u24 v11, 49152, v18
    s_and_b32 s70, s{S_WAVE}, 1
    s_lshl_b32 s70, s70, 1
    v_add_u32 v18, s70, v17                 ; 2(w&1)+h
    v_lshlrev_b32 v18, 4, v18
    v_and_or_b32 v18, v0, 15, v18
    v_lshl_add_u32 v11, v18, 4, v11
    s_lshl_b32 s78, s{sline}, 1
    s_lshr_b32 s70, s{S_WAVE}, 1
    s_add_u32 s78, s78, s70
    s_lshl_b32 s78, s78, 10
    s_mul_i32 s70, s{sc0}, 98304
    s_add_u32 s78, s78, s70
    v_mov_b32 v12, {fbits(C2)}
    v_mov_b32 v{VZ}, 0
    s_mov_b32 s10, {640*3072}
    s_mov_b32 s11, 0x20000
    s_mov_b32 s6, {X_BYTES}
    s_mov_b32 s7, 0x20000
    s_mul_i32 s73, s{SB}, 1536
    s_mov_b32 m0, s74
    """)
    kwait(A)
    A(f"""
    s_bitcmp1_b32 s{S_WAVE}, 0
    s_cselect_b32 s8, s{P_WU}, s{P_WG}
    s_cselect_b32 s9, s{P_WU+1}, s{P_WG+1}
    """)
    steps = []
    for b in range(10):
        stp = [("W", b, ks) for ks in range(4)] + [("X0", b, 0)]
        if b >= 4: stp.append(("X1", b-4, 0))
        steps.append(stp)
    steps.append([("X1", b, 0) for b in range(6, 10)])
    seq = [p for stp in steps for p in stp]
    assert len(seq) == 60
    page = {p: i % 20 for i, p in enumerate(seq)}
    for g in range(4):
        for kb in range(5): seq.append(("M", g, kb))
    adv_ops = ["s_sub_u32 s75, s75, 1", "s_cmp_gt_i32 s75, 0", "s_cselect_b32 s76, s90, 0x8000000", "v_add_u32 v10, s76, v10"]
    def piece(i):
        p = seq[i]; pg = i % 20
        pre = []
        if p[0] == "W":
            if p[2] == 0: pre.append(f"s_mul_i32 s73, s{SB+p[1]}, 1536")
            else: pre.append(f"s_add_u32 s73, s73, 49152")
            iss = [f"buffer_load_dwordx4 v{VW}, s[8:11], s73 offen{CFG['wmod']} lds"]
        elif p[0] in ("X0", "X1"):
            iss = [f"buffer_load_dwordx4 v{VX0 if p[0] == 'X0' else VX1}, s[4:7], s{SB+p[1]} offen lds"]
        else:
            iss = [f"buffer_load_dwordx4 v10, s[4:7], s{SB+5*(p[1]&1)+p[2]} offen lds"]
            if (p[1] & 1) and p[2] == 4: iss += adv_ops
        pre.append(f"s_add_u32 m0, s74, {pg*4096}")
        return pre, iss
    vm = []
    def wait_for(npieces):
        pos = vm.index(npieces - 1)
        return len(vm) - 1 - pos
    for i in range(20):
        pre, iss = piece(i)
        if i == 0: pre = []
        for o in pre + iss: A(o)
        vm.append(i)
        if i == 0:
            A(f"s_mov_b32 s4, s{P_U}\ns_mov_b32 s5, s{P_U+1}")
        if i == 5:
            srd(A, 16, P_WS, WS_H, H_BYTES); srd(A, 24, P_WS, 0, FL_BYTES)
        if i == 9 and CFG["xtouch"]:
            A(f"buffer_load_dword v16, v{VTOUCH}, s[4:7], s77 offen"); vm.append(None)
    def epi_ops(acc):
        ops = []
        T = 16
        for g0 in (0, 4):
            E = range(g0, g0+4)
            ops += [f"v_mul_f32 v{T+e-g0}, v{acc+e}, v{acc+e}" for e in E]
            ops += [f"v_mul_f32 v{acc+8+e}, v{acc+e}, v{acc+8+e}" for e in E]
            ops += [f"v_fmaak_f32 v{T+e-g0}, v12, v{T+e-g0}, {fbits(C1)}" for e in E]
            ops += [f"v_mul_f32 v{T+e-g0}, v{T+e-g0}, v{acc+e}" for e in E]
            ops += [f"v_exp_f32 v{T+e-g0}, v{T+e-g0}" for e in E]
            ops += [f"v_add_f32 v{T+e-g0}, 1.0, v{T+e-g0}" for e in E]
            ops += [f"v_rcp_f32 v{T+e-g0}, v{T+e-g0}" for e in E]
            ops += [f"v_mul_f32 v{acc+8+e}, v{acc+8+e}, v{T+e-g0}" for e in E]
            ops += [f"v_cvt_pk_bf16_f32 v{24+(g0>>1)+p}, v{acc+8+g0+2*p}, v{acc+8+g0+2*p+1}" for p in range(2)]
        ops.append(f"buffer_store_dwordx4 v[24:27], v11, s[16:19], s78 offen{CFG['hsc']}")
        ops.append("s_add_u32 s78, s78, 98304")
        return ops
    def wgt(o): return 2.0 if ("v_exp" in o or "v_rcp" in o) else (0.0 if o.startswith("s_") else 1.0)
    def bread_at(pg, ks, slot):
        return f"ds_read_b128 {v(BR+4*(slot%RS),4)}, v{2+4*(pg>=10)+ks} offset:{(pg%10)*4096}"
    mf = []
    for s_, stp in enumerate(steps):
        L0 = [(0, 4*b+ks, page[(n, b, 0)], ks) for (n, b, _) in stp if n == "X0" for ks in range(4)]
        L1 = [(1, 4*b+ks, page[(n, b, 0)], ks) for (n, b, _) in stp if n == "X1" for ks in range(4)]
        if L0 and L1: L = [x for pr in zip(L0, L1) for x in pr]
        else: L = L0 + L1
        mf.append(L)
    allm = [m for L in mf for m in L]
    def frag_read(j):
        if j < 80: return bread_at(allm[j][2], allm[j][3], j)
        jj = j - 80
        return bread_at(jj >> 2, jj & 3, j)
    nissued = 20; rd = 0; mi = 0
    E = 0
    started = [False, False]
    def emit(o):
        A(o)
        if o.startswith("buffer_store"): vm.append(None)
    def issue(i):
        pre, iss = piece(i); return pre, iss
    for s_ in range(12):
        if s_ <= 10:
            E += len(steps[s_])
            A(f"s_waitcnt vmcnt({wait_for(E)}) lgkmcnt(0)\ns_barrier")
            if s_ == 0: ts(A, 1)
            trs = []
            for (n, b, ks) in steps[s_]:
                if n == "W":
                    pg = page[(n, b, ks)]
                    for hh in range(2):
                        trs.append(f"ds_read_b64_tr_b16 {v(AR+16*b+4*ks+2*hh,2)}, v{VT1 if pg >= 10 else VT0} offset:{(pg%10)*4096 + hh*512}")
            ndma = len(steps[s_-1]) if s_ else 0
            rlim = sum(len(mf[i]) for i in range(s_+1))
        else:
            trs = []; ndma = 0
        ms = mf[s_-1] if s_ else []
        dm = list(range(nissued, nissued + ndma)); nissued += ndma
        last = (s_ == 11)
        ops = epi_ops(ACC0) if last else []
        tot = sum(wgt(o) for o in ops); oi = 0; done = 0.0
        def rd_more(limit, maxn):
            nonlocal rd
            n = 0
            while rd < limit and rd < mi + RS and n < maxn:
                A(frag_read(rd)); rd += 1; n += 1
        if not ms:
            rd_more(rlim, 99)
            for o in trs: A(o)
            continue
        if not last: rd_more(rlim, 99)
        for k, (ac, kidx, pg, ks) in enumerate(ms):
            acc = ACC0 + 16*ac
            pi = dm.pop(0) if dm else None
            pre, iss = piece(pi) if pi is not None else ([], [])
            for o in pre: A(o)
            if last: A(f"s_waitcnt lgkmcnt({min(15, rd - mi - 1)})")
            A(f"v_mfma_f32_32x32x16_bf16 {v(acc,16)}, {v(AR+4*kidx,4)}, {v(BR+4*(mi%RS),4)}, {v(acc,16) if started[ac] else 0}")
            started[ac] = True; mi += 1
            if last:
                if k == 12:
                    A(f"s_waitcnt vmcnt({wait_for(65)}) lgkmcnt(0)\ns_barrier")
                lim = 80 if k < 12 else 80 + RA
                rd_more(min(lim, mi + (RS if k < 12 else RA)), 3)
                if k >= 1:
                    tgt = tot * k / 14.0
                    while oi < len(ops) and done < tgt:
                        emit(ops[oi]); done += wgt(ops[oi]); oi += 1
            else:
                rd_more(rlim, 1)
                ntr = -(-len(trs) // (len(ms) - k))
                for _ in range(ntr): A(trs.pop(0))
            for o in iss: A(o)
            if pi is not None: vm.append(pi)
        while dm:
            pi = dm.pop(0)
            pre, iss = piece(pi)
            for o in pre + iss: A(o)
            vm.append(pi)
        while oi < len(ops):
            emit(ops[oi]); oi += 1
    assert rd == 80 + RA and mi == 80 and nissued == 76, (rd, mi, nissued)
    ts(A, 2)
    tails = [A.label("g1tail"), A.label("g1tail")]
    A(f"s_sub_u32 s{snc}, s{snc}, 2\ns_cmp_eq_u32 s{snc}, 0\ns_cbranch_scc1 {tails[1]}")
    top = A.label("g1top")
    A(f"{top}:")
    cnt = RA
    for P in range(2):
        acc = ACC0 + 16*P
        ops = epi_ops(ACC0 + 16*(P ^ 1))
        tot = sum(wgt(o) for o in ops); oi = 0; done = 0.0
        issued = RA
        for k in range(40):
            kk = k % 20; stg = k // 20
            gs = 2*P + stg
            pi = None
            if kk == KBAR: pi = 60 + 5*gs
            elif kk in (0, 4, 8, 12): pi = 60 + 5*((gs - 1) & 3) + 1 + kk // 4
            pre, iss = piece(pi) if pi is not None else ([], [])
            for o in pre: A(o)
            A(f"s_waitcnt lgkmcnt({issued - k - 1})")
            A(f"v_mfma_f32_32x32x16_bf16 {v(acc,16)}, {v(AR+4*k,4)}, {v(BR+4*((40*P+k)%RS),4)}, {v(acc,16) if k else 0}")
            if kk == KBAR:
                A("s_waitcnt vmcnt(10) lgkmcnt(0)\ns_barrier")
            lim = 20*(stg+1) if kk < KBAR else 99
            n = 0
            while issued < min(k + 1 + RA, lim) and n < 3:
                j = (40*P + issued) % 80
                A(bread_at(j >> 2, j & 3, cnt)); cnt += 1; issued += 1; n += 1
            for o in iss: A(o)
            if k >= 1:
                tgt = tot * k / 38.0
                while oi < len(ops) and done < tgt:
                    A(ops[oi]); done += wgt(ops[oi]); oi += 1
        while oi < len(ops):
            A(ops[oi]); oi += 1
        A(f"s_sub_u32 s{snc}, s{snc}, 1\ns_cmp_eq_u32 s{snc}, 0\ns_cbranch_scc1 {tails[P]}" if P == 0 else
          f"s_sub_u32 s{snc}, s{snc}, 1\ns_cmp_lg_u32 s{snc}, 0\ns_cbranch_scc1 {top}")
    end = A.label("g1end")
    for P in (1, 0):
        A(f"{tails[P]}:\ns_nop 8")
        for o in epi_ops(ACC0 + 16*P): A(o)
        if P == 1: A(f"s_branch {end}")
    A(f"{end}:\ns_waitcnt vmcnt(0) lgkmcnt(0)\ns_barrier")
    if "prep" not in CFG["skip"]:
        mk_tag(A)
        publish(A, 24, sflag, 31, VZ)
    if CFG["prio"]: A("s_setprio 0")
    ts(A, 3)

def cmul(r, x, y, t, conj_out=False, pk=True):
    if pk:
        i1 = f"v_pk_mul_f32 {v(t,2)}, {v(x,2)}, {v(y,2)} op_sel_hi:[0,1]"
        i2 = f"v_pk_fma_f32 {v(r,2)}, {v(x,2)}, {v(y,2)}, {v(t,2)} op_sel:[1,1,0] op_sel_hi:[1,0,1] neg_lo:[0,1,0]"
        if conj_out: i2 += " neg_hi:[0,1,1]"
        return [i1, i2]
    o = [f"v_mul_f32 v{t}, v{x+1}, v{y+1}", f"v_mul_f32 v{t+1}, v{x+1}, v{y}"]
    if r == x or r == y:
        assert r == x and r != y
        o += [f"v_fma_f32 v{r+1}, v{x}, v{y+1}, v{t+1}" if not conj_out else f"v_fma_f32 v{r+1}, -v{x}, v{y+1}, -v{t+1}",
              f"v_fma_f32 v{r}, v{x}, v{y}, -v{t}"]
    else:
        o += [f"v_fma_f32 v{r+1}, v{x}, v{y+1}, v{t+1}" if not conj_out else f"v_fma_f32 v{r+1}, -v{x}, v{y+1}, -v{t+1}",
              f"v_fma_f32 v{r}, v{x}, v{y}, -v{t}"]
    return o

def interleave(*streams):
    out = []; idx = [0]*len(streams); tot = sum(len(x) for x in streams)
    while len(out) < tot:
        best = min((idx[i]/len(x), i) for i, x in enumerate(streams) if idx[i] < len(x))[1]
        out.append(streams[best][idx[best]]); idx[best] += 1
    return out

def role_ssm(A):
    sq = 68
    TB = 5760
    VKW, VKL, VKH = 241, 158, 159
    TBL, CS, MB = 5760, 1984, 9856
    C1_ = CS + 2
    WM = 216
    VF0, VF1, VG, VWA, VWB, VMW, VMR, VOUT = 243, 244, 245, 246, 249, 248, 250, 247
    PK = CFG["pk"]
    KA = 48
    FA, FB = 64, 96
    if CFG["prio"]: A(f"s_setprio 3")
    A(f"""
    s_lshl_b32 s70, s{sq}, 2
    s_add_u32 s70, s70, s{S_WAVE}           ; channel d
    s_mul_i32 s71, s70, 384
    s_lshl_b32 s72, s70, 1
    v_lshlrev_b32 v1, 2, v0
    v_lshlrev_b32 v2, 1, v0
    v_mov_b32 v3, 0
    s_mul_i32 s76, s{S_WAVE}, 20480
    s_mov_b32 m0, s76
    s_add_u32 s78, s76, {TBL}
    """)
    for d in (8, 12, 16, 20): A(f"s_mov_b32 s{d+2}, {640*384}\ns_mov_b32 s{d+3}, 0x20000")
    for d in (4, 32): A(f"s_mov_b32 s{d+2}, 1280\ns_mov_b32 s{d+3}, 0x20000")
    A("""
    v_and_b32 v45, 15, v0                   ; lane & 15
    v_lshrrev_b32 v40, 4, v0                ; g
    v_lshlrev_b32 v41, 3, v40               ; 8g
    v_sub_u32 v42, v41, v45
    v_add_u32 v42, 16, v42
    v_min_u32 v42, 31, v42
    """)
    BANDS = [(11, 13), (3, 5), (6, 10), (5, 11), (4, 12), (12, 13)]
    def band(q):
        lo, hi = BANDS[q]
        A(f"s_mov_b32 s79, {(((1 << (hi-lo+1)) - 1) << lo) << 16}\nv_lshrrev_b32 v43, v42, s79")
        for r in range(4):
            A(f"v_bfe_u32 v44, v43, {2*r}, 1\nv_bfe_u32 v46, v43, {2*r+1}, 1\nv_lshl_or_b32 v44, v46, 16, v44\nv_mul_u32_u24 v{WM+4*q+r}, 0x3f80, v44")
    for q in range(3): band(q)
    def params():
        pm = CFG.get("pmod", " nt")
        for d, p in ((4, P_DT), (8, P_LA)): A(f"s_mov_b64 s[{d}:{d+1}], s[{p}:{p+1}]")
        A(f"""
        buffer_load_ushort v16, v3, s[4:7], s72 offen
        buffer_load_dword v4, v1, s[8:11], s71 offen{pm}
        buffer_load_ushort v5, v2, s[8:11], s71 offen offset:256{pm}
        """)
        for d, p in ((12, P_AI), (16, P_CR), (20, P_CI), (32, P_DS)): A(f"s_mov_b64 s[{d}:{d+1}], s[{p}:{p+1}]")
        A(f"""
        buffer_load_dword v6, v1, s[12:15], s71 offen{pm}
        buffer_load_ushort v7, v2, s[12:15], s71 offen offset:256{pm}
        buffer_load_dword v8, v1, s[16:19], s71 offen{pm}
        buffer_load_ushort v9, v2, s[16:19], s71 offen offset:256{pm}
        buffer_load_dword v10, v1, s[20:23], s71 offen{pm}
        buffer_load_ushort v11, v2, s[20:23], s71 offen offset:256{pm}
        buffer_load_ushort v17, v3, s[32:35], s72 offen
        """)
    kwait(A)
    params()
    for q in range(3, 6): band(q)
    A(f"""
    s_add_u32 s79, s76, {TB}
    v_mul_u32_u24 v14, 208, v0
    v_add_u32 v{VKW}, s79, v14
    v_bfe_u32 v14, v0, 3, 1                 ; q>>1
    v_lshrrev_b32 v15, 5, v0                ; h
    v_lshlrev_b32 v14, 3, v14
    v_lshl_add_u32 v14, v15, 1, v14
    v_mul_u32_u24 v14, 208, v14
    v_add_u32 v14, s79, v14
    v_bfe_u32 v15, v0, 2, 1                 ; comp
    v_and_b32 v43, 3, v0
    v_bfe_u32 v44, v0, 4, 1
    v_lshl_add_u32 v{VKL}, v15, 6, v14
    v_lshl_add_u32 v{VKL}, v44, 5, v{VKL}
    v_lshl_add_u32 v{VKL}, v43, 3, v{VKL}
    v_lshlrev_b32 v46, 5, v15
    v_lshl_add_u32 v46, v43, 3, v46
    v_add_u32 v46, 128, v46
    v_lshlrev_b32 v15, 3, v15
    v_add_u32 v15, 192, v15
    v_cmp_eq_u32 vcc, 1, v44
    v_cndmask_b32 v46, v46, v15, vcc
    v_add_u32 v{VKH}, v14, v46
    ; conv addresses
    v_and_b32 v43, 1, v0
    v_mul_u32_u24 v43, {C1_}, v43
    v_add_u32 v43, v43, v41
    v_lshlrev_b32 v44, 1, v45
    v_sub_u32 v43, v43, v44
    v_add_u32 v{VF0}, s78, v43
    v_add_u32 v{VF1}, 1024, v{VF0}
    v_mul_u32_u24 v43, 272, v45
    v_add3_u32 v{VG}, v43, v41, s76
    v_lshl_add_u32 v43, v45, 4, v41         ; 16k + 8g
    v_add_u32 v44, 624, v43
    v_lshrrev_b32 v46, 7, v44
    v_lshlrev_b32 v46, 4, v46
    v_lshl_add_u32 v44, v44, 1, v46
    v_add_u32 v{VWA}, s76, v44
    v_add_u32 v44, 616, v43
    v_lshrrev_b32 v46, 7, v44
    v_lshlrev_b32 v46, 4, v46
    v_lshl_add_u32 v44, v44, 1, v46
    v_add_u32 v{VWB}, s76, v44
    s_add_u32 s79, s76, {MB}
    v_mul_u32_u24 v43, 528, v45
    v_lshl_add_u32 v43, v40, 4, v43
    v_add_u32 v{VMW}, s79, v43
    v_lshrrev_b32 v43, 3, v45
    v_add_u32 v43, v43, v40
    v_lshlrev_b32 v43, 4, v43
    v_lshl_add_u32 v43, v45, 6, v43
    v_add_u32 v{VMR}, s79, v43
    v_and_b32 v41, 1, v40                   ; g&1
    v_lshrrev_b32 v42, 1, v40               ; g>>1
    v_lshlrev_b32 v{VOUT}, 5, v45
    v_lshl_add_u32 v{VOUT}, v41, 9, v{VOUT}
    v_lshl_add_u32 v{VOUT}, v42, 4, v{VOUT}
    s_mul_i32 s79, s{S_WAVE}, {24*128}
    s_add_u32 s79, s79, {F_U}
    v_min_u32 v252, 23, v0
    v_lshl_add_u32 v252, v252, 7, s79
    v_min_u32 v251, 15, v0
    v_lshlrev_b32 v251, 7, v251
    v_add_u32 v251, {F_WD}, v251
    v_lshlrev_b32 v255, 7, v0
    v_lshrrev_b32 v43, 2, v0
    v_mul_u32_u24 v253, {UT_CH}, v43
    v_and_b32 v44, 3, v0
    v_lshl_add_u32 v253, v44, 4, v253
    v_mul_u32_u24 v240, 20480, v44
    v_lshl_add_u32 v240, v43, 4, v240
    s_mul_i32 s79, s{S_WAVE}, 1088
    s_add_u32 s79, s79, 1360
    v_add_u32 v240, s79, v240
    v_mov_b32 v254, 0
    """)
    for q in range(64): A(f"v_mov_b32 v{FA+q}, 0")
    srd(A, 24, P_WS, 0, FL_BYTES)
    for q in range(16): A(f"v_mov_b32 v{KA+q}, 0")
    A("s_waitcnt vmcnt(0) lgkmcnt(0)")
    tsn(A, 'q')
    Z, C = 20, 26
    A(f"""
    v_lshlrev_b32 v16, 16, v16
    v_mul_f32 v16, {fbits(LOG2E)}, v16
    v_exp_f32 v16, v16
    v_lshlrev_b32 v{Z}, 16, v4
    v_and_b32 v{Z+2}, 0xffff0000, v4
    v_lshlrev_b32 v{Z+4}, 16, v5
    v_cvt_pk_bf16_f32 v16, v16, v16
    v_lshlrev_b32 v16, 16, v16              ; dt
    """)
    for t in range(3): A(f"v_mul_f32 v{Z+2*t}, {fbits(LOG2E)}, v{Z+2*t}")
    for t in range(3): A(f"v_exp_f32 v{Z+2*t}, v{Z+2*t}")
    A(f"""
    v_lshlrev_b32 v{Z+1}, 16, v6
    v_and_b32 v{Z+3}, 0xffff0000, v6
    v_lshlrev_b32 v{Z+5}, 16, v7
    v_cvt_pk_bf16_f32 v4, v{Z}, v{Z+2}
    v_cvt_pk_bf16_f32 v5, v{Z+4}, v{Z+4}
    v_lshlrev_b32 v{Z}, 16, v4
    v_and_b32 v{Z+2}, 0xffff0000, v4
    v_lshlrev_b32 v{Z+4}, 16, v5
    v_lshlrev_b32 v{C}, 16, v8
    v_and_b32 v{C+2}, 0xffff0000, v8
    v_lshlrev_b32 v{C+4}, 16, v9
    v_lshlrev_b32 v{C+1}, 16, v10
    v_and_b32 v{C+3}, 0xffff0000, v10
    v_lshlrev_b32 v{C+5}, 16, v11
    v_add_f32 v18, v16, v16                 ; 2 dt
    v_lshlrev_b32 v242, 16, v17             ; D skip (persist)
    """)
    for q in range(6): A(f"v_mul_f32 v{Z+q}, v16, v{Z+q}")
    for q in range(6): A(f"v_mul_f32 v{C+q}, v18, v{C+q}")
    for t in range(3):
        A(f"v_mul_f32 v{Z+2*t}, {fbits(-LOG2E)}, v{Z+2*t}\nv_mul_f32 v{Z+2*t+1}, {fbits(0.15915494309189535)}, v{Z+2*t+1}")
    E1, E256, E2, E4, E8 = 32, 34, 36, 38, 40
    def exps():
        return [
            f"v_exp_f32 v4, v{Z}", f"v_fract_f32 v5, v{Z+1}", f"v_mul_f32 v6, 0x43800000, v{Z}", f"v_mul_f32 v7, 0x43800000, v{Z+1}",
            f"v_cos_f32 v8, v5", f"v_sin_f32 v9, v5", f"v_fract_f32 v7, v7", f"v_exp_f32 v6, v6", f"v_cos_f32 v10, v7", f"v_sin_f32 v11, v7",
            f"v_mul_f32 v{E1}, v4, v8", f"v_mul_f32 v{E1+1}, v4, v9", f"v_mul_f32 v{E256}, v6, v10", f"v_mul_f32 v{E256+1}, v6, v11"]
    for o in exps(): A(o)
    mk_tag(A)
    tsn(A, 'p')
    if "kgen" in CFG["skip"]: A("s_branch L_done")
    srd(A, 4, P_WS, WS_UT, UT_BYTES)
    srd(A, 32, P_WS, WS_AT, AT_BYTES)
    srd(A, 8, P_WS, WS_WD, WD_BYTES)
    A(f"""
    s_mul_i32 s72, s{S_WAVE}, {64*UT_CH}
    s_lshl_b32 s73, s{sq}, 6
    s_add_u32 s72, s72, s73
    """)
    if CFG["prio"]: A(f"s_setprio {CFG['kprio']}")
    A("v_mov_b32 v19, 0\ns_mov_b32 s77, 3")
    def utload():
        for j in range(4):
            A(f"buffer_load_dwordx4 {v(160+4*j,4)}, v253, s[4:7], s72 offen{SC}")
            if j < 3: A(f"s_add_u32 s72, s72, {16*UT_CH}")
    top = A.label("kgen")
    A(f"{top}:")
    tsn(A, 'a')
    cm = lambda r, x, y, t, conj_out=False: cmul(r, x, y, t, conj_out, PK)
    def pair(dre, dim, x, y):
        xr, xi = (f"v{x}", f"v{x+1}") if x is not None else ("1.0", "0")
        return [f"v_cvt_pk_bf16_f32 v{dre}, {xr}, v{y}", f"v_cvt_pk_bf16_f32 v{dim}, {xi}, v{y+1}"]
    wr = lambda r, off: [f"ds_write_b128 v{VKW}, {v(r,4)} offset:{off}"]
    pre = cm(E2, E1, E1, 42) + cm(E4, E2, E2, 42) + cm(E8, E4, E4, 42, True)
    LA, LB, LT, SL = 128, 130, 132, 200
    lo = pair(SL, SL+4, None, E8)
    for i in range(2, 32, 2):
        b = SL + 8*((i//8) & 1); o = (i % 8)//2
        lo += cm(LA, LB if i > 2 else E8, E8, LT) + cm(LB, LA, E8, LT) + pair(b+o, b+4+o, LA, LB)
        if o == 3: lo += wr(b, 16*(i//8)) + wr(b+4, 64 + 16*(i//8))
    HA, HB_, HT, GA, GB, GT, S1, S3 = 134, 136, 138, 140, 142, 144, 146, 154
    hi = cm(HA, C, E1, HT) + pair(S1, S1+4, C, HA)
    for o in range(1, 4): hi += cm(HB_, HA, E1, HT) + cm(HA, HB_, E1, HT) + pair(S1+o, S1+4+o, HB_, HA)
    hi += wr(S1, 128) + wr(S1+4, 160)
    hi += cm(GA, C, E256, GT) + cm(HA, GA, E2, HT) + pair(S3, S3+2, GA, HA)
    hi += cm(HB_, HA, E2, HT) + cm(HA, HB_, E2, HT) + pair(S3+1, S3+3, HB_, HA) + wr(S3, 192)
    hi += cm(GB, GA, E256, GT) + cm(HA, GB, E4, HT) + pair(S1, S1+4, GB, HA)
    hi += cm(GA, GB, E256, GT) + cm(HA, GA, E4, HT) + pair(S1+2, S1+6, GA, HA)
    hi += cm(GB, GA, E256, GT) + cm(GA, GB, E256, GT) + pair(S1+1, S1+5, GB, GA)
    hi += cm(GB, GA, E256, GT) + cm(GA, GB, E256, GT) + pair(S1+3, S1+7, GB, GA)
    hi += wr(S1, 144) + wr(S1+4, 176)
    hi += [f"v_fma_f32 v19, v{GA}, v{E256}, v19", f"v_fma_f32 v19, -v{GA+1}, v{E256+1}, v19"]
    hi0 = hi[:CFG["hi0"]]
    st = interleave(pre, hi0) + interleave(lo, hi[len(hi0):])
    if "kw" in CFG["skip"]: st = [o for o in st if not o.startswith("ds_write")]
    if "kv" in CFG["skip"]: st = [o for o in st if o.startswith("ds_write")]
    DL = CFG["wdelay"]
    out = []; pend = []; gap = 99
    for o in st:
        if o.startswith("ds_write"): pend.append([o, DL])
        else:
            out.append(o); gap += 1
            for x in pend: x[1] -= 1
            if pend and pend[0][1] <= 0 and gap >= CFG["wsp"]: out.append(pend.pop(0)[0]); gap = 0
    out += [x[0] for x in pend]
    kmf = lambda k: f"v_mfma_f32_32x32x16_bf16 {v(KA,16)}, {v(FA+4*k,4)}, {v(FB+4*k,4)}, {v(KA,16)}"
    nw = 0; k = 0
    for n, o in enumerate(out):
        if k < 8 and n >= CFG["kmf0"] + 14*k:
            A((f"s_waitcnt lgkmcnt({min(15, nw)})\n" if k == 0 else "") + kmf(k)); k += 1
        if n == int(len(out)*CFG["fpos"]) and "poll" not in CFG["skip"]:
            nf = A.label("nf")
            A(f"s_cmp_lg_u32 s77, 1\ns_cbranch_scc1 {nf}\nbuffer_load_dword v196, v252, s[24:27], 0 offen{SC}\n{nf}:")
        A(o)
        if o.startswith("ds_write"): nw += 1
    tsn(A, 'b')
    for q in range(4): A(f"v_mov_b32 v{Z+q}, v{Z+2+q}\nv_mov_b32 v{C+q}, v{C+2+q}")
    ex = exps()
    for k in range(8):
        for t in range(2):
            off = (16*(k >> 1) + 4*(k & 1) + t)*208
            A(f"ds_read_b64_tr_b16 {v(FA+4*k+2*t,2)}, v{VKH} offset:{off}\nds_read_b64_tr_b16 {v(FB+4*k+2*t,2)}, v{VKL} offset:{off}")
            for o in ex[2*k+t:2*k+t+1]: A(o)
    tsn(A, 'd')
    for nm, val in (('1', 3), ('2', 2), ('3', 1)):
        if nm in CFG['marks'] and CFG['dbg']:
            lb = A.label("cm"); A(f"s_cmp_lg_u32 s77, {val}\ns_cbranch_scc1 {lb}"); tsn(A, nm); A(f"{lb}:")
    A(f"s_sub_u32 s77, s77, 1\ns_cmp_lg_u32 s77, 0\ns_cbranch_scc1 {top}")
    if "poll" in CFG["skip"]: A("s_branch L_done")
    A("s_waitcnt vmcnt(0)")
    poll(A, 24, 196, 252, 73, preissued=True, slp=CFG["slpU"])
    utload()
    tsn(A, 'f')
    A(f"buffer_load_dword v198, v251, s[24:27], 0 offen{SC}")
    side = f"""
    v_add_f32_dpp v19, v19, v19 row_ror:8 row_mask:0xf bank_mask:0xf
    v_lshlrev_b32 v4, 4, v0
    v_add_u32 v5, s78, v4
    v_add_f32_dpp v19, v19, v19 row_ror:4 row_mask:0xf bank_mask:0xf
    v_add_u32 v4, s76, v4
    v_mov_b32 v8, 0
    v_add_f32_dpp v19, v19, v19 row_ror:2 row_mask:0xf bank_mask:0xf
    v_mov_b32 v9, 0
    v_mov_b32 v10, 0
    v_add_f32_dpp v19, v19, v19 row_ror:1 row_mask:0xf bank_mask:0xf
    v_mov_b32 v11, 0
    ds_write_b128 v5, v[8:11]
    v_add_f32_dpp v19, v19, v19 row_bcast:15 row_mask:0xa bank_mask:0xf
    ds_write_b128 v5, v[8:11] offset:1024
    v_add_f32_dpp v19, v19, v19 row_bcast:31 row_mask:0xc bank_mask:0xf
    ds_write_b128 v5, v[8:11] offset:2048
    ds_write_b128 v5, v[8:11] offset:3072
    ds_write_b128 v4, v[8:11]
    s_mov_b64 exec, 0x1fffff
    ds_write_b128 v4, v[8:11] offset:1024
    s_mov_b64 exec, -1
    v_readlane_b32 s75, v19, 63
    v_and_b32 v4, 31, v0                    ; i
    v_lshrrev_b32 v5, 5, v0                 ; h
    v_lshlrev_b32 v6, 4, v4
    v_sub_u32 v6, s78, v6                   ; base - 16 i   (seg1)
    v_lshlrev_b32 v7, 3, v5
    v_sub_u32 v7, v6, v7                    ; seg0
    v_add_u32 v12, {CS + 1084}, v7
    v_add_u32 v13, {C1_ + 566}, v6
    v_and_b32 v14, 30, v0                   ; 2 i2
    v_sub_u32 v14, s78, v14
    v_lshlrev_b32 v15, 5, v5
    v_sub_u32 v14, v14, v15                 ; base - 32h - 2 i2
    v_sub_u32 v15, v14, v15                 ; base - 64h - 2 i2
    v_and_b32 v18, 1, v0
    v_cmp_eq_u32 vcc, 1, v18
    v_mov_b32 v18, 1474
    v_mov_b32 v19, 1184
    v_mov_b32 v20, {1794 - 32}
    v_mov_b32 v24, 1280
    v_mov_b32 v25, 1376
    v_mov_b32 v26, {1632 - 32}
    v_cndmask_b32 v18, v18, v24, vcc
    v_cndmask_b32 v19, v19, v25, vcc
    v_cndmask_b32 v20, v20, v26, vcc
    v_add_u32 v18, v14, v18                 ; VA
    v_add_u32 v19, v14, v19                 ; VB
    v_add_u32 v20, v15, v20                 ; VC7
    v_add_u32 v21, 32, v20                  ; VC6
    s_add_u32 s72, s78, 1410
    s_add_u32 s73, s78, 1824
    v_mov_b32 v24, s72
    v_mov_b32 v25, s73
    v_cmp_eq_u32 vcc, 0, v0
    v_cndmask_b32 v18, v18, v24, vcc
    v_cndmask_b32 v21, v21, v25, vcc
    v_cndmask_b32 v22, v254, v242, vcc      ; skip term on lag 0
    v_cvt_pk_bf16_f32 v27, s75, s75
    """.strip().split("\n")
    side = [x.strip() for x in side]
    nw = 0; per = -(-len(side) // 8)
    for k in range(8):
        A(f"s_waitcnt lgkmcnt({min(15, 28 - 4*k + nw)})\n" + kmf(k))
        for o in side[per*k:per*(k+1)]:
            A(o)
            if o.startswith("ds_write"): nw += 1
    if CFG["prio"]: A(f"s_setprio {CFG['cprio']}")
    tsn(A, 'k')
    if "conv" in CFG["skip"]: A("s_branch L_done")
    A(f"s_mul_i32 s78, s70, {AT_ROW}")
    a0, a1, a2, a3 = KA, KA+1, KA+2, KA+3
    b0, b1, b2, b3 = KA+8, KA+9, KA+10, KA+11
    A(f"""
    v_cmp_eq_u32 vcc, 0, v0
    v_add_f32 v{a0}, v{a0}, v22
    v_cndmask_b32 v24, v{KA+4}, v{KA+6}, vcc
    v_cvt_pk_bf16_f32 v64, v{b3}, v{b2}
    v_cvt_pk_bf16_f32 v65, v{b2}, v{b2}
    v_cvt_pk_bf16_f32 v66, v{b1}, v{b0}
    v_cvt_pk_bf16_f32 v67, v{b0}, v{b0}
    v_cvt_pk_bf16_f32 v68, v{b2}, v{b1}
    v_cvt_pk_bf16_f32 v69, v{KA+4}, v{KA+4}
    v_cvt_pk_bf16_f32 v70, v24, v{KA+5}
    v_cvt_pk_bf16_f32 v71, v{KA+6}, v{KA+7}
    v_cvt_pk_bf16_f32 v72, v{a3}, v{a2}
    v_cvt_pk_bf16_f32 v73, v{a1}, v{a0}
    v_cvt_pk_bf16_f32 v74, v{a2}, v{a1}
    s_mov_b32 exec_hi, 0
    ds_write2_b32 v6, v64, v65 offset0:141 offset1:142
    ds_write2_b32 v6, v66, v67 offset0:143 offset1:144
    ds_write_b16 v6, v64 offset:{C1_ + 564}
    ds_write2_b32 v13, v65, v68 offset0:0 offset1:1
    ds_write_b32 v6, v67 offset:{C1_ + 574}
    ds_write_b16 v6, v67 offset:{C1_ + 578}
    s_mov_b32 exec_lo, 1
    ds_write2_b32 v6, v69, v69 offset0:15 offset1:16
    ds_write_b16 v6, v69 offset:{C1_ + 60}
    ds_write_b32 v6, v69 offset:{C1_ + 62}
    ds_write_b16 v6, v69 offset:{C1_ + 66}
    s_mov_b32 exec_lo, 0
    s_mov_b32 exec_hi, 1
    ds_write_b16 v6, v27 offset:1666
    ds_write_b16 v6, v27 offset:{1666 + C1_}
    s_mov_b64 exec, -1
    ds_write_b16 v7, v72 offset:1082
    ds_write_b32 v7, v74 offset:1084
    ds_write_b16_d16_hi v7, v73 offset:1088
    ds_write2_b32 v12, v72, v73 offset0:0 offset1:1
    """)
    for c in (0, C1_):
        A(f"ds_write_b16 v18, v70 offset:{c}\nds_write_b16_d16_hi v19, v70 offset:{c}\nds_write_b16 v21, v71 offset:{c}\nds_write_b16_d16_hi v20, v71 offset:{c}")
    tsn(A, 'c')
    ACC, GR, FR, WIN, F2, FX = 16, 48, 130, 142, 190, 120
    XA, XB, XU, XF = 48, 72, 96, 112
    lds = []
    def lop(txt, tag=None):
        A(txt); lds.append(tag)
    def lwait(*tags):
        pos = max(max(i for i, t in enumerate(lds) if t == tg) for tg in tags)
        A(f"s_waitcnt lgkmcnt({min(15, len(lds) - 1 - pos)})")
    def fread(dst, Y, h, tag):
        off = 2*Y - 32*h; va = VF0
        if off > 1016: off -= 1024; va = VF1
        lop(f"ds_read2_b32 {v(dst,2)}, v{va} offset0:{off//4} offset1:{off//4+1}", tag)
    def gread(j):
        z = 640 + 16*j
        lop(f"ds_read_b64 {v(GR+2*(j+33),2)}, v{VG} offset:{2*z + 16*(z >> 7)}", ("G", j))
    def aread(s_):
        r = FR + 4*(s_ % 3)
        fread(r, 544, 2*s_+1, ("A", s_)); fread(r+2, 544, 2*s_, ("A", s_))
    aread(0); aread(1)
    for j in range(4):
        if j == 0: A("s_waitcnt vmcnt(1)")
        lop(f"ds_write_b128 v240, {v(160+4*j,4)} offset:{j*272}")
    A(f"s_lshl_b32 s79, s{sq}, 7\ns_add_u32 s0, s79, {F_A}")
    A("s_waitcnt lgkmcnt(0)\ns_barrier")
    tsn(A, 'u')
    for j in range(-1, 8): gread(j)
    nTS = -(-(240 - 48*CFG["nTA"]) // 80)
    TD = [214, 215, 15]
    extra = []
    for d in (2, 3, 4):
        r = F2 + 8*(d-2)
        extra += [("F", r, 624, d, "F2"), ("F", r+2, 720, d, "F2"), ("F", r+4, 672, d, "F2"), ("F", r+6, 768, d, "F2")]
    for kt in range(6):
        extra += [("W", WIN+8*kt, VWA, kt), ("W", WIN+8*kt+4, VWB, kt)]
    m16 = lambda d, a, b, c: f"v_mfma_f32_16x16x32_bf16 {v(d,4)}, {v(a,4)}, {v(b,4)}, {c}"
    def warm():
        sk = A.label("nowarm")
        A(f"s_waitcnt vmcnt(0)\nv_cmp_ne_u32 vcc, s{S_TAG}, v198\ns_mov_b32 s77, 0\ns_cbranch_vccnz {sk}")
        for k in range(nTS): touch(A, k, TD[k], 255, False)
        A(f"s_mov_b32 s77, 1\n{sk}:")
    for s_ in range(17):
        side = []
        if s_ + 2 <= 16: side.append(lambda s_=s_: aread(s_+2))
        if s_ + 1 <= 16: side += [lambda j=-2*s_-2: gread(j), lambda j=-2*s_-3: gread(j)]
        if s_ >= 3:
            for _ in range(2):
                if extra:
                    x = extra.pop(0)
                    if x[0] == "F": side.append(lambda x=x: fread(x[1], x[2], x[3], x[4]))
                    else: side.append(lambda x=x: lop(f"ds_read_b128 {v(x[1],4)}, v{x[2]} offset:{544*x[3]}", ("W", x[3])))
        for n, T in enumerate(range(8) if s_ == 0 else range(7, -1, -1)):
            j = T - 2*s_ - 1
            if s_ == 0: lwait(("A", 0), ("G", j+1))
            elif n == 0: lwait(("A", s_))
            elif T == 1: lwait(("G", -2*s_))
            elif T == 0: lwait(("G", -2*s_-1))
            A(m16(ACC+4*T, FR+4*(s_%3), GR+2*(j+33), v(ACC+4*T,4) if s_ else 0))
            if n >= 1 and side: side.pop(0)()
        assert not side
        if s_ == CFG["warmat"]: warm()
    assert not extra
    tsn(A, 'g')
    gen = []
    for kt in range(6):
        wa, wb = WIN+8*kt, WIN+8*kt+4
        gen += [(XA+4*kt, wa, 0, kt), (XA+4*kt+2, wa, 1, kt), (XB+4*kt, wa, 2, kt), (XB+4*kt+2, wb, 2, kt)]
        if kt < 4: gen += [(XU+4*kt, wa, 3, kt), (XU+4*kt+2, wb, 4, kt), (XF+2*kt, wa, 5, kt)]
    TMP = [FR, FR+4, FR+8, 124]
    side = [lambda T=T: lop(f"ds_write_b128 v{VMW}, {v(ACC+4*T,4)} offset:{64*T}") for T in range(7, -1, -1)]
    side += [lambda T=T: lop(f"ds_read_b128 {v(ACC+4*T,4)}, v{VMR} offset:{1056*T}", ("C", T)) for T in range(8)]
    side += [lambda: fread(FX, 976, 4, "FX")]
    F3 = WIN
    for d in (4, 5, 6, 7):
        side += [lambda d=d: fread(F3+4*(d-4), 880, d, ("F3", d)), lambda d=d: fread(F3+4*(d-4)+2, 960, d, ("F3", d))]
    LAG = 3
    def cv(q):
        t = TMP[q % 4]; dst = gen[q][0]
        A(f"v_cvt_pk_bf16_f32 v{dst}, v{t}, v{t+1}\nv_cvt_pk_bf16_f32 v{dst+1}, v{t+2}, v{t+3}")
    lwait(("W", 5))
    for q, (dst, w, b, kt) in enumerate(gen):
        A(m16(TMP[q % 4], w, WM+4*b, 0))
        if q >= LAG: cv(q - LAG)
        if q >= 2 and side and (q % 4 != 3 or len(side) > 34 - q): side.pop(0)()
    A(f"v_mov_b32 v{FX+2}, 0\nv_mov_b32 v{FX+3}, 0")
    for q in range(len(gen) - LAG, len(gen)): cv(q)
    assert not side
    main = []
    for T in range(2, 8):
        for d in (2, 3, 4):
            if T - d >= 0: main += [(T, XA+4*(T-d), F2+8*(d-2), None), (T, XB+4*(T-d), F2+8*(d-2)+4, None)]
        for d in (4, 5, 6, 7):
            if T - d >= 0: main.append((T, XU+4*(T-d), F3+4*(d-4), ("F3", d)))
        if T >= 4: main.append((T, XF+2*(T-4), FX, "FX"))
    def fin(p):
        o = WM + 4*p
        r = []
        for T in (2*p, 2*p+1):
            for h in range(2): r.append(f"v_cvt_pk_bf16_f32 v{o+2*(T&1)+h}, v{ACC+4*T+2*h}, v{ACC+4*T+2*h+1}")
        r += [f"v_permlane16_swap_b32 v{o}, v{o+2}", f"v_permlane16_swap_b32 v{o+1}, v{o+3}",
              f"buffer_store_dwordx4 {v(o,4)}, v{VOUT}, s[32:35], s78 offen offset:{1024*p}{SC}"]
        return r
    seen = set(); pend = []; hold = 0
    for q, (T, a, b, tag) in enumerate(main):
        tags = []
        if ("C", T) not in seen: tags.append(("C", T)); seen.add(("C", T))
        if tag and tag not in seen: tags.append(tag); seen.add(tag)
        if tags: lwait(*tags)
        if q == 0: pend += fin(0)
        if q and main[q-1][0] != T and T in (4, 6): pend += fin(T//2 - 1); hold = 4
        A(m16(ACC+4*T, a, b, v(ACC+4*T,4)))
        if hold: hold -= 1
        elif pend: A(pend.pop(0))
    for o in pend: A(o)
    for o in fin(3): A(o)
    tsn(A, 'e')
    if CFG["prio"]: A("s_setprio 0")
    ok = A.label("warmok")
    A(f"s_cmp_lg_u32 s77, 0\ns_cbranch_scc1 {ok}")
    poll(A, 24, 196, 251, 72)
    for k in range(nTS): touch(A, k, TD[k], 255, False)
    A(f"{ok}:")

def role_g2(A):
    split = CFG["split"]
    st = [sum(split[:i]) for i in range(5)] + [32]
    slot_of = [max(s for s in range(5) if st[s] <= c) for c in range(32)]
    pk0 = [sum(slot_of[2*t] << (4*(t % 8)) for t in range(8*h, 8*h+8)) for h in range(2)]
    pk1 = [sum(slot_of[2*t+1] << (4*(t % 8)) for t in range(8*h, 8*h+8)) for h in range(2)]
    ACC, WR, HB, AT = 16, 96, 196, 244
    KO = 80
    STG, SDT = 68, 69
    VL, VK0, VK1, VF, VT, VAL, VAG, VTOK, VLW, VZ, VG = 1, 2, 3, 4, 5, 6, 7, 8, 9, 10, 14
    srd(A, 4, P_WS, WS_H, H_BYTES)
    srd(A, 8, P_WS, WS_WD, WD_BYTES)
    srd(A, 12, P_WS, WS_AT, AT_BYTES)
    srd(A, 16, P_WS, WS_G, G_BYTES)
    srd(A, 20, P_OUT, 0, X_BYTES)
    A(f"""
    s_lshr_b32 s70, s{S_J}, 3               ; r
    s_lshl_b32 s{STG}, s{S_X}, 2
    s_add_u32 s{STG}, s{STG}, s70           ; tg
    s_and_b32 s{SDT}, s{S_J}, 7             ; dt
    v_mov_b32 v{VZ}, 0
    v_lshlrev_b32 v{VL}, 4, v0
    s_mul_i32 s72, s70, 3
    s_mul_i32 s73, s{SDT}, 3
    s_lshr_b32 s73, s73, 1
    s_add_u32 s72, s72, s73
    s_cmp_ge_u32 s72, 12
    s_cselect_b32 s73, 12, 0
    s_sub_u32 s72, s72, s73                 ; rot
    """)
    for p in range(12):
        A(f"s_lshl_b32 s{KO+p}, s72, 10")
        if p < 11: A("s_add_u32 s72, s72, 1\ns_cmp_ge_u32 s72, 12\ns_cselect_b32 s72, 0, s72")
    A(f"""
    s_mul_i32 s70, s{S_WAVE}, 12288
    s_mul_i32 s71, s{STG}, {4*49152}
    s_add_u32 s71, s71, s70                 ; h base
    s_mul_i32 s72, s{SDT}, {5*49152}
    s_add_u32 s72, s72, s70
    """)
    for i in range(4):
        A(f"s_add_u32 s73, s{S_WAVE}, {1+i}\ns_and_b32 s73, s73, 3\ns_mul_i32 s73, s73, 49152\ns_add_u32 s{74+i}, s71, s73")
    WS_ = [32, 33, 34, 35, 78]
    for m in range(5): A(f"s_add_u32 s{WS_[m]}, s72, {m*49152}")
    A(f"""
    s_mul_i32 s79, s{S_WAVE}, 20480
    v_add_u32 v{VLW}, s79, v{VL}
    v_and_b32 v{VTOK}, 15, v0
    s_lshl_b32 s70, s{STG}, 6
    s_lshl_b32 s71, s{S_WAVE}, 4
    s_add_u32 s70, s70, s71
    v_add_u32 v{VTOK}, s70, v{VTOK}         ; token
    v_lshlrev_b32 v{VG}, 3, v{VTOK}
    """)
    kv = [0]
    def kaddr(p):
        r = (VK0, VK1)[kv[0] & 1]; kv[0] += 1
        A(f"v_add_u32 v{r}, s{KO+p}, v{VL}")
        return r
    def wload(dst, m, va): return f"buffer_load_dwordx4 {v(dst+4*m,4)}, v{va}, s[8:11], s{WS_[m]} offen{SC}"
    def prefetch(nb):
        plan = [(6, ACC), (7, ACC+20), (8, ACC+40), (9, HB), (0, ACC+60)] + [(1+q, WR+20*q) for q in range(5)]
        n = 0; wr = 0
        for (p, dst) in plan:
            va = kaddr(p)
            for m in range(5):
                if n >= nb: A(f"s_waitcnt vmcnt({nb-1})")
                if n == nb:
                    np_ = A.label("nopub")
                    A(f"s_barrier\ns_cmp_eq_u32 s0, 0\ns_cbranch_scc1 {np_}")
                    publish(A, 24, 0, VT, VZ)
                    A(f"{np_}:")
                while wr < 20 and wr <= n - nb:
                    q, mm = divmod(wr, 5)
                    A(f"ds_write_b128 v{VLW}, {v(plan[q][1]+4*mm,4)} offset:{wr*1024}"); wr += 1
                A(wload(dst, m, va)); n += 1
        assert wr == 20
    slow, jn = A.label("g2slow"), A.label("g2pj")
    A(f"s_cmp_lt_u32 s{S_J}, 12\ns_cbranch_scc1 {slow}")
    prefetch(CFG["nbB"])
    A(f"s_branch {jn}\n{slow}:")
    prefetch(CFG["nbA"])
    A(f"""{jn}:
    s_and_b32 s70, s{STG}, 7
    s_lshl_b32 s70, s70, 2
    s_bitcmp1_b32 s{STG}, 3
    s_mov_b32 s71, {pk0[0]}
    s_cmov_b32 s71, {pk0[1]}
    s_mov_b32 s72, {pk1[0]}
    s_cmov_b32 s72, {pk1[1]}
    s_lshr_b32 s71, s71, s70
    s_lshr_b32 s72, s72, s70
    s_and_b32 s71, s71, 15
    s_and_b32 s72, s72, 15
    s_lshr_b32 s70, s{STG}, 4
    s_mul_i32 s70, s70, 5
    s_add_u32 s71, s71, s70
    s_add_u32 s72, s72, s70
    s_mul_i32 s71, s71, {24*128}
    s_mul_i32 s72, s72, {24*128}
    v_mov_b32 v11, s71
    v_mov_b32 v12, s72
    v_cmp_gt_u32 vcc, 32, v0
    v_cndmask_b32 v11, v12, v11, vcc
    v_and_b32 v12, 31, v0
    v_min_u32 v12, 23, v12
    v_lshl_add_u32 v{VF}, v12, 7, v11
    v_add_u32 v{VF}, {F_H}, v{VF}
    v_lshrrev_b32 v11, 3, v0
    v_and_b32 v12, 7, v0
    v_mul_u32_u24 v{VAL}, 160, v11
    v_lshl_add_u32 v{VAL}, v12, 4, v{VAL}
    s_add_u32 s70, s79, 15360
    v_add_u32 v{VAL}, s70, v{VAL}
    s_lshl_b32 s70, s{S_WAVE}, 3
    v_add_u32 v11, s70, v11
    v_mul_u32_u24 v{VAG}, {AT_ROW}, v11
    v_lshl_add_u32 v{VAG}, v12, 4, v{VAG}
    v_min_u32 v13, 19, v0
    s_mul_i32 s70, s{SDT}, {20*128}
    s_add_u32 s70, s70, {F_A}
    v_lshl_add_u32 v13, v13, 7, s70         ; a flags
    s_mul_i32 s70, s{SDT}, {80*AT_ROW}
    s_lshl_b32 s71, s{STG}, 7
    s_add_u32 s70, s70, s71
    s_add_u32 s71, s70, {32*AT_ROW}
    s_add_u32 s72, s70, {64*AT_ROW}
    s_cmp_ge_u32 s{S_WAVE}, 2
    s_cselect_b32 s72, 0x8000000, s72
    s_waitcnt vmcnt(0) lgkmcnt(0)
    """)
    tsn(A, 'P')
    nw = A.label("g2nw")
    A(f"s_cmp_lg_u32 s{S_WAVE}, 0\ns_cbranch_scc1 {nw}")
    A(f"buffer_load_dword v12, v13, s[24:27], 0 offen{SC}")
    poll(A, 24, VT, VF, 73, slp=CFG['slpH'])
    poll(A, 24, 12, 13, 73, slp=CFG['slpH'], preissued=True)
    A(f"{nw}:\ns_barrier")
    tsn(A, 'H')
    vm = []
    def vmw(tag):
        pos = max(i for i, t in enumerate(vm) if t == tag)
        return len(vm) - 1 - pos
    def hloads(p):
        va = kaddr(p)
        return [(f"buffer_load_dwordx4 {v(HB+16*(p%3)+4*i,4)}, v{va}, s[4:7], s{74+i} offen{SC}", ("h", p)) for i in range(4)]
    def iss(x):
        A(x[0]); vm.append(x[1])
    for p in range(3):
        for x in hloads(p): iss(x)
    iss((f"buffer_load_dwordx2 v[{VG}:{VG+1}], v{VG}, s[16:19], 0 offen{SC}", "g"))
    for r in range(3):
        iss((f"buffer_load_dwordx4 {v(AT+4*r,4)}, v{VAG}, s[12:15], s{70+r} offen{SC}", "at"))
    aslot = {0: ACC+60, 1: WR, 2: WR+20, 3: WR+40, 4: WR+60, 5: WR+80, 6: WR+40, 7: WR+60, 8: WR+80, 9: WR+40, 10: WR, 11: WR+20}
    def mfma(p, i, m):
        acc = v(ACC + (i*5+m)*4, 4)
        return f"v_mfma_f32_16x16x32_bf16 {acc}, {v(aslot[p]+4*m,4)}, {v(HB+16*(p%3)+4*i,4)}, {acc if p else 0}"
    lds = []
    for p in range(9):
        w = f"s_waitcnt vmcnt({vmw(('h', p))})"
        if p >= 6:
            pos = max(i for i, t in enumerate(lds) if t == p)
            w += f" lgkmcnt({len(lds) - 1 - pos})"
        A(w)
        side = {}
        def add(k, x): side.setdefault(k, []).append(x)
        va = None
        hl = None
        if p in (2, 3):
            q = p + 8
            add(0, ("K", q))
            for m in range(5): add(1 + 3*m, ("WL", q, m))
        if 4 <= p <= 7:
            q = p + 2
            for m in range(5): add(1 + 3*m, ("SR", q, m))
        wva = None
        hq = []
        for i in range(4):
            for m in range(5):
                k = 5*i + m
                A(mfma(p, i, m))
                for x in side.get(k, []):
                    if x[0] == "K": wva = kaddr(x[1])
                    elif x[0] == "WL": iss((wload(aslot[x[1]], x[2], wva), ("w", x[1])))
                    elif x[0] == "SR":
                        A(f"ds_read_b128 {v(aslot[x[1]]+4*x[2],4)}, v{VLW} offset:{((x[1]-6)*5+x[2])*1024}"); lds.append(x[1])
                if k == 3:
                    A(f"v_add_u32 v{VF}, s{KO+p+3}, v{VL}")
                if m == 4:
                    iss((f"buffer_load_dwordx4 {v(HB+16*(p%3)+4*i,4)}, v{VF}, s[4:7], s{74+i} offen{SC}", ("h", p+3)))
    pend = []
    A("s_waitcnt lgkmcnt(0)")
    for i in range(4):
        for p in (9, 10, 11):
            if i == 0:
                n = vmw(("h", p))
                if p >= 10: n = min(n, vmw(("w", p)))
                A(f"s_waitcnt vmcnt({n})")
            for m in range(5):
                A(mfma(p, i, m))
                k = 5*(p-9) + m
                if pend and k >= 2 and k % 2 == 0: A(pend.pop(0))
        assert not pend, pend
        if i < 3:
            pend = [f"ds_write_b128 v{VLW}, {v(ACC+(i*5+m)*4,4)} offset:{(i*5+m)*1024}" for m in range(5)]
            if i == 0: pend.append(f"ds_write_b128 v{VAL}, {v(AT,4)}")
            if i == 1: pend.append(f"ds_write_b128 v{VAL}, {v(AT+4,4)} offset:1280")
            if i == 2: pend.append(f"ds_write_b128 v{VAL}, {v(AT+8,4)} offset:2560")
    tsn(A, 'M')
    for d in range(1, 4):
        A(f"s_add_u32 s73, s{S_WAVE}, {d}\ns_and_b32 s73, s73, 3\ns_mul_i32 s73, s73, 20480\nv_add_u32 v{1+d}, s73, v{VL}")
    A(f"""
    v_lshrrev_b32 v11, 5, v0                ; g>>1
    v_mul_u32_u24 v11, 20480, v11
    v_bfe_u32 v12, v0, 2, 3                 ; 4(g&1)+r
    v_mul_u32_u24 v12, 160, v12
    v_add_u32 v11, v11, v12
    v_and_b32 v12, 3, v0
    v_lshl_add_u32 v11, v12, 3, v11
    s_lshl_b32 s73, s{S_WAVE}, 5
    s_add_u32 s73, s73, 15360
    v_add_u32 v11, s73, v11
    s_waitcnt lgkmcnt(0)
    s_barrier
    """)
    RD = WR
    for d in range(1, 4):
        for m in range(5):
            A(f"ds_read_b128 {v(RD+((d-1)*5+m)*4,4)}, v{1+d} offset:{((3-d)*5+m)*1024}")
    AF = HB
    for m in range(5):
        A(f"ds_read_b64_tr_b16 {v(AF+2*m,2)}, v11 offset:{(m&1)*40960 + (m>>1)*1280}")
    A(f"""
    v_mul_u32_u24 v5, 1280, v{VTOK}
    v_lshrrev_b32 v6, 4, v0                 ; g
    v_and_b32 v7, 1, v6
    v_lshrrev_b32 v9, 1, v6
    v_lshlrev_b32 v7, 5, v7
    v_lshl_add_u32 v7, v9, 4, v7
    v_add_u32 v7, v5, v7
    v_lshl_add_u32 v6, v6, 3, v5
    s_mul_i32 s73, s{SDT}, 160
    """)
    F = ACC + 60
    for d in range(3):
        A(f"s_waitcnt lgkmcnt({min(15, 15 - 5*d)})")
        for q in range(20): A(f"v_add_f32 v{F+q}, v{F+q}, v{RD+d*20+q}")
    A("s_waitcnt lgkmcnt(0)")
    G, OM = VG, VG+1
    O = HB + 16
    for m in range(5):
        for h in range(2):
            A(f"""
            v_lshlrev_b32 v12, 16, v{AF+2*m+h}
            v_and_b32 v13, 0xffff0000, v{AF+2*m+h}
            v_mul_f32 v{F+4*m+2*h}, v{OM}, v{F+4*m+2*h}
            v_mul_f32 v{F+4*m+2*h+1}, v{OM}, v{F+4*m+2*h+1}
            v_fmac_f32 v{F+4*m+2*h}, v{G}, v12
            v_fmac_f32 v{F+4*m+2*h+1}, v{G}, v13
            v_cvt_pk_bf16_f32 v{O+2*m+h}, v{F+4*m+2*h}, v{F+4*m+2*h+1}
            """)
        if m & 1:
            b = O + 2*(m-1); p = m >> 1
            A(f"v_permlane16_swap_b32 v{b}, v{b+2}\nv_permlane16_swap_b32 v{b+1}, v{b+3}")
            A(f"buffer_store_dwordx4 {v(b,4)}, v7, s[20:23], s73 offen offset:{64*p}")
    A(f"buffer_store_dwordx2 {v(O+8,2)}, v6, s[20:23], s73 offen offset:128")

def body(A):
    prologue(A, 512)
    skip = CFG["skip"]
    A(f"""
    s_cmp_{'lt' if CFG['swap'] else 'ge'}_u32 s2, 256
    s_cbranch_scc1 L_half1
    s_cmp_ge_u32 s{S_J}, 30
    s_cbranch_scc1 L_prepC
    """)
    if "g1" in skip: A("s_waitcnt lgkmcnt(0)\ns_branch L_done")
    role_g1(A)
    A(f"""
    s_branch L_done
    L_prepC:
    s_lshl_b32 s69, s{S_X}, 1
    s_add_u32 s69, s69, s{S_J}
    s_sub_u32 s69, s69, 30
    """)
    if "C" in skip: A("s_waitcnt lgkmcnt(0)\ns_branch L_done")
    role_prep_w(A)
    A(f"""
    s_branch L_done
    L_half1:
    {"s_waitcnt lgkmcnt(0)" if "half1" in skip else ""}
    {"s_branch L_done" if "half1" in skip else ""}
    s_and_b32 s69, s{S_X}, 1
    s_lshl_b32 s69, s69, 2
    s_lshr_b32 s70, s{S_X}, 1
    s_add_u32 s69, s69, s70
    s_lshl_b32 s69, s69, 5
    s_cmp_ge_u32 s{S_J}, 12
    s_cbranch_scc1 L_ssm
    """)
    role_idle(A)
    A(f"""
    s_branch L_g2
    L_ssm:
    s_mul_i32 s68, s{S_X}, 20
    s_add_u32 s68, s68, s{S_J}
    s_sub_u32 s68, s68, 12
    """)
    role_ssm(A)
    A("L_g2:")
    if "g2" in skip: A("s_branch L_done")
    role_g2(A)
    A("L_done:")
    if CFG["dbg"]: ts_end(A)
    A("L_exit:\ns_endpgm")

def build(verbose=False):
    kname = NAME + "_kernel"
    A = Asm(); A.kname = kname
    A(f".globl {kname}\n.p2align 8\n.type {kname},@function\n{kname}:")
    body(A)
    lines, nn = fix_hazards(A.lines, verbose)
    head = "; @launch grid=(512,1,1) block=(256,1,1) lds=81920\n.amdgcn_target \"amdgcn-amd-amdhsa--gfx950\"\n.text\n"
    desc = f""".section .rodata,"a"
.p2align 6
.amdhsa_kernel {kname}
  .amdhsa_next_free_vgpr 256
  .amdhsa_next_free_sgpr 102
  .amdhsa_accum_offset 256
  .amdhsa_group_segment_fixed_size 0
  .amdhsa_kernarg_size 120
  .amdhsa_user_sgpr_count 2
  .amdhsa_user_sgpr_kernarg_segment_ptr 1
  .amdhsa_system_sgpr_workgroup_id_x 1
.end_amdhsa_kernel
"""
    return head + "\n".join(lines) + "\n" + desc

if __name__ == "__main__":
    out = sys.argv[1] if len(sys.argv) > 1 else "f.s"
    src = build()
    open(out, "w").write(src)
    print("written", out, len(src))
```

```python
import sys, struct
sys.path.insert(0, "work")
from asmlib import *

NAME = "gated_mix__ssm_conv_s4d__geglu_ffn__prompt"
WS_H    = 0x100000
WS_AT   = 0x800000
WS_WD   = 0xC00000
WS_G    = 0xF00000
WS_UT   = 0x1000000
WS_TS   = 0x1400000
AT_ROW = 4224
UT_CH = 10368
H_BYTES, AT_BYTES, WD_BYTES, G_BYTES, UT_BYTES = 2048*1536*2, 640*AT_ROW, 1536*640*2, 2048*8, 256*UT_CH
X_BYTES = 2048*1280
FL_BYTES = 0x14000
F_EP, F_WD, F_U, F_H, F_A = 0x0, 0x1000, 0x2000, 0x6000, 0x6000 + 240*128
P_U, P_LA, P_AI, P_CR, P_CI, P_DT, P_DS, P_BX = 36, 38, 40, 42, 44, 46, 48, 50
P_WG, P_WU, P_WD, P_GW, P_OUT, P_DBG, P_WS = 52, 54, 56, 58, 60, 62, 64
S_WAVE, S_J, S_X, S_TAG = 66, 67, 3, 1
LOG2E = 1.4426950408889634
SC = " sc1"
SPIN = 20000
CFG = dict(split=(8, 8, 6, 5, 5), wmod=" nt", wdmod=" nt", rot=(0,2,4,6,8), rotx=1, rotl=7, gostep=10, slp=6, slpH=1, nbU=3, kprio=3, nbA=3, nbB=12,
           umod="", wdelay=2, kmf0=40, warmat=2, nTA=0, nT0=1, waitT=True, tpub=2, slpI=16, marks='kuePHM', swap=False, fpos=0.6, dlyI=0, dlyC=0, iprio=3, hi0=12, wsp=8, slpU=16, cprio=3, xtouch=True, prio=True, skip=(), dbg=False, pk=True, hsc=SC, psc=SC)
def fbits(x): return "0x%08x" % struct.unpack("<I", struct.pack("<f", x))[0]

def srd(A, dst, ptr, off, nbytes):
    if off:
        A(f"s_add_u32 s{dst}, s{ptr}, {off}\ns_addc_u32 s{dst+1}, s{ptr+1}, 0")
    else:
        A(f"s_mov_b32 s{dst}, s{ptr}\ns_mov_b32 s{dst+1}, s{ptr+1}")
    A(f"s_mov_b32 s{dst+2}, {nbytes}\ns_mov_b32 s{dst+3}, 0x20000")

TSR = 92
def ts(A, i):
    if CFG["dbg"]:
        A(f"s_waitcnt lgkmcnt(0)\ns_memtime vcc\ns_waitcnt lgkmcnt(0)\ns_mov_b32 s{TSR+2+i}, vcc_lo")
def tsn(A, n):
    if n in CFG['marks']: ts(A, 1 + CFG['marks'].index(n))
def kwait(A):
    A(f"s_waitcnt lgkmcnt(0)\ns_load_dword s{S_TAG}, s[{P_WS}:{P_WS+1}], {F_EP}")
    if CFG["dbg"]:
        for i in range(1, 8): A(f"s_mov_b32 s{TSR+2+i}, 0")
def ts_end(A):
    A("s_waitcnt vmcnt(0)")
    ts(A, 7)
    A(f"s_memrealtime vcc\ns_waitcnt lgkmcnt(0)\ns_mov_b32 s{TSR+1}, vcc_lo")
    srd(A, 4, P_WS, WS_TS, 0x100000)
    A(f"s_lshl_b32 s8, s2, 2\ns_add_u32 s8, s8, s{S_WAVE}\ns_lshl_b32 s8, s8, 6\nv_mov_b32 v1, 0")
    for i in range(10): A(f"v_mov_b32 v{2+i}, s{TSR+i}")
    A("s_getreg_b32 s9, hwreg(HW_REG_HW_ID)\ns_getreg_b32 s10, hwreg(HW_REG_XCC_ID)\nv_mov_b32 v12, s9\nv_mov_b32 v13, s10")
    A("s_mov_b64 exec, 1")
    for i in range(3): A(f"buffer_store_dwordx4 {v(2+4*i,4)}, v1, s[4:7], s8 offen offset:{16*i}")

def prologue(A, nwg):
    if CFG["dbg"]: A(f"s_memrealtime s[{TSR}:{TSR+1}]\ns_memtime s[{TSR+2}:{TSR+3}]")
    if CFG.get("span"): A(f"s_memrealtime s[{TSR}:{TSR+1}]")
    A(f"""
    s_load_dwordx16 s[36:51], s[0:1], 0
    s_load_dwordx8 s[52:59], s[0:1], 64
    s_load_dwordx4 s[60:63], s[0:1], 96
    s_load_dwordx2 s[64:65], s[0:1], 112
    s_cmp_ge_u32 s2, {nwg}
    s_cbranch_scc1 L_exit
    v_lshrrev_b32 v1, 6, v0
    v_and_b32 v0, 63, v0
    v_readfirstlane_b32 s{S_WAVE}, v1
    s_and_b32 s{S_X}, s2, 7
    s_bfe_u32 s{S_J}, s2, 0x50003
    """)

def spin_tail(A, lab, done, cnt, slp=None):
    slp = CFG["slp"] if slp is None else slp
    if slp: A(f"s_sleep {slp}")
    A(f"s_sub_u32 s{cnt}, s{cnt}, 1\ns_cbranch_scc0 {lab}\n{done}:")

def mk_tag(A):
    A(f"s_mul_i32 s{S_TAG}, s{S_TAG}, 0x9e3779b1\ns_add_u32 s{S_TAG}, s{S_TAG}, 0x7f4a7c15\ns_or_b32 s{S_TAG}, s{S_TAG}, 1")

def poll(A, sfl, vt, va, cnt, preissued=False, slp=None):
    lab, done = A.label("poll"), A.label("pollok")
    A(f"s_mov_b32 s{cnt}, {12000000 // (64*(CFG['slp'] if slp is None else slp) + 600)}")
    if preissued:
        A(f"v_cmp_ne_u32 vcc, s{S_TAG}, v{vt}\ns_cbranch_vccz {done}")
    A(f"""{lab}:
    buffer_load_dword v{vt}, v{va}, s[{sfl}:{sfl+3}], 0 offen{SC}
    s_waitcnt vmcnt(0)
    v_cmp_ne_u32 vcc, s{S_TAG}, v{vt}
    s_cbranch_vccz {done}
    """)
    spin_tail(A, lab, done, cnt, slp)

def publish(A, sfl, soff, vt, vz):
    lab = A.label("pub")
    A(f"""
    s_cmp_lg_u32 s{S_WAVE}, 0
    s_cbranch_scc1 {lab}
    v_mov_b32 v{vt}, s{S_TAG}
    s_mov_b64 exec, 1
    buffer_store_dword v{vt}, v{vz}, s[{sfl}:{sfl+3}], s{soff} offen{SC}
    s_mov_b64 exec, -1
    {lab}:
    """)

IMG = 2688
HALF = "s_mov_b32 exec_lo, 0xffff\ns_mov_b32 exec_hi, 0xffff"
def p8_addr(A):
    A(f"""
    v_lshrrev_b32 v61, 5, v0                ; row&1
    v_and_b32 v62, 31, v0
    v_lshlrev_b32 v62, 4, v62               ; piece*16
    v_mul_u32_u24 v56, 1280, v61
    v_add_u32 v56, v56, v62
    v_mul_u32_u24 v57, 1296, v61
    v_add_u32 v57, v57, v62
    s_mul_i32 s70, s{S_WAVE}, 20480
    v_add_u32 v57, s70, v57
    v_bfe_u32 v58, v0, 3, 1                 ; r>>1
    v_mul_u32_u24 v58, 20480, v58
    v_bfe_u32 v59, v0, 2, 1                 ; r&1
    v_mul_u32_u24 v59, 1296, v59
    v_add_u32 v58, v58, v59
    v_lshrrev_b32 v60, 4, v0                ; g
    v_lshl_add_u32 v58, v60, 5, v58
    v_and_b32 v59, 3, v0
    v_lshl_add_u32 v58, v59, 3, v58
    s_lshl_b32 s70, s{S_WAVE}, 7
    v_add_u32 v58, s70, v58
    v_mul_u32_u24 v60, 49152, v60
    v_and_b32 v59, 15, v0
    v_lshl_add_u32 v60, v59, 4, v60
    v_lshlrev_b32 v59, 4, v0
    s_lshl_b32 s70, s{S_WAVE}, 1
    v_add_u32 v63, s70, v61
    v_mov_b32 v61, 0
    """)
def p8_load(A, dst, sr, soff, mod, va=56):
    A(f"buffer_load_dwordx4 {v(dst,4)}, v{va}, s[{sr}:{sr+3}], {soff} offen{mod}")
    A(f"buffer_load_dwordx4 {v(dst+4,4)}, v{va}, s[{sr}:{sr+3}], {soff} offen offset:512{mod}")
    A(HALF)
    A(f"buffer_load_dwordx4 {v(dst+8,4)}, v{va}, s[{sr}:{sr+3}], {soff} offen offset:1024{mod}")
    A("s_mov_b64 exec, -1")
def p8_write(A, src, slot):
    A(f"ds_write_b128 v57, {v(src,4)} offset:{slot*IMG}\nds_write_b128 v57, {v(src+4,4)} offset:{slot*IMG+512}")
    A(HALF)
    A(f"ds_write_b128 v57, {v(src+8,4)} offset:{slot*IMG+1024}\ns_mov_b64 exec, -1")
def p8_out(A, dst, slot, sr, soff, va, step):
    for q in range(3):
        A(f"ds_read_b64_tr_b16 {v(dst+4*q,2)}, v58 offset:{slot*IMG+q*512}\nds_read_b64_tr_b16 {v(dst+4*q+2,2)}, v58 offset:{slot*IMG+q*512+40960}")
    sk = A.label("p8s")
    for q in range(3):
        if q == 2: A(f"s_cmp_ge_u32 s{S_WAVE}, 2\ns_cbranch_scc1 {sk}")
        A(f"s_waitcnt lgkmcnt({4-2*q})")
        if "pstore" not in CFG["skip"]: A(f"buffer_store_dwordx4 {v(dst+4*q,4)}, v{va}, s[{sr}:{sr+3}], s{soff} offen{CFG['psc']}")
        if q < 2: A(f"s_add_u32 s{soff}, s{soff}, {step}")
    A(f"{sk}:\ns_waitcnt lgkmcnt(0)")
def p8_gate(A, X, W, sr, soff, first=True):
    A("v_mov_b32 v52, 0")
    for j in range(12): A(f"v_dot2_f32_bf16 v52, v{X+j}, v{W+j}, v52")
    for sh in (8, 4, 2, 1):
        A(f"v_add_f32_dpp v52, v52, v52 row_ror:{sh} row_mask:0xf bank_mask:0xf")
    A(f"""
    v_add_f32_dpp v52, v52, v52 row_bcast:15 row_mask:0xa bank_mask:0xf
    v_cvt_pk_bf16_f32 v52, v52, v52
    v_lshlrev_b32 v52, 16, v52
    v_mul_f32 v52, {fbits(-LOG2E)}, v52
    v_exp_f32 v52, v52
    v_add_f32 v52, 1.0, v52
    v_rcp_f32 v52, v52
    v_cvt_pk_bf16_f32 v52, v52, v52
    v_lshlrev_b32 v54, 16, v52
    v_sub_f32 v52, 1.0, v54
    v_cvt_pk_bf16_f32 v52, v52, v52
    v_lshlrev_b32 v55, 16, v52
    {"v_lshlrev_b32 v63, 3, v63" if first else ""}
    s_mov_b32 exec_lo, 0x10000
    s_mov_b32 exec_hi, 0x10000
    buffer_store_dwordx2 v[54:55], v63, s[{sr}:{sr+3}], s{soff} offen{SC}
    s_mov_b64 exec, -1
    """)
NWDF = 16
PX, PW, PO = 160, 172, 184
def u_task_issue(A, first=None):
    A(f"""
    s_mul_i32 s88, s69, 10240
    s_mul_i32 s89, s{S_WAVE}, 2560
    s_add_u32 s88, s88, s89
    s_mov_b32 s82, {X_BYTES}
    s_mov_b32 s83, 0x20000
    s_mov_b32 s86, 1280
    s_mov_b32 s87, 0x20000
    """)
    for j in range(8, 12): A(f"v_mov_b32 v{PX+j}, 0\nv_mov_b32 v{PW+j}, 0")
    kwait(A)
    if first: first()
    A(f"s_mov_b64 s[80:81], s[{P_U}:{P_U+1}]\ns_mov_b64 s[84:85], s[{P_GW}:{P_GW+1}]")
    p8_load(A, PX, 80, "s88", CFG["umod"])
    p8_load(A, PW, 84, "0", "", va=62)
def u_task_finish(A):
    p8_write(A, PX, 0)
    srd(A, 80, P_WS, WS_UT, UT_BYTES)
    srd(A, 84, P_WS, WS_G, G_BYTES)
    A(f"""
    s_mul_i32 s88, s69, {UT_CH}
    s_lshl_b32 s89, s{S_WAVE}, 10
    s_add_u32 s88, s88, s89
    s_lshl_b32 s89, s69, 6
    s_waitcnt lgkmcnt(0)
    s_barrier
    """)
    tsn(A, 'x')
    p8_out(A, PO, 0, 80, 88, 59, 4096)
    tsn(A, 'y')
    p8_gate(A, PX, PW, 84, 89)
def role_prep_w(A):
    NC = 2
    A(f"""
    s_setprio 3
    s_lshl_b32 s79, s69, 7
    s_add_u32 s79, s79, {F_WD}
    s_mul_i32 s69, s69, {4*NC}
    s_mul_i32 s70, s{S_WAVE}, {NC}
    s_add_u32 s69, s69, s70
    s_mul_i32 s72, s69, 10240
    v_lshrrev_b32 v1, 3, v0
    v_and_b32 v2, 7, v0
    v_mul_u32_u24 v3, 1280, v1
    v_lshl_add_u32 v3, v2, 4, v3
    v_mul_u32_u24 v4, 144, v1
    v_lshl_add_u32 v4, v2, 4, v4
    s_mul_i32 s70, s{S_WAVE}, 20480
    v_add_u32 v4, s70, v4
    v_bfe_u32 v5, v0, 2, 2
    v_mul_u32_u24 v5, 144, v5
    v_lshrrev_b32 v6, 4, v0                 ; g
    v_lshl_add_u32 v5, v6, 5, v5
    v_and_b32 v7, 3, v0
    v_lshl_add_u32 v5, v7, 3, v5
    v_add_u32 v5, s70, v5
    v_mul_u32_u24 v6, 49152, v6
    v_and_b32 v7, 15, v0
    v_lshl_add_u32 v6, v7, 4, v6
    v_mov_b32 v8, 0
    s_mov_b32 s6, {WD_BYTES}
    s_mov_b32 s7, 0x20000
    """)
    kwait(A)
    if CFG["dlyC"]: A(f"s_sleep {CFG['dlyC']}")
    A(f"s_mov_b64 s[4:5], s[{P_WD}:{P_WD+1}]")
    for t in range(NC):
        for it in range(10):
            A(f"buffer_load_dwordx4 {v(16+40*t+4*it,4)}, v3, s[4:7], s72 offen offset:{128*it}{CFG['wdmod']}")
        if t < NC-1: A("s_add_u32 s72, s72, 10240")
    srd(A, 8, P_WS, WS_WD, WD_BYTES)
    srd(A, 24, P_WS, 0, FL_BYTES)
    A("s_waitcnt lgkmcnt(0)")
    for t in range(NC):
        b = 16 + 40*t
        for it in range(10):
            A(f"s_waitcnt vmcnt({10*NC-1-it})\nds_write_b128 v4, {v(b+4*it,4)} offset:{1152*it}")
        if t == 0: ts(A, 1)
        A(f"""
        s_lshr_b32 s72, s69, 2
        s_lshl_b32 s72, s72, 10
        s_and_b32 s71, s69, 3
        s_lshl_b32 s71, s71, 8
        s_add_u32 s72, s72, s71
        s_add_u32 s69, s69, 1
        """)
        for it in range(10):
            A(f"ds_read_b64_tr_b16 {v(b+4*it,2)}, v5 offset:{1152*it}\nds_read_b64_tr_b16 {v(b+4*it+2,2)}, v5 offset:{1152*it+576}")
        for it in range(10):
            A(f"s_waitcnt lgkmcnt({min(15, 18-2*it)})")
            A(f"buffer_store_dwordx4 {v(b+4*it,4)}, v6, s[8:11], s72 offen{CFG['psc']}\ns_add_u32 s72, s72, {4*49152}")
    ts(A, 2)
    mk_tag(A)
    A(f"s_waitcnt vmcnt(0)\ns_barrier")
    publish(A, 24, 79, 9, 8)
    ts(A, 3)
    if not CFG["skip"]:
        ne = A.label("noep")
        A(f"""
        s_sub_u32 s70, s79, {F_WD}
        s_or_b32 s70, s70, s{S_WAVE}
        s_cmp_lg_u32 s70, 0
        s_cbranch_scc1 {ne}
        s_setprio 0
        v_lshlrev_b32 v2, 7, v0
        v_add_u32 v2, {F_H}, v2
        s_mov_b32 s71, 7
        """)
        top = A.label("ep")
        A(f"{top}:\nv_min_u32 v3, {F_H + 399*128}, v2")
        poll(A, 24, 9, 3, 72, slp=32)
        A(f"""
        v_add_u32 v2, {64*128}, v2
        s_sub_u32 s71, s71, 1
        s_cmp_lg_u32 s71, 0
        s_cbranch_scc1 {top}
        v_mov_b32 v2, s{S_TAG}
        s_mov_b64 exec, 1
        buffer_store_dword v2, v8, s[24:27], 0 offen{SC}
        s_mov_b64 exec, -1
        {ne}:
        """)

def touch(A, k, dst, va, idle):
    base = (48*k) if idle else (48*CFG["nTA"] + 80*k - 48)
    A(f"""
    s_lshl_b32 s88, s{S_J}, 2
    s_add_u32 s88, s88, s{S_WAVE}
    s_add_u32 s88, s88, {base & 0xffffffff}
    s_lshl_b32 s88, s88, 13
    buffer_load_dword v{dst}, v{va}, s[8:11], s88 offen{SC}
    """)

def polln(A, n, va, r, cnt, preissued=False, slp=None):
    lab, done = A.label("poll"), A.label("pollok")
    def chk():
        o = "".join(f"v_xor_b32 v{r+q}, s{S_TAG}, v{r+q}\n" for q in range(n))
        o += f"v_or_b32 v{r}, v{r}, v{r+1}\n" + (f"v_or3_b32 v{r}, v{r}, v{r+2}, v{r+3}\n" if n == 4 else "")
        return o + f"v_cmp_ne_u32 vcc, 0, v{r}\ns_cbranch_vccz {done}"
    A(f"s_mov_b32 s{cnt}, {SPIN}")
    if preissued: A(chk())
    A(f"{lab}:\nbuffer_load_dwordx{n} {v(r,n)}, v{va}, s[24:27], 0 offen{SC}\ns_waitcnt vmcnt(0)")
    A(chk())
    spin_tail(A, lab, done, cnt, slp)
def poll4(A, va, r, cnt, preissued=False): polln(A, 4, va, r, cnt, preissued)
def poll2w(A, va, r, cnt): polln(A, 2, va, r, cnt)

def role_idle(A):
    if CFG["prio"]: A(f"s_setprio {CFG['iprio']}")
    p8_addr(A)
    QX, QW, QO = 64, 112, 128
    A(f"""
    s_mul_i32 s70, s{S_J}, 3
    s_lshl_b32 s71, s{S_J}, 1
    s_add_u32 s71, s71, 8
    s_cmp_lt_u32 s{S_J}, 8
    s_cselect_b32 s70, s70, s71
    s_add_u32 s69, s69, s70
    s_mul_i32 s89, s{S_WAVE}, 2560
    s_mul_i32 s88, s69, 10240
    s_add_u32 s88, s88, s89
    s_lshl_b32 s70, s{S_X}, 2
    s_add_u32 s70, s70, s{S_J}
    s_lshl_b32 s70, s70, 1
    s_add_u32 s68, s70, {128 - 16}
    s_mul_i32 s90, s68, 10240
    s_add_u32 s90, s90, s89
    s_mov_b32 s82, {X_BYTES}
    s_mov_b32 s83, 0x20000
    s_mov_b32 s86, 1280
    s_mov_b32 s87, 0x20000
    s_mov_b32 s6, {WD_BYTES}
    s_mov_b32 s7, 0x20000
    """)
    for j in range(8, 12):
        for q in range(3): A(f"v_mov_b32 v{QX+12*q+j}, 0")
        A(f"v_mov_b32 v{QW+j}, 0")
    kwait(A)
    if CFG["dlyI"]: A(f"s_sleep {CFG['dlyI']}")
    A(f"s_mov_b64 s[80:81], s[{P_U}:{P_U+1}]\ns_mov_b64 s[84:85], s[{P_GW}:{P_GW+1}]\ns_mov_b64 s[4:5], s[{P_WD}:{P_WD+1}]")
    tq, jn = A.label("typq"), A.label("idj")
    def common():
        srd(A, 8, P_WS, WS_WD, WD_BYTES)
        srd(A, 24, P_WS, 0, FL_BYTES)
        srd(A, 12, P_WS, WS_UT, UT_BYTES)
        srd(A, 16, P_WS, WS_G, G_BYTES)
        A(f"""
        v_lshlrev_b32 v40, 7, v0
        v_min_u32 v41, 19, v0
        s_mul_i32 s70, s{S_X}, {20*128}
        s_add_u32 s70, s70, {F_A}
        v_lshl_add_u32 v41, v41, 7, s70
        v_min_u32 v42, 15, v0
        v_lshlrev_b32 v42, 7, v42
        v_add_u32 v42, {F_WD}, v42
        s_lshr_b32 s78, s69, 5
        s_mul_i32 s78, s78, 12
        s_add_u32 s78, s78, s{S_J}
        s_lshl_b32 s78, s78, 7
        s_add_u32 s78, s78, {F_U}
        s_mul_i32 s88, s69, {UT_CH}
        s_lshl_b32 s89, s{S_WAVE}, 10
        s_add_u32 s88, s88, s89
        s_lshl_b32 s89, s69, 6
        s_lshr_b32 s90, s68, 2
        s_lshl_b32 s90, s90, 10
        s_and_b32 s70, s68, 3
        s_lshl_b32 s70, s70, 8
        s_add_u32 s90, s90, s70
        s_mul_i32 s70, s{S_WAVE}, {4*49152}
        s_add_u32 s90, s90, s70
        """)
    def prog(nu, nw):
        p8_load(A, QW, 84, "0", "", va=62)
        for q in range(nu):
            p8_load(A, QX+12*q, 80, "s88", CFG["umod"])
            if q < nu-1: A("s_add_u32 s88, s88, 10240")
        for q in range(nw):
            p8_load(A, QX+12*(nu+q), 4, "s90", CFG["wdmod"])
            if q < nw-1: A("s_add_u32 s90, s90, 10240")
        common()
        n = nu + nw
        for q in range(n):
            A(f"s_waitcnt vmcnt({3*(n-1-q)})")
            p8_write(A, QX+12*q, q)
        tsn(A, 'p')
        A("s_waitcnt lgkmcnt(0)\ns_barrier")
        for q in range(nu):
            A(f"s_add_u32 s91, s88, {q*UT_CH}")
            p8_out(A, QO+12*q, q, 12, 91, 59, 4096)
        for q in range(nw):
            A(f"s_add_u32 s91, s90, {q*256}")
            p8_out(A, QO+12*(nu+q), nu+q, 8, 91, 60, 16*49152)
        tsn(A, 'y')
        for q in range(nu):
            p8_gate(A, QX+12*q, QW, 16, 89, q == 0)
            A("s_add_u32 s89, s89, 64")
    A(f"s_cmp_ge_u32 s{S_J}, 8\ns_cbranch_scc1 {tq}")
    prog(3, 0)
    A(f"s_branch {jn}\n{tq}:")
    prog(2, 2)
    A(f"{jn}:")
    mk_tag(A)
    A("s_waitcnt vmcnt(0)\ns_barrier")
    publish(A, 24, 78, 16, 61)
    if CFG["prio"]: A("s_setprio 0")
    tsn(A, 's')
    if "idle" in CFG["skip"]: A("s_branch L_done")
    if CFG["nTA"]:
        nw = A.label("nw")
        A(f"s_cmp_lg_u32 s{S_WAVE}, 0\ns_cbranch_scc1 {nw}")
        poll(A, 24, 16, 42, 72, slp=CFG["slpI"])
        A(f"{nw}:\ns_barrier")
        tsn(A, 'k')
        for k in range(CFG["nTA"]): touch(A, k, 237+k, 40, True)
    nw = A.label("nw")
    A(f"s_cmp_lg_u32 s{S_WAVE}, 0\ns_cbranch_scc1 {nw}")
    poll(A, 24, 16, 41 if CFG["waitT"] else 42, 72, slp=CFG["slpI"])
    A(f"{nw}:\ns_barrier")
    A("s_mov_b32 s0, 0")
    tsn(A, 'u')

C1 = -2.0 * LOG2E * 0.7978845608028654
C2 = C1 * 0.044715
def role_g1(A0):
    def A(x):
        for l in x.split("\n"):
            t = l.strip()
            if "g1m" in CFG["skip"] and t.startswith("v_mfma"): l = "s_nop 7\ns_nop 7\ns_nop 7\ns_nop 5"
            if "g1r" in CFG["skip"] and t.startswith("ds_read"): l = "s_nop 0"
            A0(l)
    A.label = A0.label
    split = CFG["split"]
    st = [sum(split[:i]) for i in range(5)]
    assert sum(split) == 32 and min(split) >= 2
    pack_c0 = sum(st[i] << (6*i) for i in range(5)); pack_nc = sum(split[i] << (6*i) for i in range(5))
    sline, sc0, snc, srot, sflag = 69, 68, 79, 72, 91
    AR, ACC0, BR = 96, 64, 32
    RS, RA, KBAR = 8, 6, 16
    SB = 80
    VW, VX0, VX1, VT0, VT1 = 28, 29, 30, 14, 15
    VTOUCH, VHINT, VZ = 31, 13, 1
    if CFG["prio"]: A("s_setprio 2")
    A(f"""
    s_mul_i32 s68, s{S_J}, 43
    s_lshr_b32 s68, s68, 8               ; slot = j/6
    s_mul_i32 s69, s68, 6
    s_sub_u32 s69, s{S_J}, s69           ; j%6
    s_lshl_b32 s71, s68, 2
    s_lshr_b32 s71, {sum(r << (4*i) for i, r in enumerate(CFG['rot']))}, s71
    s_and_b32 s71, s71, 15               ; rot[slot]
    s_mul_i32 s72, s69, {CFG['rotl']}
    s_lshr_b32 s72, s72, 2
    s_and_b32 s70, s{S_X}, 1
    s_mul_i32 s73, s70, {CFG['rotx']}
    s_add_u32 s71, s71, s73
    s_mul_i32 s73, s70, 5
    s_add_u32 s73, s73, s68
    s_mul_i32 s{sflag}, s73, {24*128}
    s_lshr_b32 s73, s{S_X}, 1
    s_mul_i32 s73, s73, 6
    s_add_u32 s69, s69, s73              ; line
    s_lshl_b32 s73, s69, 7
    s_add_u32 s{sflag}, s{sflag}, s73
    s_add_u32 s{sflag}, s{sflag}, {F_H}
    s_mul_i32 s73, s68, 6
    s_lshr_b32 s79, {pack_nc}, s73
    s_and_b32 s79, s79, 63               ; nc
    s_lshr_b32 s68, {pack_c0}, s73
    s_and_b32 s68, s68, 63
    s_lshl_b32 s70, s70, 5
    s_add_u32 s68, s68, s70              ; c0
    s_add_u32 s72, s71, s72
    s_mul_i32 s70, s72, 205
    s_lshr_b32 s70, s70, 11
    s_mul_i32 s70, s70, 10
    s_sub_u32 s72, s72, s70              ; rot
    v_lshrrev_b32 v1, 3, v0                 ; lane>>3
    v_and_b32 v13, 7, v0                    ; chunk
    s_lshr_b32 s70, s{S_WAVE}, 1
    s_lshl_b32 s70, s70, 3
    v_add_u32 v16, s70, v1
    v_mul_u32_u24 v{VW}, 3072, v16
    v_bfe_u32 v17, v0, 4, 1
    s_and_b32 s70, s{S_WAVE}, 1
    s_lshl_b32 s70, s70, 2
    v_lshl_or_b32 v17, v17, 1, s70          ; swz
    v_xor_b32 v17, v17, v13
    v_lshl_add_u32 v{VW}, v17, 4, v{VW}
    s_lshl_b32 s71, s{sline}, 7
    v_add_u32 v{VW}, s71, v{VW}             ; W voffset
    s_lshl_b32 s70, s{S_WAVE}, 3
    v_add_u32 v{VX0}, s70, v1
    v_bfe_u32 v17, v{VX0}, 1, 3             ; swz
    v_xor_b32 v17, v17, v13
    v_mul_u32_u24 v{VX0}, 1280, v{VX0}
    v_lshl_add_u32 v{VX0}, v17, 4, v{VX0}
    s_mul_i32 s73, s{sc0}, 40960
    v_add_u32 v{VX0}, s73, v{VX0}
    s_lshl_b32 s74, s{S_WAVE}, 10           ; m0 base
    """)
    for b in range(10):
        A(f"s_lshl_b32 s{SB+b}, s72, 7\ns_add_u32 s72, s72, 1\ns_cmp_ge_u32 s72, 10\ns_cselect_b32 s72, 0, s72")
    A(f"""
    s_mov_b32 s90, 40960
    v_add_u32 v{VX1}, s90, v{VX0}
    s_sub_u32 s75, s{snc}, 2
    s_cmp_gt_i32 s75, 0
    s_cselect_b32 s76, s90, 0x8000000
    v_add_u32 v10, s76, v{VX1}
    s_and_b32 s70, s{S_WAVE}, 1
    s_lshl_b32 s70, s70, 4
    v_add_u32 v{VTOUCH}, s70, v0
    v_mul_u32_u24 v{VTOUCH}, 1280, v{VTOUCH}
    s_add_u32 s73, s73, s90
    v_add_u32 v{VTOUCH}, s73, v{VTOUCH}
    v_cmp_gt_u32 vcc, 16, v0
    v_mov_b32 v16, 0x8000000
    v_cndmask_b32 v{VTOUCH}, v16, v{VTOUCH}, vcc
    s_cmp_ge_u32 s{S_WAVE}, 2
    s_cselect_b32 s77, s{SB+1}, s{SB}
    v_bfe_u32 v16, v0, 4, 1                 ; mat
    v_lshrrev_b32 v17, 5, v0                ; h
    v_bfe_u32 v18, v0, 2, 2                 ; r
    v_and_b32 v19, 1, v0                    ; c&1
    v_bfe_u32 v20, v0, 1, 1                 ; c>>1
    s_lshl_b32 s70, s{S_WAVE}, 1
    v_or_b32 v19, s70, v19                  ; chunk
    v_and_b32 v21, 2, v18
    v_lshl_or_b32 v21, v16, 2, v21          ; swz
    v_xor_b32 v19, v19, v21
    v_lshl_add_u32 v22, v17, 1, v16         ; mat + 2h
    v_lshlrev_b32 v{VT0}, 10, v22
    v_lshl_add_u32 v{VT0}, v18, 7, v{VT0}
    v_lshl_add_u32 v{VT0}, v19, 4, v{VT0}
    v_lshl_add_u32 v{VT0}, v20, 3, v{VT0}
    v_add_u32 v{VT1}, s90, v{VT0}
    v_and_b32 v16, 31, v0                   ; n
    v_bfe_u32 v18, v0, 1, 3                 ; (n>>1)&7
    v_xor_b32 v18, v18, v17
    v_lshlrev_b32 v2, 7, v16
    v_lshl_add_u32 v2, v18, 4, v2
    v_xor_b32 v3, 32, v2
    v_xor_b32 v4, 64, v2
    v_xor_b32 v5, 96, v2
    v_add_u32 v6, s90, v2
    v_add_u32 v7, s90, v3
    v_add_u32 v8, s90, v4
    v_add_u32 v9, s90, v5
    v_bfe_u32 v18, v0, 4, 1                 ; n>>4
    v_mul_u32_u24 v11, 49152, v18
    s_and_b32 s70, s{S_WAVE}, 1
    s_lshl_b32 s70, s70, 1
    v_add_u32 v18, s70, v17                 ; 2(w&1)+h
    v_lshlrev_b32 v18, 4, v18
    v_and_or_b32 v18, v0, 15, v18
    v_lshl_add_u32 v11, v18, 4, v11
    s_lshl_b32 s78, s{sline}, 1
    s_lshr_b32 s70, s{S_WAVE}, 1
    s_add_u32 s78, s78, s70
    s_lshl_b32 s78, s78, 10
    s_mul_i32 s70, s{sc0}, 98304
    s_add_u32 s78, s78, s70
    v_mov_b32 v12, {fbits(C2)}
    v_mov_b32 v{VZ}, 0
    s_mov_b32 s10, {640*3072}
    s_mov_b32 s11, 0x20000
    s_mov_b32 s6, {X_BYTES}
    s_mov_b32 s7, 0x20000
    s_mul_i32 s73, s{SB}, 1536
    s_mov_b32 m0, s74
    """)
    kwait(A)
    A(f"""
    s_bitcmp1_b32 s{S_WAVE}, 0
    s_cselect_b32 s8, s{P_WU}, s{P_WG}
    s_cselect_b32 s9, s{P_WU+1}, s{P_WG+1}
    """)
    steps = []
    for b in range(10):
        stp = [("W", b, ks) for ks in range(4)] + [("X0", b, 0)]
        if b >= 4: stp.append(("X1", b-4, 0))
        steps.append(stp)
    steps.append([("X1", b, 0) for b in range(6, 10)])
    seq = [p for stp in steps for p in stp]
    assert len(seq) == 60
    page = {p: i % 20 for i, p in enumerate(seq)}
    for g in range(4):
        for kb in range(5): seq.append(("M", g, kb))
    adv_ops = ["s_sub_u32 s75, s75, 1", "s_cmp_gt_i32 s75, 0", "s_cselect_b32 s76, s90, 0x8000000", "v_add_u32 v10, s76, v10"]
    def piece(i):
        p = seq[i]; pg = i % 20
        pre = []
        if p[0] == "W":
            if p[2] == 0: pre.append(f"s_mul_i32 s73, s{SB+p[1]}, 1536")
            else: pre.append(f"s_add_u32 s73, s73, 49152")
            iss = [f"buffer_load_dwordx4 v{VW}, s[8:11], s73 offen{CFG['wmod']} lds"]
        elif p[0] in ("X0", "X1"):
            iss = [f"buffer_load_dwordx4 v{VX0 if p[0] == 'X0' else VX1}, s[4:7], s{SB+p[1]} offen lds"]
        else:
            iss = [f"buffer_load_dwordx4 v10, s[4:7], s{SB+5*(p[1]&1)+p[2]} offen lds"]
            if (p[1] & 1) and p[2] == 4: iss += adv_ops
        pre.append(f"s_add_u32 m0, s74, {pg*4096}")
        return pre, iss
    vm = []
    def wait_for(npieces):
        pos = vm.index(npieces - 1)
        return len(vm) - 1 - pos
    for i in range(20):
        pre, iss = piece(i)
        if i == 0: pre = []
        for o in pre + iss: A(o)
        vm.append(i)
        if i == 0:
            A(f"s_mov_b32 s4, s{P_U}\ns_mov_b32 s5, s{P_U+1}")
        if i == 5:
            srd(A, 16, P_WS, WS_H, H_BYTES); srd(A, 24, P_WS, 0, FL_BYTES)
        if i == 9 and CFG["xtouch"]:
            A(f"buffer_load_dword v16, v{VTOUCH}, s[4:7], s77 offen"); vm.append(None)
    def epi_ops(acc):
        ops = []
        T = 16
        for g0 in (0, 4):
            E = range(g0, g0+4)
            ops += [f"v_mul_f32 v{T+e-g0}, v{acc+e}, v{acc+e}" for e in E]
            ops += [f"v_mul_f32 v{acc+8+e}, v{acc+e}, v{acc+8+e}" for e in E]
            ops += [f"v_fmaak_f32 v{T+e-g0}, v12, v{T+e-g0}, {fbits(C1)}" for e in E]
            ops += [f"v_mul_f32 v{T+e-g0}, v{T+e-g0}, v{acc+e}" for e in E]
            ops += [f"v_exp_f32 v{T+e-g0}, v{T+e-g0}" for e in E]
            ops += [f"v_add_f32 v{T+e-g0}, 1.0, v{T+e-g0}" for e in E]
            ops += [f"v_rcp_f32 v{T+e-g0}, v{T+e-g0}" for e in E]
            ops += [f"v_mul_f32 v{acc+8+e}, v{acc+8+e}, v{T+e-g0}" for e in E]
            ops += [f"v_cvt_pk_bf16_f32 v{24+(g0>>1)+p}, v{acc+8+g0+2*p}, v{acc+8+g0+2*p+1}" for p in range(2)]
        ops.append(f"buffer_store_dwordx4 v[24:27], v11, s[16:19], s78 offen{CFG['hsc']}")
        ops.append("s_add_u32 s78, s78, 98304")
        return ops
    def wgt(o): return 2.0 if ("v_exp" in o or "v_rcp" in o) else (0.0 if o.startswith("s_") else 1.0)
    def bread_at(pg, ks, slot):
        return f"ds_read_b128 {v(BR+4*(slot%RS),4)}, v{2+4*(pg>=10)+ks} offset:{(pg%10)*4096}"
    mf = []
    for s_, stp in enumerate(steps):
        L0 = [(0, 4*b+ks, page[(n, b, 0)], ks) for (n, b, _) in stp if n == "X0" for ks in range(4)]
        L1 = [(1, 4*b+ks, page[(n, b, 0)], ks) for (n, b, _) in stp if n == "X1" for ks in range(4)]
        if L0 and L1: L = [x for pr in zip(L0, L1) for x in pr]
        else: L = L0 + L1
        mf.append(L)
    allm = [m for L in mf for m in L]
    def frag_read(j):
        if j < 80: return bread_at(allm[j][2], allm[j][3], j)
        jj = j - 80
        return bread_at(jj >> 2, jj & 3, j)
    nissued = 20; rd = 0; mi = 0
    E = 0
    started = [False, False]
    def emit(o):
        A(o)
        if o.startswith("buffer_store"): vm.append(None)
    def issue(i):
        pre, iss = piece(i); return pre, iss
    for s_ in range(12):
        if s_ <= 10:
            E += len(steps[s_])
            A(f"s_waitcnt vmcnt({wait_for(E)}) lgkmcnt(0)\ns_barrier")
            if s_ == 0: ts(A, 1)
            trs = []
            for (n, b, ks) in steps[s_]:
                if n == "W":
                    pg = page[(n, b, ks)]
                    for hh in range(2):
                        trs.append(f"ds_read_b64_tr_b16 {v(AR+16*b+4*ks+2*hh,2)}, v{VT1 if pg >= 10 else VT0} offset:{(pg%10)*4096 + hh*512}")
            ndma = len(steps[s_-1]) if s_ else 0
            rlim = sum(len(mf[i]) for i in range(s_+1))
        else:
            trs = []; ndma = 0
        ms = mf[s_-1] if s_ else []
        dm = list(range(nissued, nissued + ndma)); nissued += ndma
        last = (s_ == 11)
        ops = epi_ops(ACC0) if last else []
        tot = sum(wgt(o) for o in ops); oi = 0; done = 0.0
        def rd_more(limit, maxn):
            nonlocal rd
            n = 0
            while rd < limit and rd < mi + RS and n < maxn:
                A(frag_read(rd)); rd += 1; n += 1
        if not ms:
            rd_more(rlim, 99)
            for o in trs: A(o)
            continue
        if not last: rd_more(rlim, 99)
        for k, (ac, kidx, pg, ks) in enumerate(ms):
            acc = ACC0 + 16*ac
            pi = dm.pop(0) if dm else None
            pre, iss = piece(pi) if pi is not None else ([], [])
            for o in pre: A(o)
            if last: A(f"s_waitcnt lgkmcnt({min(15, rd - mi - 1)})")
            A(f"v_mfma_f32_32x32x16_bf16 {v(acc,16)}, {v(AR+4*kidx,4)}, {v(BR+4*(mi%RS),4)}, {v(acc,16) if started[ac] else 0}")
            started[ac] = True; mi += 1
            if last:
                if k == 12:
                    A(f"s_waitcnt vmcnt({wait_for(65)}) lgkmcnt(0)\ns_barrier")
                lim = 80 if k < 12 else 80 + RA
                rd_more(min(lim, mi + (RS if k < 12 else RA)), 3)
                if k >= 1:
                    tgt = tot * k / 14.0
                    while oi < len(ops) and done < tgt:
                        emit(ops[oi]); done += wgt(ops[oi]); oi += 1
            else:
                rd_more(rlim, 1)
                ntr = -(-len(trs) // (len(ms) - k))
                for _ in range(ntr): A(trs.pop(0))
            for o in iss: A(o)
            if pi is not None: vm.append(pi)
        while dm:
            pi = dm.pop(0)
            pre, iss = piece(pi)
            for o in pre + iss: A(o)
            vm.append(pi)
        while oi < len(ops):
            emit(ops[oi]); oi += 1
    assert rd == 80 + RA and mi == 80 and nissued == 76, (rd, mi, nissued)
    ts(A, 2)
    tails = [A.label("g1tail"), A.label("g1tail")]
    A(f"s_sub_u32 s{snc}, s{snc}, 2\ns_cmp_eq_u32 s{snc}, 0\ns_cbranch_scc1 {tails[1]}")
    top = A.label("g1top")
    A(f"{top}:")
    cnt = RA
    for P in range(2):
        acc = ACC0 + 16*P
        ops = epi_ops(ACC0 + 16*(P ^ 1))
        tot = sum(wgt(o) for o in ops); oi = 0; done = 0.0
        issued = RA
        for k in range(40):
            kk = k % 20; stg = k // 20
            gs = 2*P + stg
            pi = None
            if kk == KBAR: pi = 60 + 5*gs
            elif kk in (0, 4, 8, 12): pi = 60 + 5*((gs - 1) & 3) + 1 + kk // 4
            pre, iss = piece(pi) if pi is not None else ([], [])
            for o in pre: A(o)
            A(f"s_waitcnt lgkmcnt({issued - k - 1})")
            A(f"v_mfma_f32_32x32x16_bf16 {v(acc,16)}, {v(AR+4*k,4)}, {v(BR+4*((40*P+k)%RS),4)}, {v(acc,16) if k else 0}")
            if kk == KBAR:
                A("s_waitcnt vmcnt(10) lgkmcnt(0)\ns_barrier")
            lim = 20*(stg+1) if kk < KBAR else 99
            n = 0
            while issued < min(k + 1 + RA, lim) and n < 3:
                j = (40*P + issued) % 80
                A(bread_at(j >> 2, j & 3, cnt)); cnt += 1; issued += 1; n += 1
            for o in iss: A(o)
            if k >= 1:
                tgt = tot * k / 38.0
                while oi < len(ops) and done < tgt:
                    A(ops[oi]); done += wgt(ops[oi]); oi += 1
        while oi < len(ops):
            A(ops[oi]); oi += 1
        A(f"s_sub_u32 s{snc}, s{snc}, 1\ns_cmp_eq_u32 s{snc}, 0\ns_cbranch_scc1 {tails[P]}" if P == 0 else
          f"s_sub_u32 s{snc}, s{snc}, 1\ns_cmp_lg_u32 s{snc}, 0\ns_cbranch_scc1 {top}")
    end = A.label("g1end")
    for P in (1, 0):
        A(f"{tails[P]}:\ns_nop 8")
        for o in epi_ops(ACC0 + 16*P): A(o)
        if P == 1: A(f"s_branch {end}")
    A(f"{end}:\ns_waitcnt vmcnt(0) lgkmcnt(0)\ns_barrier")
    if "prep" not in CFG["skip"]:
        mk_tag(A)
        publish(A, 24, sflag, 31, VZ)
    if CFG["prio"]: A("s_setprio 0")
    ts(A, 3)

def cmul(r, x, y, t, conj_out=False, pk=True):
    if pk:
        i1 = f"v_pk_mul_f32 {v(t,2)}, {v(x,2)}, {v(y,2)} op_sel_hi:[0,1]"
        i2 = f"v_pk_fma_f32 {v(r,2)}, {v(x,2)}, {v(y,2)}, {v(t,2)} op_sel:[1,1,0] op_sel_hi:[1,0,1] neg_lo:[0,1,0]"
        if conj_out: i2 += " neg_hi:[0,1,1]"
        return [i1, i2]
    o = [f"v_mul_f32 v{t}, v{x+1}, v{y+1}", f"v_mul_f32 v{t+1}, v{x+1}, v{y}"]
    if r == x or r == y:
        assert r == x and r != y
        o += [f"v_fma_f32 v{r+1}, v{x}, v{y+1}, v{t+1}" if not conj_out else f"v_fma_f32 v{r+1}, -v{x}, v{y+1}, -v{t+1}",
              f"v_fma_f32 v{r}, v{x}, v{y}, -v{t}"]
    else:
        o += [f"v_fma_f32 v{r+1}, v{x}, v{y+1}, v{t+1}" if not conj_out else f"v_fma_f32 v{r+1}, -v{x}, v{y+1}, -v{t+1}",
              f"v_fma_f32 v{r}, v{x}, v{y}, -v{t}"]
    return o

def interleave(*streams):
    out = []; idx = [0]*len(streams); tot = sum(len(x) for x in streams)
    while len(out) < tot:
        best = min((idx[i]/len(x), i) for i, x in enumerate(streams) if idx[i] < len(x))[1]
        out.append(streams[best][idx[best]]); idx[best] += 1
    return out

def role_ssm(A):
    sq = 68
    TB = 5760
    VKW, VKL, VKH = 241, 158, 159
    TBL, CS, MB = 5760, 1984, 9856
    C1_ = CS + 2
    WM = 216
    VF0, VF1, VG, VWA, VWB, VMW, VMR, VOUT = 243, 244, 245, 246, 249, 248, 250, 247
    PK = CFG["pk"]
    KA = 48
    FA, FB = 64, 96
    if CFG["prio"]: A(f"s_setprio 3")
    A(f"""
    s_lshl_b32 s70, s{sq}, 2
    s_add_u32 s70, s70, s{S_WAVE}           ; channel d
    s_mul_i32 s71, s70, 384
    s_lshl_b32 s72, s70, 1
    v_lshlrev_b32 v1, 2, v0
    v_lshlrev_b32 v2, 1, v0
    v_mov_b32 v3, 0
    s_mul_i32 s76, s{S_WAVE}, 20480
    s_mov_b32 m0, s76
    s_add_u32 s78, s76, {TBL}
    """)
    for d in (8, 12, 16, 20): A(f"s_mov_b32 s{d+2}, {640*384}\ns_mov_b32 s{d+3}, 0x20000")
    for d in (4, 32): A(f"s_mov_b32 s{d+2}, 1280\ns_mov_b32 s{d+3}, 0x20000")
    A("""
    v_and_b32 v45, 15, v0                   ; lane & 15
    v_lshrrev_b32 v40, 4, v0                ; g
    v_lshlrev_b32 v41, 3, v40               ; 8g
    v_sub_u32 v42, v41, v45
    v_add_u32 v42, 16, v42
    v_min_u32 v42, 31, v42
    """)
    BANDS = [(11, 13), (3, 5), (6, 10), (5, 11), (4, 12), (12, 13)]
    def band(q):
        lo, hi = BANDS[q]
        A(f"s_mov_b32 s79, {(((1 << (hi-lo+1)) - 1) << lo) << 16}\nv_lshrrev_b32 v43, v42, s79")
        for r in range(4):
            A(f"v_bfe_u32 v44, v43, {2*r}, 1\nv_bfe_u32 v46, v43, {2*r+1}, 1\nv_lshl_or_b32 v44, v46, 16, v44\nv_mul_u32_u24 v{WM+4*q+r}, 0x3f80, v44")
    for q in range(3): band(q)
    def params():
        pm = CFG.get("pmod", " nt")
        for d, p in ((4, P_DT), (8, P_LA)): A(f"s_mov_b64 s[{d}:{d+1}], s[{p}:{p+1}]")
        A(f"""
        buffer_load_ushort v16, v3, s[4:7], s72 offen
        buffer_load_dword v4, v1, s[8:11], s71 offen{pm}
        buffer_load_ushort v5, v2, s[8:11], s71 offen offset:256{pm}
        """)
        for d, p in ((12, P_AI), (16, P_CR), (20, P_CI), (32, P_DS)): A(f"s_mov_b64 s[{d}:{d+1}], s[{p}:{p+1}]")
        A(f"""
        buffer_load_dword v6, v1, s[12:15], s71 offen{pm}
        buffer_load_ushort v7, v2, s[12:15], s71 offen offset:256{pm}
        buffer_load_dword v8, v1, s[16:19], s71 offen{pm}
        buffer_load_ushort v9, v2, s[16:19], s71 offen offset:256{pm}
        buffer_load_dword v10, v1, s[20:23], s71 offen{pm}
        buffer_load_ushort v11, v2, s[20:23], s71 offen offset:256{pm}
        buffer_load_ushort v17, v3, s[32:35], s72 offen
        """)
    kwait(A)
    params()
    for q in range(3, 6): band(q)
    A(f"""
    s_add_u32 s79, s76, {TB}
    v_mul_u32_u24 v14, 208, v0
    v_add_u32 v{VKW}, s79, v14
    v_bfe_u32 v14, v0, 3, 1                 ; q>>1
    v_lshrrev_b32 v15, 5, v0                ; h
    v_lshlrev_b32 v14, 3, v14
    v_lshl_add_u32 v14, v15, 1, v14
    v_mul_u32_u24 v14, 208, v14
    v_add_u32 v14, s79, v14
    v_bfe_u32 v15, v0, 2, 1                 ; comp
    v_and_b32 v43, 3, v0
    v_bfe_u32 v44, v0, 4, 1
    v_lshl_add_u32 v{VKL}, v15, 6, v14
    v_lshl_add_u32 v{VKL}, v44, 5, v{VKL}
    v_lshl_add_u32 v{VKL}, v43, 3, v{VKL}
    v_lshlrev_b32 v46, 5, v15
    v_lshl_add_u32 v46, v43, 3, v46
    v_add_u32 v46, 128, v46
    v_lshlrev_b32 v15, 3, v15
    v_add_u32 v15, 192, v15
    v_cmp_eq_u32 vcc, 1, v44
    v_cndmask_b32 v46, v46, v15, vcc
    v_add_u32 v{VKH}, v14, v46
    ; conv addresses
    v_and_b32 v43, 1, v0
    v_mul_u32_u24 v43, {C1_}, v43
    v_add_u32 v43, v43, v41
    v_lshlrev_b32 v44, 1, v45
    v_sub_u32 v43, v43, v44
    v_add_u32 v{VF0}, s78, v43
    v_add_u32 v{VF1}, 1024, v{VF0}
    v_mul_u32_u24 v43, 272, v45
    v_add3_u32 v{VG}, v43, v41, s76
    v_lshl_add_u32 v43, v45, 4, v41         ; 16k + 8g
    v_add_u32 v44, 624, v43
    v_lshrrev_b32 v46, 7, v44
    v_lshlrev_b32 v46, 4, v46
    v_lshl_add_u32 v44, v44, 1, v46
    v_add_u32 v{VWA}, s76, v44
    v_add_u32 v44, 616, v43
    v_lshrrev_b32 v46, 7, v44
    v_lshlrev_b32 v46, 4, v46
    v_lshl_add_u32 v44, v44, 1, v46
    v_add_u32 v{VWB}, s76, v44
    s_add_u32 s79, s76, {MB}
    v_mul_u32_u24 v43, 528, v45
    v_lshl_add_u32 v43, v40, 4, v43
    v_add_u32 v{VMW}, s79, v43
    v_lshrrev_b32 v43, 3, v45
    v_add_u32 v43, v43, v40
    v_lshlrev_b32 v43, 4, v43
    v_lshl_add_u32 v43, v45, 6, v43
    v_add_u32 v{VMR}, s79, v43
    v_and_b32 v41, 1, v40                   ; g&1
    v_lshrrev_b32 v42, 1, v40               ; g>>1
    v_lshlrev_b32 v{VOUT}, 5, v45
    v_lshl_add_u32 v{VOUT}, v41, 9, v{VOUT}
    v_lshl_add_u32 v{VOUT}, v42, 4, v{VOUT}
    s_mul_i32 s79, s{S_WAVE}, {24*128}
    s_add_u32 s79, s79, {F_U}
    v_min_u32 v252, 23, v0
    v_lshl_add_u32 v252, v252, 7, s79
    v_min_u32 v251, 15, v0
    v_lshlrev_b32 v251, 7, v251
    v_add_u32 v251, {F_WD}, v251
    v_lshlrev_b32 v255, 7, v0
    v_lshrrev_b32 v43, 2, v0
    v_mul_u32_u24 v253, {UT_CH}, v43
    v_and_b32 v44, 3, v0
    v_lshl_add_u32 v253, v44, 4, v253
    v_mul_u32_u24 v240, 20480, v44
    v_lshl_add_u32 v240, v43, 4, v240
    s_mul_i32 s79, s{S_WAVE}, 1088
    s_add_u32 s79, s79, 1360
    v_add_u32 v240, s79, v240
    v_mov_b32 v254, 0
    """)
    for q in range(64): A(f"v_mov_b32 v{FA+q}, 0")
    srd(A, 24, P_WS, 0, FL_BYTES)
    for q in range(16): A(f"v_mov_b32 v{KA+q}, 0")
    A("s_waitcnt vmcnt(0) lgkmcnt(0)")
    tsn(A, 'q')
    Z, C = 20, 26
    A(f"""
    v_lshlrev_b32 v16, 16, v16
    v_mul_f32 v16, {fbits(LOG2E)}, v16
    v_exp_f32 v16, v16
    v_lshlrev_b32 v{Z}, 16, v4
    v_and_b32 v{Z+2}, 0xffff0000, v4
    v_lshlrev_b32 v{Z+4}, 16, v5
    v_cvt_pk_bf16_f32 v16, v16, v16
    v_lshlrev_b32 v16, 16, v16              ; dt
    """)
    for t in range(3): A(f"v_mul_f32 v{Z+2*t}, {fbits(LOG2E)}, v{Z+2*t}")
    for t in range(3): A(f"v_exp_f32 v{Z+2*t}, v{Z+2*t}")
    A(f"""
    v_lshlrev_b32 v{Z+1}, 16, v6
    v_and_b32 v{Z+3}, 0xffff0000, v6
    v_lshlrev_b32 v{Z+5}, 16, v7
    v_cvt_pk_bf16_f32 v4, v{Z}, v{Z+2}
    v_cvt_pk_bf16_f32 v5, v{Z+4}, v{Z+4}
    v_lshlrev_b32 v{Z}, 16, v4
    v_and_b32 v{Z+2}, 0xffff0000, v4
    v_lshlrev_b32 v{Z+4}, 16, v5
    v_lshlrev_b32 v{C}, 16, v8
    v_and_b32 v{C+2}, 0xffff0000, v8
    v_lshlrev_b32 v{C+4}, 16, v9
    v_lshlrev_b32 v{C+1}, 16, v10
    v_and_b32 v{C+3}, 0xffff0000, v10
    v_lshlrev_b32 v{C+5}, 16, v11
    v_add_f32 v18, v16, v16                 ; 2 dt
    v_lshlrev_b32 v242, 16, v17             ; D skip (persist)
    """)
    for q in range(6): A(f"v_mul_f32 v{Z+q}, v16, v{Z+q}")
    for q in range(6): A(f"v_mul_f32 v{C+q}, v18, v{C+q}")
    for t in range(3):
        A(f"v_mul_f32 v{Z+2*t}, {fbits(-LOG2E)}, v{Z+2*t}\nv_mul_f32 v{Z+2*t+1}, {fbits(0.15915494309189535)}, v{Z+2*t+1}")
    E1, E256, E2, E4, E8 = 32, 34, 36, 38, 40
    def exps():
        return [
            f"v_exp_f32 v4, v{Z}", f"v_fract_f32 v5, v{Z+1}", f"v_mul_f32 v6, 0x43800000, v{Z}", f"v_mul_f32 v7, 0x43800000, v{Z+1}",
            f"v_cos_f32 v8, v5", f"v_sin_f32 v9, v5", f"v_fract_f32 v7, v7", f"v_exp_f32 v6, v6", f"v_cos_f32 v10, v7", f"v_sin_f32 v11, v7",
            f"v_mul_f32 v{E1}, v4, v8", f"v_mul_f32 v{E1+1}, v4, v9", f"v_mul_f32 v{E256}, v6, v10", f"v_mul_f32 v{E256+1}, v6, v11"]
    for o in exps(): A(o)
    mk_tag(A)
    tsn(A, 'p')
    if "kgen" in CFG["skip"]: A("s_branch L_done")
    srd(A, 4, P_WS, WS_UT, UT_BYTES)
    srd(A, 32, P_WS, WS_AT, AT_BYTES)
    srd(A, 8, P_WS, WS_WD, WD_BYTES)
    A(f"""
    s_mul_i32 s72, s{S_WAVE}, {64*UT_CH}
    s_lshl_b32 s73, s{sq}, 6
    s_add_u32 s72, s72, s73
    """)
    if CFG["prio"]: A(f"s_setprio {CFG['kprio']}")
    A("v_mov_b32 v19, 0\ns_mov_b32 s77, 3")
    def utload():
        for j in range(4):
            A(f"buffer_load_dwordx4 {v(160+4*j,4)}, v253, s[4:7], s72 offen{SC}")
            if j < 3: A(f"s_add_u32 s72, s72, {16*UT_CH}")
    top = A.label("kgen")
    A(f"{top}:")
    tsn(A, 'a')
    cm = lambda r, x, y, t, conj_out=False: cmul(r, x, y, t, conj_out, PK)
    def pair(dre, dim, x, y):
        xr, xi = (f"v{x}", f"v{x+1}") if x is not None else ("1.0", "0")
        return [f"v_cvt_pk_bf16_f32 v{dre}, {xr}, v{y}", f"v_cvt_pk_bf16_f32 v{dim}, {xi}, v{y+1}"]
    wr = lambda r, off: [f"ds_write_b128 v{VKW}, {v(r,4)} offset:{off}"]
    pre = cm(E2, E1, E1, 42) + cm(E4, E2, E2, 42) + cm(E8, E4, E4, 42, True)
    LA, LB, LT, SL = 128, 130, 132, 200
    lo = pair(SL, SL+4, None, E8)
    for i in range(2, 32, 2):
        b = SL + 8*((i//8) & 1); o = (i % 8)//2
        lo += cm(LA, LB if i > 2 else E8, E8, LT) + cm(LB, LA, E8, LT) + pair(b+o, b+4+o, LA, LB)
        if o == 3: lo += wr(b, 16*(i//8)) + wr(b+4, 64 + 16*(i//8))
    HA, HB_, HT, GA, GB, GT, S1, S3 = 134, 136, 138, 140, 142, 144, 146, 154
    hi = cm(HA, C, E1, HT) + pair(S1, S1+4, C, HA)
    for o in range(1, 4): hi += cm(HB_, HA, E1, HT) + cm(HA, HB_, E1, HT) + pair(S1+o, S1+4+o, HB_, HA)
    hi += wr(S1, 128) + wr(S1+4, 160)
    hi += cm(GA, C, E256, GT) + cm(HA, GA, E2, HT) + pair(S3, S3+2, GA, HA)
    hi += cm(HB_, HA, E2, HT) + cm(HA, HB_, E2, HT) + pair(S3+1, S3+3, HB_, HA) + wr(S3, 192)
    hi += cm(GB, GA, E256, GT) + cm(HA, GB, E4, HT) + pair(S1, S1+4, GB, HA)
    hi += cm(GA, GB, E256, GT) + cm(HA, GA, E4, HT) + pair(S1+2, S1+6, GA, HA)
    hi += cm(GB, GA, E256, GT) + cm(GA, GB, E256, GT) + pair(S1+1, S1+5, GB, GA)
    hi += cm(GB, GA, E256, GT) + cm(GA, GB, E256, GT) + pair(S1+3, S1+7, GB, GA)
    hi += wr(S1, 144) + wr(S1+4, 176)
    hi += [f"v_fma_f32 v19, v{GA}, v{E256}, v19", f"v_fma_f32 v19, -v{GA+1}, v{E256+1}, v19"]
    hi0 = hi[:CFG["hi0"]]
    st = interleave(pre, hi0) + interleave(lo, hi[len(hi0):])
    if "kw" in CFG["skip"]: st = [o for o in st if not o.startswith("ds_write")]
    if "kv" in CFG["skip"]: st = [o for o in st if o.startswith("ds_write")]
    DL = CFG["wdelay"]
    out = []; pend = []; gap = 99
    for o in st:
        if o.startswith("ds_write"): pend.append([o, DL])
        else:
            out.append(o); gap += 1
            for x in pend: x[1] -= 1
            if pend and pend[0][1] <= 0 and gap >= CFG["wsp"]: out.append(pend.pop(0)[0]); gap = 0
    out += [x[0] for x in pend]
    kmf = lambda k: f"v_mfma_f32_32x32x16_bf16 {v(KA,16)}, {v(FA+4*k,4)}, {v(FB+4*k,4)}, {v(KA,16)}"
    nw = 0; k = 0
    for n, o in enumerate(out):
        if k < 8 and n >= CFG["kmf0"] + 14*k:
            A((f"s_waitcnt lgkmcnt({min(15, nw)})\n" if k == 0 else "") + kmf(k)); k += 1
        if n == int(len(out)*CFG["fpos"]) and "poll" not in CFG["skip"]:
            nf = A.label("nf")
            A(f"s_cmp_lg_u32 s77, 1\ns_cbranch_scc1 {nf}\nbuffer_load_dword v196, v252, s[24:27], 0 offen{SC}\n{nf}:")
        A(o)
        if o.startswith("ds_write"): nw += 1
    tsn(A, 'b')
    for q in range(4): A(f"v_mov_b32 v{Z+q}, v{Z+2+q}\nv_mov_b32 v{C+q}, v{C+2+q}")
    ex = exps()
    for k in range(8):
        for t in range(2):
            off = (16*(k >> 1) + 4*(k & 1) + t)*208
            A(f"ds_read_b64_tr_b16 {v(FA+4*k+2*t,2)}, v{VKH} offset:{off}\nds_read_b64_tr_b16 {v(FB+4*k+2*t,2)}, v{VKL} offset:{off}")
            for o in ex[2*k+t:2*k+t+1]: A(o)
    tsn(A, 'd')
    for nm, val in (('1', 3), ('2', 2), ('3', 1)):
        if nm in CFG['marks'] and CFG['dbg']:
            lb = A.label("cm"); A(f"s_cmp_lg_u32 s77, {val}\ns_cbranch_scc1 {lb}"); tsn(A, nm); A(f"{lb}:")
    A(f"s_sub_u32 s77, s77, 1\ns_cmp_lg_u32 s77, 0\ns_cbranch_scc1 {top}")
    if "poll" in CFG["skip"]: A("s_branch L_done")
    A("s_waitcnt vmcnt(0)")
    poll(A, 24, 196, 252, 73, preissued=True, slp=CFG["slpU"])
    utload()
    tsn(A, 'f')
    A(f"buffer_load_dword v198, v251, s[24:27], 0 offen{SC}")
    side = f"""
    v_add_f32_dpp v19, v19, v19 row_ror:8 row_mask:0xf bank_mask:0xf
    v_lshlrev_b32 v4, 4, v0
    v_add_u32 v5, s78, v4
    v_add_f32_dpp v19, v19, v19 row_ror:4 row_mask:0xf bank_mask:0xf
    v_add_u32 v4, s76, v4
    v_mov_b32 v8, 0
    v_add_f32_dpp v19, v19, v19 row_ror:2 row_mask:0xf bank_mask:0xf
    v_mov_b32 v9, 0
    v_mov_b32 v10, 0
    v_add_f32_dpp v19, v19, v19 row_ror:1 row_mask:0xf bank_mask:0xf
    v_mov_b32 v11, 0
    ds_write_b128 v5, v[8:11]
    v_add_f32_dpp v19, v19, v19 row_bcast:15 row_mask:0xa bank_mask:0xf
    ds_write_b128 v5, v[8:11] offset:1024
    v_add_f32_dpp v19, v19, v19 row_bcast:31 row_mask:0xc bank_mask:0xf
    ds_write_b128 v5, v[8:11] offset:2048
    ds_write_b128 v5, v[8:11] offset:3072
    ds_write_b128 v4, v[8:11]
    s_mov_b64 exec, 0x1fffff
    ds_write_b128 v4, v[8:11] offset:1024
    s_mov_b64 exec, -1
    v_readlane_b32 s75, v19, 63
    v_and_b32 v4, 31, v0                    ; i
    v_lshrrev_b32 v5, 5, v0                 ; h
    v_lshlrev_b32 v6, 4, v4
    v_sub_u32 v6, s78, v6                   ; base - 16 i   (seg1)
    v_lshlrev_b32 v7, 3, v5
    v_sub_u32 v7, v6, v7                    ; seg0
    v_add_u32 v12, {CS + 1084}, v7
    v_add_u32 v13, {C1_ + 566}, v6
    v_and_b32 v14, 30, v0                   ; 2 i2
    v_sub_u32 v14, s78, v14
    v_lshlrev_b32 v15, 5, v5
    v_sub_u32 v14, v14, v15                 ; base - 32h - 2 i2
    v_sub_u32 v15, v14, v15                 ; base - 64h - 2 i2
    v_and_b32 v18, 1, v0
    v_cmp_eq_u32 vcc, 1, v18
    v_mov_b32 v18, 1474
    v_mov_b32 v19, 1184
    v_mov_b32 v20, {1794 - 32}
    v_mov_b32 v24, 1280
    v_mov_b32 v25, 1376
    v_mov_b32 v26, {1632 - 32}
    v_cndmask_b32 v18, v18, v24, vcc
    v_cndmask_b32 v19, v19, v25, vcc
    v_cndmask_b32 v20, v20, v26, vcc
    v_add_u32 v18, v14, v18                 ; VA
    v_add_u32 v19, v14, v19                 ; VB
    v_add_u32 v20, v15, v20                 ; VC7
    v_add_u32 v21, 32, v20                  ; VC6
    s_add_u32 s72, s78, 1410
    s_add_u32 s73, s78, 1824
    v_mov_b32 v24, s72
    v_mov_b32 v25, s73
    v_cmp_eq_u32 vcc, 0, v0
    v_cndmask_b32 v18, v18, v24, vcc
    v_cndmask_b32 v21, v21, v25, vcc
    v_cndmask_b32 v22, v254, v242, vcc      ; skip term on lag 0
    v_cvt_pk_bf16_f32 v27, s75, s75
    """.strip().split("\n")
    side = [x.strip() for x in side]
    nw = 0; per = -(-len(side) // 8)
    for k in range(8):
        A(f"s_waitcnt lgkmcnt({min(15, 28 - 4*k + nw)})\n" + kmf(k))
        for o in side[per*k:per*(k+1)]:
            A(o)
            if o.startswith("ds_write"): nw += 1
    if CFG["prio"]: A(f"s_setprio {CFG['cprio']}")
    tsn(A, 'k')
    if "conv" in CFG["skip"]: A("s_branch L_done")
    A(f"s_mul_i32 s78, s70, {AT_ROW}")
    a0, a1, a2, a3 = KA, KA+1, KA+2, KA+3
    b0, b1, b2, b3 = KA+8, KA+9, KA+10, KA+11
    A(f"""
    v_cmp_eq_u32 vcc, 0, v0
    v_add_f32 v{a0}, v{a0}, v22
    v_cndmask_b32 v24, v{KA+4}, v{KA+6}, vcc
    v_cvt_pk_bf16_f32 v64, v{b3}, v{b2}
    v_cvt_pk_bf16_f32 v65, v{b2}, v{b2}
    v_cvt_pk_bf16_f32 v66, v{b1}, v{b0}
    v_cvt_pk_bf16_f32 v67, v{b0}, v{b0}
    v_cvt_pk_bf16_f32 v68, v{b2}, v{b1}
    v_cvt_pk_bf16_f32 v69, v{KA+4}, v{KA+4}
    v_cvt_pk_bf16_f32 v70, v24, v{KA+5}
    v_cvt_pk_bf16_f32 v71, v{KA+6}, v{KA+7}
    v_cvt_pk_bf16_f32 v72, v{a3}, v{a2}
    v_cvt_pk_bf16_f32 v73, v{a1}, v{a0}
    v_cvt_pk_bf16_f32 v74, v{a2}, v{a1}
    s_mov_b32 exec_hi, 0
    ds_write2_b32 v6, v64, v65 offset0:141 offset1:142
    ds_write2_b32 v6, v66, v67 offset0:143 offset1:144
    ds_write_b16 v6, v64 offset:{C1_ + 564}
    ds_write2_b32 v13, v65, v68 offset0:0 offset1:1
    ds_write_b32 v6, v67 offset:{C1_ + 574}
    ds_write_b16 v6, v67 offset:{C1_ + 578}
    s_mov_b32 exec_lo, 1
    ds_write2_b32 v6, v69, v69 offset0:15 offset1:16
    ds_write_b16 v6, v69 offset:{C1_ + 60}
    ds_write_b32 v6, v69 offset:{C1_ + 62}
    ds_write_b16 v6, v69 offset:{C1_ + 66}
    s_mov_b32 exec_lo, 0
    s_mov_b32 exec_hi, 1
    ds_write_b16 v6, v27 offset:1666
    ds_write_b16 v6, v27 offset:{1666 + C1_}
    s_mov_b64 exec, -1
    ds_write_b16 v7, v72 offset:1082
    ds_write_b32 v7, v74 offset:1084
    ds_write_b16_d16_hi v7, v73 offset:1088
    ds_write2_b32 v12, v72, v73 offset0:0 offset1:1
    """)
    for c in (0, C1_):
        A(f"ds_write_b16 v18, v70 offset:{c}\nds_write_b16_d16_hi v19, v70 offset:{c}\nds_write_b16 v21, v71 offset:{c}\nds_write_b16_d16_hi v20, v71 offset:{c}")
    tsn(A, 'c')
    ACC, GR, FR, WIN, F2, FX = 16, 48, 130, 142, 190, 120
    XA, XB, XU, XF = 48, 72, 96, 112
    lds = []
    def lop(txt, tag=None):
        A(txt); lds.append(tag)
    def lwait(*tags):
        pos = max(max(i for i, t in enumerate(lds) if t == tg) for tg in tags)
        A(f"s_waitcnt lgkmcnt({min(15, len(lds) - 1 - pos)})")
    def fread(dst, Y, h, tag):
        off = 2*Y - 32*h; va = VF0
        if off > 1016: off -= 1024; va = VF1
        lop(f"ds_read2_b32 {v(dst,2)}, v{va} offset0:{off//4} offset1:{off//4+1}", tag)
    def gread(j):
        z = 640 + 16*j
        lop(f"ds_read_b64 {v(GR+2*(j+33),2)}, v{VG} offset:{2*z + 16*(z >> 7)}", ("G", j))
    def aread(s_):
        r = FR + 4*(s_ % 3)
        fread(r, 544, 2*s_+1, ("A", s_)); fread(r+2, 544, 2*s_, ("A", s_))
    aread(0); aread(1)
    for j in range(4):
        if j == 0: A("s_waitcnt vmcnt(1)")
        lop(f"ds_write_b128 v240, {v(160+4*j,4)} offset:{j*272}")
    A(f"s_lshl_b32 s79, s{sq}, 7\ns_add_u32 s0, s79, {F_A}")
    A("s_waitcnt lgkmcnt(0)\ns_barrier")
    tsn(A, 'u')
    for j in range(-1, 8): gread(j)
    nTS = -(-(240 - 48*CFG["nTA"]) // 80)
    TD = [214, 215, 15]
    extra = []
    for d in (2, 3, 4):
        r = F2 + 8*(d-2)
        extra += [("F", r, 624, d, "F2"), ("F", r+2, 720, d, "F2"), ("F", r+4, 672, d, "F2"), ("F", r+6, 768, d, "F2")]
    for kt in range(6):
        extra += [("W", WIN+8*kt, VWA, kt), ("W", WIN+8*kt+4, VWB, kt)]
    m16 = lambda d, a, b, c: f"v_mfma_f32_16x16x32_bf16 {v(d,4)}, {v(a,4)}, {v(b,4)}, {c}"
    def warm():
        sk = A.label("nowarm")
        A(f"s_waitcnt vmcnt(0)\nv_cmp_ne_u32 vcc, s{S_TAG}, v198\ns_mov_b32 s77, 0\ns_cbranch_vccnz {sk}")
        for k in range(nTS): touch(A, k, TD[k], 255, False)
        A(f"s_mov_b32 s77, 1\n{sk}:")
    for s_ in range(17):
        side = []
        if s_ + 2 <= 16: side.append(lambda s_=s_: aread(s_+2))
        if s_ + 1 <= 16: side += [lambda j=-2*s_-2: gread(j), lambda j=-2*s_-3: gread(j)]
        if s_ >= 3:
            for _ in range(2):
                if extra:
                    x = extra.pop(0)
                    if x[0] == "F": side.append(lambda x=x: fread(x[1], x[2], x[3], x[4]))
                    else: side.append(lambda x=x: lop(f"ds_read_b128 {v(x[1],4)}, v{x[2]} offset:{544*x[3]}", ("W", x[3])))
        for n, T in enumerate(range(8) if s_ == 0 else range(7, -1, -1)):
            j = T - 2*s_ - 1
            if s_ == 0: lwait(("A", 0), ("G", j+1))
            elif n == 0: lwait(("A", s_))
            elif T == 1: lwait(("G", -2*s_))
            elif T == 0: lwait(("G", -2*s_-1))
            A(m16(ACC+4*T, FR+4*(s_%3), GR+2*(j+33), v(ACC+4*T,4) if s_ else 0))
            if n >= 1 and side: side.pop(0)()
        assert not side
        if s_ == CFG["warmat"]: warm()
    assert not extra
    tsn(A, 'g')
    gen = []
    for kt in range(6):
        wa, wb = WIN+8*kt, WIN+8*kt+4
        gen += [(XA+4*kt, wa, 0, kt), (XA+4*kt+2, wa, 1, kt), (XB+4*kt, wa, 2, kt), (XB+4*kt+2, wb, 2, kt)]
        if kt < 4: gen += [(XU+4*kt, wa, 3, kt), (XU+4*kt+2, wb, 4, kt), (XF+2*kt, wa, 5, kt)]
    TMP = [FR, FR+4, FR+8, 124]
    side = [lambda T=T: lop(f"ds_write_b128 v{VMW}, {v(ACC+4*T,4)} offset:{64*T}") for T in range(7, -1, -1)]
    side += [lambda T=T: lop(f"ds_read_b128 {v(ACC+4*T,4)}, v{VMR} offset:{1056*T}", ("C", T)) for T in range(8)]
    side += [lambda: fread(FX, 976, 4, "FX")]
    F3 = WIN
    for d in (4, 5, 6, 7):
        side += [lambda d=d: fread(F3+4*(d-4), 880, d, ("F3", d)), lambda d=d: fread(F3+4*(d-4)+2, 960, d, ("F3", d))]
    LAG = 3
    def cv(q):
        t = TMP[q % 4]; dst = gen[q][0]
        A(f"v_cvt_pk_bf16_f32 v{dst}, v{t}, v{t+1}\nv_cvt_pk_bf16_f32 v{dst+1}, v{t+2}, v{t+3}")
    lwait(("W", 5))
    for q, (dst, w, b, kt) in enumerate(gen):
        A(m16(TMP[q % 4], w, WM+4*b, 0))
        if q >= LAG: cv(q - LAG)
        if q >= 2 and side and (q % 4 != 3 or len(side) > 34 - q): side.pop(0)()
    A(f"v_mov_b32 v{FX+2}, 0\nv_mov_b32 v{FX+3}, 0")
    for q in range(len(gen) - LAG, len(gen)): cv(q)
    assert not side
    main = []
    for T in range(2, 8):
        for d in (2, 3, 4):
            if T - d >= 0: main += [(T, XA+4*(T-d), F2+8*(d-2), None), (T, XB+4*(T-d), F2+8*(d-2)+4, None)]
        for d in (4, 5, 6, 7):
            if T - d >= 0: main.append((T, XU+4*(T-d), F3+4*(d-4), ("F3", d)))
        if T >= 4: main.append((T, XF+2*(T-4), FX, "FX"))
    def fin(p):
        o = WM + 4*p
        r = []
        for T in (2*p, 2*p+1):
            for h in range(2): r.append(f"v_cvt_pk_bf16_f32 v{o+2*(T&1)+h}, v{ACC+4*T+2*h}, v{ACC+4*T+2*h+1}")
        r += [f"v_permlane16_swap_b32 v{o}, v{o+2}", f"v_permlane16_swap_b32 v{o+1}, v{o+3}",
              f"buffer_store_dwordx4 {v(o,4)}, v{VOUT}, s[32:35], s78 offen offset:{1024*p}{SC}"]
        return r
    seen = set(); pend = []; hold = 0
    for q, (T, a, b, tag) in enumerate(main):
        tags = []
        if ("C", T) not in seen: tags.append(("C", T)); seen.add(("C", T))
        if tag and tag not in seen: tags.append(tag); seen.add(tag)
        if tags: lwait(*tags)
        if q == 0: pend += fin(0)
        if q and main[q-1][0] != T and T in (4, 6): pend += fin(T//2 - 1); hold = 4
        A(m16(ACC+4*T, a, b, v(ACC+4*T,4)))
        if hold: hold -= 1
        elif pend: A(pend.pop(0))
    for o in pend: A(o)
    for o in fin(3): A(o)
    tsn(A, 'e')
    if CFG["prio"]: A("s_setprio 0")
    ok = A.label("warmok")
    A(f"s_cmp_lg_u32 s77, 0\ns_cbranch_scc1 {ok}")
    poll(A, 24, 196, 251, 72)
    for k in range(nTS): touch(A, k, TD[k], 255, False)
    A(f"{ok}:")

def role_g2(A):
    split = CFG["split"]
    st = [sum(split[:i]) for i in range(5)] + [32]
    slot_of = [max(s for s in range(5) if st[s] <= c) for c in range(32)]
    pk0 = [sum(slot_of[2*t] << (4*(t % 8)) for t in range(8*h, 8*h+8)) for h in range(2)]
    pk1 = [sum(slot_of[2*t+1] << (4*(t % 8)) for t in range(8*h, 8*h+8)) for h in range(2)]
    ACC, WR, HB, AT = 16, 96, 196, 244
    KO = 80
    STG, SDT = 68, 69
    VL, VK0, VK1, VF, VT, VAL, VAG, VTOK, VLW, VZ, VG = 1, 2, 3, 4, 5, 6, 7, 8, 9, 10, 14
    srd(A, 4, P_WS, WS_H, H_BYTES)
    srd(A, 8, P_WS, WS_WD, WD_BYTES)
    srd(A, 12, P_WS, WS_AT, AT_BYTES)
    srd(A, 16, P_WS, WS_G, G_BYTES)
    srd(A, 20, P_OUT, 0, X_BYTES)
    A(f"""
    s_lshr_b32 s70, s{S_J}, 3               ; r
    s_lshl_b32 s{STG}, s{S_X}, 2
    s_add_u32 s{STG}, s{STG}, s70           ; tg
    s_and_b32 s{SDT}, s{S_J}, 7             ; dt
    v_mov_b32 v{VZ}, 0
    v_lshlrev_b32 v{VL}, 4, v0
    s_mul_i32 s72, s70, 3
    s_mul_i32 s73, s{SDT}, 3
    s_lshr_b32 s73, s73, 1
    s_add_u32 s72, s72, s73
    s_cmp_ge_u32 s72, 12
    s_cselect_b32 s73, 12, 0
    s_sub_u32 s72, s72, s73                 ; rot
    """)
    for p in range(12):
        A(f"s_lshl_b32 s{KO+p}, s72, 10")
        if p < 11: A("s_add_u32 s72, s72, 1\ns_cmp_ge_u32 s72, 12\ns_cselect_b32 s72, 0, s72")
    A(f"""
    s_mul_i32 s70, s{S_WAVE}, 12288
    s_mul_i32 s71, s{STG}, {4*49152}
    s_add_u32 s71, s71, s70                 ; h base
    s_mul_i32 s72, s{SDT}, {5*49152}
    s_add_u32 s72, s72, s70
    """)
    for i in range(4):
        A(f"s_add_u32 s73, s{S_WAVE}, {1+i}\ns_and_b32 s73, s73, 3\ns_mul_i32 s73, s73, 49152\ns_add_u32 s{74+i}, s71, s73")
    WS_ = [32, 33, 34, 35, 78]
    for m in range(5): A(f"s_add_u32 s{WS_[m]}, s72, {m*49152}")
    A(f"""
    s_mul_i32 s79, s{S_WAVE}, 20480
    v_add_u32 v{VLW}, s79, v{VL}
    v_and_b32 v{VTOK}, 15, v0
    s_lshl_b32 s70, s{STG}, 6
    s_lshl_b32 s71, s{S_WAVE}, 4
    s_add_u32 s70, s70, s71
    v_add_u32 v{VTOK}, s70, v{VTOK}         ; token
    v_lshlrev_b32 v{VG}, 3, v{VTOK}
    """)
    kv = [0]
    def kaddr(p):
        r = (VK0, VK1)[kv[0] & 1]; kv[0] += 1
        A(f"v_add_u32 v{r}, s{KO+p}, v{VL}")
        return r
    def wload(dst, m, va): return f"buffer_load_dwordx4 {v(dst+4*m,4)}, v{va}, s[8:11], s{WS_[m]} offen{SC}"
    def prefetch(nb):
        plan = [(6, ACC), (7, ACC+20), (8, ACC+40), (9, HB), (0, ACC+60)] + [(1+q, WR+20*q) for q in range(5)]
        n = 0; wr = 0
        for (p, dst) in plan:
            va = kaddr(p)
            for m in range(5):
                if n >= nb: A(f"s_waitcnt vmcnt({nb-1})")
                if n == nb:
                    np_ = A.label("nopub")
                    A(f"s_barrier\ns_cmp_eq_u32 s0, 0\ns_cbranch_scc1 {np_}")
                    publish(A, 24, 0, VT, VZ)
                    A(f"{np_}:")
                while wr < 20 and wr <= n - nb:
                    q, mm = divmod(wr, 5)
                    A(f"ds_write_b128 v{VLW}, {v(plan[q][1]+4*mm,4)} offset:{wr*1024}"); wr += 1
                A(wload(dst, m, va)); n += 1
        assert wr == 20
    slow, jn = A.label("g2slow"), A.label("g2pj")
    A(f"s_cmp_lt_u32 s{S_J}, 12\ns_cbranch_scc1 {slow}")
    prefetch(CFG["nbB"])
    A(f"s_branch {jn}\n{slow}:")
    prefetch(CFG["nbA"])
    A(f"""{jn}:
    s_and_b32 s70, s{STG}, 7
    s_lshl_b32 s70, s70, 2
    s_bitcmp1_b32 s{STG}, 3
    s_mov_b32 s71, {pk0[0]}
    s_cmov_b32 s71, {pk0[1]}
    s_mov_b32 s72, {pk1[0]}
    s_cmov_b32 s72, {pk1[1]}
    s_lshr_b32 s71, s71, s70
    s_lshr_b32 s72, s72, s70
    s_and_b32 s71, s71, 15
    s_and_b32 s72, s72, 15
    s_lshr_b32 s70, s{STG}, 4
    s_mul_i32 s70, s70, 5
    s_add_u32 s71, s71, s70
    s_add_u32 s72, s72, s70
    s_mul_i32 s71, s71, {24*128}
    s_mul_i32 s72, s72, {24*128}
    v_mov_b32 v11, s71
    v_mov_b32 v12, s72
    v_cmp_gt_u32 vcc, 32, v0
    v_cndmask_b32 v11, v12, v11, vcc
    v_and_b32 v12, 31, v0
    v_min_u32 v12, 23, v12
    v_lshl_add_u32 v{VF}, v12, 7, v11
    v_add_u32 v{VF}, {F_H}, v{VF}
    v_lshrrev_b32 v11, 3, v0
    v_and_b32 v12, 7, v0
    v_mul_u32_u24 v{VAL}, 160, v11
    v_lshl_add_u32 v{VAL}, v12, 4, v{VAL}
    s_add_u32 s70, s79, 15360
    v_add_u32 v{VAL}, s70, v{VAL}
    s_lshl_b32 s70, s{S_WAVE}, 3
    v_add_u32 v11, s70, v11
    v_mul_u32_u24 v{VAG}, {AT_ROW}, v11
    v_lshl_add_u32 v{VAG}, v12, 4, v{VAG}
    v_min_u32 v13, 19, v0
    s_mul_i32 s70, s{SDT}, {20*128}
    s_add_u32 s70, s70, {F_A}
    v_lshl_add_u32 v13, v13, 7, s70         ; a flags
    s_mul_i32 s70, s{SDT}, {80*AT_ROW}
    s_lshl_b32 s71, s{STG}, 7
    s_add_u32 s70, s70, s71
    s_add_u32 s71, s70, {32*AT_ROW}
    s_add_u32 s72, s70, {64*AT_ROW}
    s_cmp_ge_u32 s{S_WAVE}, 2
    s_cselect_b32 s72, 0x8000000, s72
    s_waitcnt vmcnt(0) lgkmcnt(0)
    """)
    tsn(A, 'P')
    nw = A.label("g2nw")
    A(f"s_cmp_lg_u32 s{S_WAVE}, 0\ns_cbranch_scc1 {nw}")
    A(f"buffer_load_dword v12, v13, s[24:27], 0 offen{SC}")
    poll(A, 24, VT, VF, 73, slp=CFG['slpH'])
    poll(A, 24, 12, 13, 73, slp=CFG['slpH'], preissued=True)
    A(f"{nw}:\ns_barrier")
    tsn(A, 'H')
    vm = []
    def vmw(tag):
        pos = max(i for i, t in enumerate(vm) if t == tag)
        return len(vm) - 1 - pos
    def hloads(p):
        va = kaddr(p)
        return [(f"buffer_load_dwordx4 {v(HB+16*(p%3)+4*i,4)}, v{va}, s[4:7], s{74+i} offen{SC}", ("h", p)) for i in range(4)]
    def iss(x):
        A(x[0]); vm.append(x[1])
    for p in range(3):
        for x in hloads(p): iss(x)
    iss((f"buffer_load_dwordx2 v[{VG}:{VG+1}], v{VG}, s[16:19], 0 offen{SC}", "g"))
    for r in range(3):
        iss((f"buffer_load_dwordx4 {v(AT+4*r,4)}, v{VAG}, s[12:15], s{70+r} offen{SC}", "at"))
    aslot = {0: ACC+60, 1: WR, 2: WR+20, 3: WR+40, 4: WR+60, 5: WR+80, 6: WR+40, 7: WR+60, 8: WR+80, 9: WR+40, 10: WR, 11: WR+20}
    def mfma(p, i, m):
        acc = v(ACC + (i*5+m)*4, 4)
        return f"v_mfma_f32_16x16x32_bf16 {acc}, {v(aslot[p]+4*m,4)}, {v(HB+16*(p%3)+4*i,4)}, {acc if p else 0}"
    lds = []
    for p in range(9):
        w = f"s_waitcnt vmcnt({vmw(('h', p))})"
        if p >= 6:
            pos = max(i for i, t in enumerate(lds) if t == p)
            w += f" lgkmcnt({len(lds) - 1 - pos})"
        A(w)
        side = {}
        def add(k, x): side.setdefault(k, []).append(x)
        va = None
        hl = None
        if p in (2, 3):
            q = p + 8
            add(0, ("K", q))
            for m in range(5): add(1 + 3*m, ("WL", q, m))
        if 4 <= p <= 7:
            q = p + 2
            for m in range(5): add(1 + 3*m, ("SR", q, m))
        wva = None
        hq = []
        for i in range(4):
            for m in range(5):
                k = 5*i + m
                A(mfma(p, i, m))
                for x in side.get(k, []):
                    if x[0] == "K": wva = kaddr(x[1])
                    elif x[0] == "WL": iss((wload(aslot[x[1]], x[2], wva), ("w", x[1])))
                    elif x[0] == "SR":
                        A(f"ds_read_b128 {v(aslot[x[1]]+4*x[2],4)}, v{VLW} offset:{((x[1]-6)*5+x[2])*1024}"); lds.append(x[1])
                if k == 3:
                    A(f"v_add_u32 v{VF}, s{KO+p+3}, v{VL}")
                if m == 4:
                    iss((f"buffer_load_dwordx4 {v(HB+16*(p%3)+4*i,4)}, v{VF}, s[4:7], s{74+i} offen{SC}", ("h", p+3)))
    pend = []
    A("s_waitcnt lgkmcnt(0)")
    for i in range(4):
        for p in (9, 10, 11):
            if i == 0:
                n = vmw(("h", p))
                if p >= 10: n = min(n, vmw(("w", p)))
                A(f"s_waitcnt vmcnt({n})")
            for m in range(5):
                A(mfma(p, i, m))
                k = 5*(p-9) + m
                if pend and k >= 2 and k % 2 == 0: A(pend.pop(0))
        assert not pend, pend
        if i < 3:
            pend = [f"ds_write_b128 v{VLW}, {v(ACC+(i*5+m)*4,4)} offset:{(i*5+m)*1024}" for m in range(5)]
            if i == 0: pend.append(f"ds_write_b128 v{VAL}, {v(AT,4)}")
            if i == 1: pend.append(f"ds_write_b128 v{VAL}, {v(AT+4,4)} offset:1280")
            if i == 2: pend.append(f"ds_write_b128 v{VAL}, {v(AT+8,4)} offset:2560")
    tsn(A, 'M')
    for d in range(1, 4):
        A(f"s_add_u32 s73, s{S_WAVE}, {d}\ns_and_b32 s73, s73, 3\ns_mul_i32 s73, s73, 20480\nv_add_u32 v{1+d}, s73, v{VL}")
    A(f"""
    v_lshrrev_b32 v11, 5, v0                ; g>>1
    v_mul_u32_u24 v11, 20480, v11
    v_bfe_u32 v12, v0, 2, 3                 ; 4(g&1)+r
    v_mul_u32_u24 v12, 160, v12
    v_add_u32 v11, v11, v12
    v_and_b32 v12, 3, v0
    v_lshl_add_u32 v11, v12, 3, v11
    s_lshl_b32 s73, s{S_WAVE}, 5
    s_add_u32 s73, s73, 15360
    v_add_u32 v11, s73, v11
    s_waitcnt lgkmcnt(0)
    s_barrier
    """)
    RD = WR
    for d in range(1, 4):
        for m in range(5):
            A(f"ds_read_b128 {v(RD+((d-1)*5+m)*4,4)}, v{1+d} offset:{((3-d)*5+m)*1024}")
    AF = HB
    for m in range(5):
        A(f"ds_read_b64_tr_b16 {v(AF+2*m,2)}, v11 offset:{(m&1)*40960 + (m>>1)*1280}")
    A(f"""
    v_mul_u32_u24 v5, 1280, v{VTOK}
    v_lshrrev_b32 v6, 4, v0                 ; g
    v_and_b32 v7, 1, v6
    v_lshrrev_b32 v9, 1, v6
    v_lshlrev_b32 v7, 5, v7
    v_lshl_add_u32 v7, v9, 4, v7
    v_add_u32 v7, v5, v7
    v_lshl_add_u32 v6, v6, 3, v5
    s_mul_i32 s73, s{SDT}, 160
    """)
    F = ACC + 60
    for d in range(3):
        A(f"s_waitcnt lgkmcnt({min(15, 15 - 5*d)})")
        for q in range(20): A(f"v_add_f32 v{F+q}, v{F+q}, v{RD+d*20+q}")
    A("s_waitcnt lgkmcnt(0)")
    G, OM = VG, VG+1
    O = HB + 16
    for m in range(5):
        for h in range(2):
            A(f"""
            v_lshlrev_b32 v12, 16, v{AF+2*m+h}
            v_and_b32 v13, 0xffff0000, v{AF+2*m+h}
            v_mul_f32 v{F+4*m+2*h}, v{OM}, v{F+4*m+2*h}
            v_mul_f32 v{F+4*m+2*h+1}, v{OM}, v{F+4*m+2*h+1}
            v_fmac_f32 v{F+4*m+2*h}, v{G}, v12
            v_fmac_f32 v{F+4*m+2*h+1}, v{G}, v13
            v_cvt_pk_bf16_f32 v{O+2*m+h}, v{F+4*m+2*h}, v{F+4*m+2*h+1}
            """)
        if m & 1:
            b = O + 2*(m-1); p = m >> 1
            A(f"v_permlane16_swap_b32 v{b}, v{b+2}\nv_permlane16_swap_b32 v{b+1}, v{b+3}")
            A(f"buffer_store_dwordx4 {v(b,4)}, v7, s[20:23], s73 offen offset:{64*p}")
    A(f"buffer_store_dwordx2 {v(O+8,2)}, v6, s[20:23], s73 offen offset:128")

def body(A):
    prologue(A, 512)
    skip = CFG["skip"]
    A(f"""
    s_cmp_{'lt' if CFG['swap'] else 'ge'}_u32 s2, 256
    s_cbranch_scc1 L_half1
    s_cmp_ge_u32 s{S_J}, 30
    s_cbranch_scc1 L_prepC
    """)
    if "g1" in skip: A("s_waitcnt lgkmcnt(0)\ns_branch L_done")
    role_g1(A)
    A(f"""
    s_branch L_done
    L_prepC:
    s_lshl_b32 s69, s{S_X}, 1
    s_add_u32 s69, s69, s{S_J}
    s_sub_u32 s69, s69, 30
    """)
    if "C" in skip: A("s_waitcnt lgkmcnt(0)\ns_branch L_done")
    role_prep_w(A)
    A(f"""
    s_branch L_done
    L_half1:
    {"s_waitcnt lgkmcnt(0)" if "half1" in skip else ""}
    {"s_branch L_done" if "half1" in skip else ""}
    s_and_b32 s69, s{S_X}, 1
    s_lshl_b32 s69, s69, 2
    s_lshr_b32 s70, s{S_X}, 1
    s_add_u32 s69, s69, s70
    s_lshl_b32 s69, s69, 5
    s_cmp_ge_u32 s{S_J}, 12
    s_cbranch_scc1 L_ssm
    """)
    role_idle(A)
    A(f"""
    s_branch L_g2
    L_ssm:
    s_mul_i32 s68, s{S_X}, 20
    s_add_u32 s68, s68, s{S_J}
    s_sub_u32 s68, s68, 12
    """)
    role_ssm(A)
    A("L_g2:")
    if "g2" in skip: A("s_branch L_done")
    role_g2(A)
    A("L_done:")
    if CFG["dbg"]: ts_end(A)
    if CFG.get("span"):
        A("s_waitcnt vmcnt(0)\ns_memrealtime vcc\ns_waitcnt lgkmcnt(0)")
        srd(A, 4, P_DBG, 0, 256)
        A(f"""
        s_not_b32 s8, s{TSR}
        v_mov_b32 v1, 0
        v_mov_b32 v2, s8
        v_mov_b32 v3, vcc_lo
        v_mov_b32 v4, s{TSR}
        s_lshr_b32 s9, s2, 8
        s_cmp_ge_u32 s{S_J}, 12
        s_cselect_b32 s10, 2, 0
        s_add_u32 s9, s9, s10
        s_lshl_b32 s9, s9, 2
        s_mov_b64 exec, 1
        buffer_atomic_umax v2, v1, s[4:7], 0 offen
        buffer_atomic_umax v3, v1, s[4:7], 0 offen offset:4
        buffer_atomic_umax v4, v1, s[4:7], 0 offen offset:8
        buffer_atomic_umax v3, v1, s[4:7], s9 offen offset:16
        """)
    A("L_exit:\ns_endpgm")

def build(verbose=False):
    kname = NAME + "_kernel"
    A = Asm(); A.kname = kname
    A(f".globl {kname}\n.p2align 8\n.type {kname},@function\n{kname}:")
    body(A)
    lines, nn = fix_hazards(A.lines, verbose)
    head = "; @launch grid=(512,1,1) block=(256,1,1) lds=81920\n.amdgcn_target \"amdgcn-amd-amdhsa--gfx950\"\n.text\n"
    desc = f""".section .rodata,"a"
.p2align 6
.amdhsa_kernel {kname}
  .amdhsa_next_free_vgpr 256
  .amdhsa_next_free_sgpr 102
  .amdhsa_accum_offset 256
  .amdhsa_group_segment_fixed_size 0
  .amdhsa_kernarg_size 120
  .amdhsa_user_sgpr_count 2
  .amdhsa_user_sgpr_kernarg_segment_ptr 1
  .amdhsa_system_sgpr_workgroup_id_x 1
.end_amdhsa_kernel
"""
    return head + "\n".join(lines) + "\n" + desc

if __name__ == "__main__":
    out = sys.argv[1] if len(sys.argv) > 1 else "f.s"
    src = build()
    open(out, "w").write(src)
    print("written", out, len(src))
```

```python
import sys, struct
sys.path.insert(0, "work")
from asmlib import *

NAME = "gated_mix__ssm_conv_s4d__geglu_ffn__prompt"
WS_H    = 0x100000
WS_AT   = 0x800000
WS_WD   = 0xC00000
WS_G    = 0xF00000
WS_UT   = 0x1000000
WS_TS   = 0x1400000
AT_ROW = 4224
UT_CH = 10368
H_BYTES, AT_BYTES, WD_BYTES, G_BYTES, UT_BYTES = 2048*1536*2, 640*AT_ROW, 1536*640*2, 2048*8, 256*UT_CH
X_BYTES = 2048*1280
FL_BYTES = 0x14000
F_EP, F_WD, F_U, F_H, F_A = 0x0, 0x1000, 0x2000, 0x6000, 0x6000 + 240*128
P_U, P_LA, P_AI, P_CR, P_CI, P_DT, P_DS, P_BX = 36, 38, 40, 42, 44, 46, 48, 50
P_WG, P_WU, P_WD, P_GW, P_OUT, P_DBG, P_WS = 52, 54, 56, 58, 60, 62, 64
S_WAVE, S_J, S_X, S_TAG = 66, 67, 3, 1
LOG2E = 1.4426950408889634
SC = " sc1"
SPIN = 20000
CFG = dict(split=(8, 8, 6, 5, 5), wmod=" nt", wdmod=" nt", rot=(0,2,4,6,8), rotx=1, rotl=7, gostep=10, slp=6, slpH=1, nbU=3, kprio=3, nbA=3, nbB=12,
           umod="", wdelay=2, kmf0=40, warmat=2, nTA=0, nT0=1, waitT=True, tpub=2, slpI=16, marks='kuePHM', swap=False, fpos=0.6, dlyI=0, dlyC=0, iprio=3, hi0=12, wsp=8, slpU=16, cprio=3, xtouch=True, prio=True, skip=(), dbg=False, pk=True, hsc=SC, psc=SC)
def fbits(x): return "0x%08x" % struct.unpack("<I", struct.pack("<f", x))[0]

def srd(A, dst, ptr, off, nbytes):
    if off:
        A(f"s_add_u32 s{dst}, s{ptr}, {off}\ns_addc_u32 s{dst+1}, s{ptr+1}, 0")
    else:
        A(f"s_mov_b32 s{dst}, s{ptr}\ns_mov_b32 s{dst+1}, s{ptr+1}")
    A(f"s_mov_b32 s{dst+2}, {nbytes}\ns_mov_b32 s{dst+3}, 0x20000")

TSR = 92
def ts(A, i):
    if CFG["dbg"]:
        A(f"s_waitcnt lgkmcnt(0)\ns_memtime vcc\ns_waitcnt lgkmcnt(0)\ns_mov_b32 s{TSR+2+i}, vcc_lo")
def tsn(A, n):
    if n in CFG['marks']: ts(A, 1 + CFG['marks'].index(n))
def kwait(A):
    A(f"s_waitcnt lgkmcnt(0)\ns_load_dword s{S_TAG}, s[{P_WS}:{P_WS+1}], {F_EP}")
    if CFG["dbg"]:
        for i in range(1, 8): A(f"s_mov_b32 s{TSR+2+i}, 0")
def ts_end(A):
    A("s_waitcnt vmcnt(0)")
    ts(A, 7)
    A(f"s_memrealtime vcc\ns_waitcnt lgkmcnt(0)\ns_mov_b32 s{TSR+1}, vcc_lo")
    srd(A, 4, P_WS, WS_TS, 0x100000)
    A(f"s_lshl_b32 s8, s2, 2\ns_add_u32 s8, s8, s{S_WAVE}\ns_lshl_b32 s8, s8, 6\nv_mov_b32 v1, 0")
    for i in range(10): A(f"v_mov_b32 v{2+i}, s{TSR+i}")
    A("s_getreg_b32 s9, hwreg(HW_REG_HW_ID)\ns_getreg_b32 s10, hwreg(HW_REG_XCC_ID)\nv_mov_b32 v12, s9\nv_mov_b32 v13, s10")
    A("s_mov_b64 exec, 1")
    for i in range(3): A(f"buffer_store_dwordx4 {v(2+4*i,4)}, v1, s[4:7], s8 offen offset:{16*i}")

def prologue(A, nwg):
    if CFG["dbg"]: A(f"s_memrealtime s[{TSR}:{TSR+1}]\ns_memtime s[{TSR+2}:{TSR+3}]")
    if CFG.get("span"): A(f"s_memrealtime s[{TSR}:{TSR+1}]")
    A(f"""
    s_load_dwordx16 s[36:51], s[0:1], 0
    s_load_dwordx8 s[52:59], s[0:1], 64
    s_load_dwordx4 s[60:63], s[0:1], 96
    s_load_dwordx2 s[64:65], s[0:1], 112
    s_cmp_ge_u32 s2, {nwg}
    s_cbranch_scc1 L_exit
    v_lshrrev_b32 v1, 6, v0
    v_and_b32 v0, 63, v0
    v_readfirstlane_b32 s{S_WAVE}, v1
    s_and_b32 s{S_X}, s2, 7
    s_bfe_u32 s{S_J}, s2, 0x50003
    """)

def spin_tail(A, lab, done, cnt, slp=None):
    slp = CFG["slp"] if slp is None else slp
    if slp: A(f"s_sleep {slp}")
    A(f"s_sub_u32 s{cnt}, s{cnt}, 1\ns_cbranch_scc0 {lab}\n{done}:")

def mk_tag(A):
    A(f"s_mul_i32 s{S_TAG}, s{S_TAG}, 0x9e3779b1\ns_add_u32 s{S_TAG}, s{S_TAG}, 0x7f4a7c15\ns_or_b32 s{S_TAG}, s{S_TAG}, 1")

def poll(A, sfl, vt, va, cnt, preissued=False, slp=None):
    lab, done = A.label("poll"), A.label("pollok")
    A(f"s_mov_b32 s{cnt}, {12000000 // (64*(CFG['slp'] if slp is None else slp) + 600)}")
    if preissued:
        A(f"v_cmp_ne_u32 vcc, s{S_TAG}, v{vt}\ns_cbranch_vccz {done}")
    A(f"""{lab}:
    buffer_load_dword v{vt}, v{va}, s[{sfl}:{sfl+3}], 0 offen{SC}
    s_waitcnt vmcnt(0)
    v_cmp_ne_u32 vcc, s{S_TAG}, v{vt}
    s_cbranch_vccz {done}
    """)
    spin_tail(A, lab, done, cnt, slp)

def publish(A, sfl, soff, vt, vz):
    lab = A.label("pub")
    A(f"""
    s_cmp_lg_u32 s{S_WAVE}, 0
    s_cbranch_scc1 {lab}
    v_mov_b32 v{vt}, s{S_TAG}
    s_mov_b64 exec, 1
    buffer_store_dword v{vt}, v{vz}, s[{sfl}:{sfl+3}], s{soff} offen{SC}
    s_mov_b64 exec, -1
    {lab}:
    """)

IMG = 2688
HALF = "s_mov_b32 exec_lo, 0xffff\ns_mov_b32 exec_hi, 0xffff"
def p8_addr(A):
    A(f"""
    v_lshrrev_b32 v61, 5, v0                ; row&1
    v_and_b32 v62, 31, v0
    v_lshlrev_b32 v62, 4, v62               ; piece*16
    v_mul_u32_u24 v56, 1280, v61
    v_add_u32 v56, v56, v62
    v_mul_u32_u24 v57, 1296, v61
    v_add_u32 v57, v57, v62
    s_mul_i32 s70, s{S_WAVE}, 20480
    v_add_u32 v57, s70, v57
    v_bfe_u32 v58, v0, 3, 1                 ; r>>1
    v_mul_u32_u24 v58, 20480, v58
    v_bfe_u32 v59, v0, 2, 1                 ; r&1
    v_mul_u32_u24 v59, 1296, v59
    v_add_u32 v58, v58, v59
    v_lshrrev_b32 v60, 4, v0                ; g
    v_lshl_add_u32 v58, v60, 5, v58
    v_and_b32 v59, 3, v0
    v_lshl_add_u32 v58, v59, 3, v58
    s_lshl_b32 s70, s{S_WAVE}, 7
    v_add_u32 v58, s70, v58
    v_mul_u32_u24 v60, 49152, v60
    v_and_b32 v59, 15, v0
    v_lshl_add_u32 v60, v59, 4, v60
    v_lshlrev_b32 v59, 4, v0
    s_lshl_b32 s70, s{S_WAVE}, 1
    v_add_u32 v63, s70, v61
    v_mov_b32 v61, 0
    """)
def p8_load(A, dst, sr, soff, mod, va=56):
    A(f"buffer_load_dwordx4 {v(dst,4)}, v{va}, s[{sr}:{sr+3}], {soff} offen{mod}")
    A(f"buffer_load_dwordx4 {v(dst+4,4)}, v{va}, s[{sr}:{sr+3}], {soff} offen offset:512{mod}")
    A(HALF)
    A(f"buffer_load_dwordx4 {v(dst+8,4)}, v{va}, s[{sr}:{sr+3}], {soff} offen offset:1024{mod}")
    A("s_mov_b64 exec, -1")
def p8_write(A, src, slot):
    A(f"ds_write_b128 v57, {v(src,4)} offset:{slot*IMG}\nds_write_b128 v57, {v(src+4,4)} offset:{slot*IMG+512}")
    A(HALF)
    A(f"ds_write_b128 v57, {v(src+8,4)} offset:{slot*IMG+1024}\ns_mov_b64 exec, -1")
def p8_out(A, dst, slot, sr, soff, va, step):
    for q in range(3):
        A(f"ds_read_b64_tr_b16 {v(dst+4*q,2)}, v58 offset:{slot*IMG+q*512}\nds_read_b64_tr_b16 {v(dst+4*q+2,2)}, v58 offset:{slot*IMG+q*512+40960}")
    sk = A.label("p8s")
    for q in range(3):
        if q == 2: A(f"s_cmp_ge_u32 s{S_WAVE}, 2\ns_cbranch_scc1 {sk}")
        A(f"s_waitcnt lgkmcnt({4-2*q})")
        if "pstore" not in CFG["skip"]: A(f"buffer_store_dwordx4 {v(dst+4*q,4)}, v{va}, s[{sr}:{sr+3}], s{soff} offen{CFG['psc']}")
        if q < 2: A(f"s_add_u32 s{soff}, s{soff}, {step}")
    A(f"{sk}:\ns_waitcnt lgkmcnt(0)")
def p8_gate(A, X, W, sr, soff, first=True):
    A("v_mov_b32 v52, 0")
    for j in range(12): A(f"v_dot2_f32_bf16 v52, v{X+j}, v{W+j}, v52")
    for sh in (8, 4, 2, 1):
        A(f"v_add_f32_dpp v52, v52, v52 row_ror:{sh} row_mask:0xf bank_mask:0xf")
    A(f"""
    v_add_f32_dpp v52, v52, v52 row_bcast:15 row_mask:0xa bank_mask:0xf
    v_cvt_pk_bf16_f32 v52, v52, v52
    v_lshlrev_b32 v52, 16, v52
    v_mul_f32 v52, {fbits(-LOG2E)}, v52
    v_exp_f32 v52, v52
    v_add_f32 v52, 1.0, v52
    v_rcp_f32 v52, v52
    v_cvt_pk_bf16_f32 v52, v52, v52
    v_lshlrev_b32 v54, 16, v52
    v_sub_f32 v52, 1.0, v54
    v_cvt_pk_bf16_f32 v52, v52, v52
    v_lshlrev_b32 v55, 16, v52
    {"v_lshlrev_b32 v63, 3, v63" if first else ""}
    s_mov_b32 exec_lo, 0x10000
    s_mov_b32 exec_hi, 0x10000
    buffer_store_dwordx2 v[54:55], v63, s[{sr}:{sr+3}], s{soff} offen{SC}
    s_mov_b64 exec, -1
    """)
NWDF = 16
PX, PW, PO = 160, 172, 184
def u_task_issue(A, first=None):
    A(f"""
    s_mul_i32 s88, s69, 10240
    s_mul_i32 s89, s{S_WAVE}, 2560
    s_add_u32 s88, s88, s89
    s_mov_b32 s82, {X_BYTES}
    s_mov_b32 s83, 0x20000
    s_mov_b32 s86, 1280
    s_mov_b32 s87, 0x20000
    """)
    for j in range(8, 12): A(f"v_mov_b32 v{PX+j}, 0\nv_mov_b32 v{PW+j}, 0")
    kwait(A)
    if first: first()
    A(f"s_mov_b64 s[80:81], s[{P_U}:{P_U+1}]\ns_mov_b64 s[84:85], s[{P_GW}:{P_GW+1}]")
    p8_load(A, PX, 80, "s88", CFG["umod"])
    p8_load(A, PW, 84, "0", "", va=62)
def u_task_finish(A):
    p8_write(A, PX, 0)
    srd(A, 80, P_WS, WS_UT, UT_BYTES)
    srd(A, 84, P_WS, WS_G, G_BYTES)
    A(f"""
    s_mul_i32 s88, s69, {UT_CH}
    s_lshl_b32 s89, s{S_WAVE}, 10
    s_add_u32 s88, s88, s89
    s_lshl_b32 s89, s69, 6
    s_waitcnt lgkmcnt(0)
    s_barrier
    """)
    tsn(A, 'x')
    p8_out(A, PO, 0, 80, 88, 59, 4096)
    tsn(A, 'y')
    p8_gate(A, PX, PW, 84, 89)
def role_prep_w(A):
    NC = 2
    A(f"""
    s_setprio 3
    s_lshl_b32 s79, s69, 7
    s_add_u32 s79, s79, {F_WD}
    s_mul_i32 s69, s69, {4*NC}
    s_mul_i32 s70, s{S_WAVE}, {NC}
    s_add_u32 s69, s69, s70
    s_mul_i32 s72, s69, 10240
    v_lshrrev_b32 v1, 3, v0
    v_and_b32 v2, 7, v0
    v_mul_u32_u24 v3, 1280, v1
    v_lshl_add_u32 v3, v2, 4, v3
    v_mul_u32_u24 v4, 144, v1
    v_lshl_add_u32 v4, v2, 4, v4
    s_mul_i32 s70, s{S_WAVE}, 20480
    v_add_u32 v4, s70, v4
    v_bfe_u32 v5, v0, 2, 2
    v_mul_u32_u24 v5, 144, v5
    v_lshrrev_b32 v6, 4, v0                 ; g
    v_lshl_add_u32 v5, v6, 5, v5
    v_and_b32 v7, 3, v0
    v_lshl_add_u32 v5, v7, 3, v5
    v_add_u32 v5, s70, v5
    v_mul_u32_u24 v6, 49152, v6
    v_and_b32 v7, 15, v0
    v_lshl_add_u32 v6, v7, 4, v6
    v_mov_b32 v8, 0
    s_mov_b32 s6, {WD_BYTES}
    s_mov_b32 s7, 0x20000
    """)
    kwait(A)
    if CFG["dlyC"]: A(f"s_sleep {CFG['dlyC']}")
    A(f"s_mov_b64 s[4:5], s[{P_WD}:{P_WD+1}]")
    for t in range(NC):
        for it in range(10):
            A(f"buffer_load_dwordx4 {v(16+40*t+4*it,4)}, v3, s[4:7], s72 offen offset:{128*it}{CFG['wdmod']}")
        if t < NC-1: A("s_add_u32 s72, s72, 10240")
    srd(A, 8, P_WS, WS_WD, WD_BYTES)
    srd(A, 24, P_WS, 0, FL_BYTES)
    A("s_waitcnt lgkmcnt(0)")
    for t in range(NC):
        b = 16 + 40*t
        for it in range(10):
            A(f"s_waitcnt vmcnt({10*NC-1-it})\nds_write_b128 v4, {v(b+4*it,4)} offset:{1152*it}")
        if t == 0: ts(A, 1)
        A(f"""
        s_lshr_b32 s72, s69, 2
        s_lshl_b32 s72, s72, 10
        s_and_b32 s71, s69, 3
        s_lshl_b32 s71, s71, 8
        s_add_u32 s72, s72, s71
        s_add_u32 s69, s69, 1
        """)
        for it in range(10):
            A(f"ds_read_b64_tr_b16 {v(b+4*it,2)}, v5 offset:{1152*it}\nds_read_b64_tr_b16 {v(b+4*it+2,2)}, v5 offset:{1152*it+576}")
        for it in range(10):
            A(f"s_waitcnt lgkmcnt({min(15, 18-2*it)})")
            A(f"buffer_store_dwordx4 {v(b+4*it,4)}, v6, s[8:11], s72 offen{CFG['psc']}\ns_add_u32 s72, s72, {4*49152}")
    ts(A, 2)
    mk_tag(A)
    A(f"s_waitcnt vmcnt(0)\ns_barrier")
    publish(A, 24, 79, 9, 8)
    ts(A, 3)
    if not CFG["skip"]:
        ne = A.label("noep")
        A(f"""
        s_sub_u32 s70, s79, {F_WD}
        s_or_b32 s70, s70, s{S_WAVE}
        s_cmp_lg_u32 s70, 0
        s_cbranch_scc1 {ne}
        s_setprio 0
        v_lshlrev_b32 v2, 7, v0
        v_add_u32 v2, {F_H}, v2
        s_mov_b32 s71, 7
        """)
        top = A.label("ep")
        A(f"{top}:\nv_min_u32 v3, {F_H + 399*128}, v2")
        poll(A, 24, 9, 3, 72, slp=32)
        A(f"""
        v_add_u32 v2, {64*128}, v2
        s_sub_u32 s71, s71, 1
        s_cmp_lg_u32 s71, 0
        s_cbranch_scc1 {top}
        v_mov_b32 v2, s{S_TAG}
        s_mov_b64 exec, 1
        buffer_store_dword v2, v8, s[24:27], 0 offen{SC}
        s_mov_b64 exec, -1
        {ne}:
        """)

def touch(A, k, dst, va, idle):
    base = (48*k) if idle else (48*CFG["nTA"] + 80*k - 48)
    A(f"""
    s_lshl_b32 s88, s{S_J}, 2
    s_add_u32 s88, s88, s{S_WAVE}
    s_add_u32 s88, s88, {base & 0xffffffff}
    s_lshl_b32 s88, s88, 13
    buffer_load_dword v{dst}, v{va}, s[8:11], s88 offen{SC}
    """)

def polln(A, n, va, r, cnt, preissued=False, slp=None):
    lab, done = A.label("poll"), A.label("pollok")
    def chk():
        o = "".join(f"v_xor_b32 v{r+q}, s{S_TAG}, v{r+q}\n" for q in range(n))
        o += f"v_or_b32 v{r}, v{r}, v{r+1}\n" + (f"v_or3_b32 v{r}, v{r}, v{r+2}, v{r+3}\n" if n == 4 else "")
        return o + f"v_cmp_ne_u32 vcc, 0, v{r}\ns_cbranch_vccz {done}"
    A(f"s_mov_b32 s{cnt}, {SPIN}")
    if preissued: A(chk())
    A(f"{lab}:\nbuffer_load_dwordx{n} {v(r,n)}, v{va}, s[24:27], 0 offen{SC}\ns_waitcnt vmcnt(0)")
    A(chk())
    spin_tail(A, lab, done, cnt, slp)
def poll4(A, va, r, cnt, preissued=False): polln(A, 4, va, r, cnt, preissued)
def poll2w(A, va, r, cnt): polln(A, 2, va, r, cnt)

def role_idle(A):
    if CFG["prio"]: A(f"s_setprio {CFG['iprio']}")
    p8_addr(A)
    QX, QW, QO = 64, 112, 128
    A(f"""
    s_mul_i32 s70, s{S_J}, 3
    s_lshl_b32 s71, s{S_J}, 1
    s_add_u32 s71, s71, 8
    s_cmp_lt_u32 s{S_J}, 8
    s_cselect_b32 s70, s70, s71
    s_add_u32 s69, s69, s70
    s_mul_i32 s89, s{S_WAVE}, 2560
    s_mul_i32 s88, s69, 10240
    s_add_u32 s88, s88, s89
    s_lshl_b32 s70, s{S_X}, 2
    s_add_u32 s70, s70, s{S_J}
    s_lshl_b32 s70, s70, 1
    s_add_u32 s68, s70, {128 - 16}
    s_mul_i32 s90, s68, 10240
    s_add_u32 s90, s90, s89
    s_mov_b32 s82, {X_BYTES}
    s_mov_b32 s83, 0x20000
    s_mov_b32 s86, 1280
    s_mov_b32 s87, 0x20000
    s_mov_b32 s6, {WD_BYTES}
    s_mov_b32 s7, 0x20000
    """)
    for j in range(8, 12):
        for q in range(3): A(f"v_mov_b32 v{QX+12*q+j}, 0")
        A(f"v_mov_b32 v{QW+j}, 0")
    kwait(A)
    if CFG["dlyI"]: A(f"s_sleep {CFG['dlyI']}")
    A(f"s_mov_b64 s[80:81], s[{P_U}:{P_U+1}]\ns_mov_b64 s[84:85], s[{P_GW}:{P_GW+1}]\ns_mov_b64 s[4:5], s[{P_WD}:{P_WD+1}]")
    tq, jn = A.label("typq"), A.label("idj")
    def common():
        srd(A, 8, P_WS, WS_WD, WD_BYTES)
        srd(A, 24, P_WS, 0, FL_BYTES)
        srd(A, 12, P_WS, WS_UT, UT_BYTES)
        srd(A, 16, P_WS, WS_G, G_BYTES)
        A(f"""
        v_lshlrev_b32 v40, 7, v0
        v_min_u32 v41, 19, v0
        s_mul_i32 s70, s{S_X}, {20*128}
        s_add_u32 s70, s70, {F_A}
        v_lshl_add_u32 v41, v41, 7, s70
        v_min_u32 v42, 15, v0
        v_lshlrev_b32 v42, 7, v42
        v_add_u32 v42, {F_WD}, v42
        s_lshr_b32 s78, s69, 5
        s_mul_i32 s78, s78, 12
        s_add_u32 s78, s78, s{S_J}
        s_lshl_b32 s78, s78, 7
        s_add_u32 s78, s78, {F_U}
        s_mul_i32 s88, s69, {UT_CH}
        s_lshl_b32 s89, s{S_WAVE}, 10
        s_add_u32 s88, s88, s89
        s_lshl_b32 s89, s69, 6
        s_lshr_b32 s90, s68, 2
        s_lshl_b32 s90, s90, 10
        s_and_b32 s70, s68, 3
        s_lshl_b32 s70, s70, 8
        s_add_u32 s90, s90, s70
        s_mul_i32 s70, s{S_WAVE}, {4*49152}
        s_add_u32 s90, s90, s70
        """)
    def prog(nu, nw):
        p8_load(A, QW, 84, "0", "", va=62)
        for q in range(nu):
            p8_load(A, QX+12*q, 80, "s88", CFG["umod"])
            if q < nu-1: A("s_add_u32 s88, s88, 10240")
        for q in range(nw):
            p8_load(A, QX+12*(nu+q), 4, "s90", CFG["wdmod"])
            if q < nw-1: A("s_add_u32 s90, s90, 10240")
        common()
        n = nu + nw
        for q in range(n):
            A(f"s_waitcnt vmcnt({3*(n-1-q)})")
            p8_write(A, QX+12*q, q)
        tsn(A, 'p')
        A("s_waitcnt lgkmcnt(0)\ns_barrier")
        for q in range(nu):
            A(f"s_add_u32 s91, s88, {q*UT_CH}")
            p8_out(A, QO+12*q, q, 12, 91, 59, 4096)
        for q in range(nw):
            A(f"s_add_u32 s91, s90, {q*256}")
            p8_out(A, QO+12*(nu+q), nu+q, 8, 91, 60, 16*49152)
        tsn(A, 'y')
        for q in range(nu):
            p8_gate(A, QX+12*q, QW, 16, 89, q == 0)
            A("s_add_u32 s89, s89, 64")
    A(f"s_cmp_ge_u32 s{S_J}, 8\ns_cbranch_scc1 {tq}")
    prog(3, 0)
    A(f"s_branch {jn}\n{tq}:")
    prog(2, 2)
    A(f"{jn}:")
    mk_tag(A)
    A("s_waitcnt vmcnt(0)\ns_barrier")
    publish(A, 24, 78, 16, 61)
    if CFG["prio"]: A("s_setprio 0")
    tsn(A, 's')
    if "idle" in CFG["skip"]: A("s_branch L_done")
    if CFG["nTA"]:
        nw = A.label("nw")
        A(f"s_cmp_lg_u32 s{S_WAVE}, 0\ns_cbranch_scc1 {nw}")
        poll(A, 24, 16, 42, 72, slp=CFG["slpI"])
        A(f"{nw}:\ns_barrier")
        tsn(A, 'k')
        for k in range(CFG["nTA"]): touch(A, k, 237+k, 40, True)
    nw = A.label("nw")
    A(f"s_cmp_lg_u32 s{S_WAVE}, 0\ns_cbranch_scc1 {nw}")
    poll(A, 24, 16, 41 if CFG["waitT"] else 42, 72, slp=CFG["slpI"])
    A(f"{nw}:\ns_barrier")
    A("s_mov_b32 s0, 0")
    tsn(A, 'u')

C1 = -2.0 * LOG2E * 0.7978845608028654
C2 = C1 * 0.044715
def role_g1(A0):
    def A(x):
        for l in x.split("\n"):
            t = l.strip()
            if "g1m" in CFG["skip"] and t.startswith("v_mfma"): l = "s_nop 7\ns_nop 7\ns_nop 7\ns_nop 5"
            if "g1r" in CFG["skip"] and t.startswith("ds_read"): l = "s_nop 0"
            A0(l)
    A.label = A0.label
    split = CFG["split"]
    st = [sum(split[:i]) for i in range(5)]
    assert sum(split) == 32 and min(split) >= 2
    pack_c0 = sum(st[i] << (6*i) for i in range(5)); pack_nc = sum(split[i] << (6*i) for i in range(5))
    sline, sc0, snc, srot, sflag = 69, 68, 79, 72, 91
    AR, ACC0, BR = 96, 64, 32
    RS, RA, KBAR = 8, 6, 16
    SB = 80
    VW, VX0, VX1, VT0, VT1 = 28, 29, 30, 14, 15
    VTOUCH, VHINT, VZ = 31, 13, 1
    if CFG["prio"]: A("s_setprio 2")
    A(f"""
    s_mul_i32 s68, s{S_J}, 43
    s_lshr_b32 s68, s68, 8               ; slot = j/6
    s_mul_i32 s69, s68, 6
    s_sub_u32 s69, s{S_J}, s69           ; j%6
    s_lshl_b32 s71, s68, 2
    s_lshr_b32 s71, {sum(r << (4*i) for i, r in enumerate(CFG['rot']))}, s71
    s_and_b32 s71, s71, 15               ; rot[slot]
    s_mul_i32 s72, s69, {CFG['rotl']}
    s_lshr_b32 s72, s72, 2
    s_and_b32 s70, s{S_X}, 1
    s_mul_i32 s73, s70, {CFG['rotx']}
    s_add_u32 s71, s71, s73
    s_mul_i32 s73, s70, 5
    s_add_u32 s73, s73, s68
    s_mul_i32 s{sflag}, s73, {24*128}
    s_lshr_b32 s73, s{S_X}, 1
    s_mul_i32 s73, s73, 6
    s_add_u32 s69, s69, s73              ; line
    s_lshl_b32 s73, s69, 7
    s_add_u32 s{sflag}, s{sflag}, s73
    s_add_u32 s{sflag}, s{sflag}, {F_H}
    s_mul_i32 s73, s68, 6
    s_lshr_b32 s79, {pack_nc}, s73
    s_and_b32 s79, s79, 63               ; nc
    s_lshr_b32 s68, {pack_c0}, s73
    s_and_b32 s68, s68, 63
    s_lshl_b32 s70, s70, 5
    s_add_u32 s68, s68, s70              ; c0
    s_add_u32 s72, s71, s72
    s_mul_i32 s70, s72, 205
    s_lshr_b32 s70, s70, 11
    s_mul_i32 s70, s70, 10
    s_sub_u32 s72, s72, s70              ; rot
    v_lshrrev_b32 v1, 3, v0                 ; lane>>3
    v_and_b32 v13, 7, v0                    ; chunk
    s_lshr_b32 s70, s{S_WAVE}, 1
    s_lshl_b32 s70, s70, 3
    v_add_u32 v16, s70, v1
    v_mul_u32_u24 v{VW}, 3072, v16
    v_bfe_u32 v17, v0, 4, 1
    s_and_b32 s70, s{S_WAVE}, 1
    s_lshl_b32 s70, s70, 2
    v_lshl_or_b32 v17, v17, 1, s70          ; swz
    v_xor_b32 v17, v17, v13
    v_lshl_add_u32 v{VW}, v17, 4, v{VW}
    s_lshl_b32 s71, s{sline}, 7
    v_add_u32 v{VW}, s71, v{VW}             ; W voffset
    s_lshl_b32 s70, s{S_WAVE}, 3
    v_add_u32 v{VX0}, s70, v1
    v_bfe_u32 v17, v{VX0}, 1, 3             ; swz
    v_xor_b32 v17, v17, v13
    v_mul_u32_u24 v{VX0}, 1280, v{VX0}
    v_lshl_add_u32 v{VX0}, v17, 4, v{VX0}
    s_mul_i32 s73, s{sc0}, 40960
    v_add_u32 v{VX0}, s73, v{VX0}
    s_lshl_b32 s74, s{S_WAVE}, 10           ; m0 base
    """)
    for b in range(10):
        A(f"s_lshl_b32 s{SB+b}, s72, 7\ns_add_u32 s72, s72, 1\ns_cmp_ge_u32 s72, 10\ns_cselect_b32 s72, 0, s72")
    A(f"""
    s_mov_b32 s90, 40960
    v_add_u32 v{VX1}, s90, v{VX0}
    s_sub_u32 s75, s{snc}, 2
    s_cmp_gt_i32 s75, 0
    s_cselect_b32 s76, s90, 0x8000000
    v_add_u32 v10, s76, v{VX1}
    s_and_b32 s70, s{S_WAVE}, 1
    s_lshl_b32 s70, s70, 4
    v_add_u32 v{VTOUCH}, s70, v0
    v_mul_u32_u24 v{VTOUCH}, 1280, v{VTOUCH}
    s_add_u32 s73, s73, s90
    v_add_u32 v{VTOUCH}, s73, v{VTOUCH}
    v_cmp_gt_u32 vcc, 16, v0
    v_mov_b32 v16, 0x8000000
    v_cndmask_b32 v{VTOUCH}, v16, v{VTOUCH}, vcc
    s_cmp_ge_u32 s{S_WAVE}, 2
    s_cselect_b32 s77, s{SB+1}, s{SB}
    v_bfe_u32 v16, v0, 4, 1                 ; mat
    v_lshrrev_b32 v17, 5, v0                ; h
    v_bfe_u32 v18, v0, 2, 2                 ; r
    v_and_b32 v19, 1, v0                    ; c&1
    v_bfe_u32 v20, v0, 1, 1                 ; c>>1
    s_lshl_b32 s70, s{S_WAVE}, 1
    v_or_b32 v19, s70, v19                  ; chunk
    v_and_b32 v21, 2, v18
    v_lshl_or_b32 v21, v16, 2, v21          ; swz
    v_xor_b32 v19, v19, v21
    v_lshl_add_u32 v22, v17, 1, v16         ; mat + 2h
    v_lshlrev_b32 v{VT0}, 10, v22
    v_lshl_add_u32 v{VT0}, v18, 7, v{VT0}
    v_lshl_add_u32 v{VT0}, v19, 4, v{VT0}
    v_lshl_add_u32 v{VT0}, v20, 3, v{VT0}
    v_add_u32 v{VT1}, s90, v{VT0}
    v_and_b32 v16, 31, v0                   ; n
    v_bfe_u32 v18, v0, 1, 3                 ; (n>>1)&7
    v_xor_b32 v18, v18, v17
    v_lshlrev_b32 v2, 7, v16
    v_lshl_add_u32 v2, v18, 4, v2
    v_xor_b32 v3, 32, v2
    v_xor_b32 v4, 64, v2
    v_xor_b32 v5, 96, v2
    v_add_u32 v6, s90, v2
    v_add_u32 v7, s90, v3
    v_add_u32 v8, s90, v4
    v_add_u32 v9, s90, v5
    v_bfe_u32 v18, v0, 4, 1                 ; n>>4
    v_mul_u32_u24 v11, 49152, v18
    s_and_b32 s70, s{S_WAVE}, 1
    s_lshl_b32 s70, s70, 1
    v_add_u32 v18, s70, v17                 ; 2(w&1)+h
    v_lshlrev_b32 v18, 4, v18
    v_and_or_b32 v18, v0, 15, v18
    v_lshl_add_u32 v11, v18, 4, v11
    s_lshl_b32 s78, s{sline}, 1
    s_lshr_b32 s70, s{S_WAVE}, 1
    s_add_u32 s78, s78, s70
    s_lshl_b32 s78, s78, 10
    s_mul_i32 s70, s{sc0}, 98304
    s_add_u32 s78, s78, s70
    v_mov_b32 v12, {fbits(C2)}
    v_mov_b32 v{VZ}, 0
    s_mov_b32 s10, {640*3072}
    s_mov_b32 s11, 0x20000
    s_mov_b32 s6, {X_BYTES}
    s_mov_b32 s7, 0x20000
    s_mul_i32 s73, s{SB}, 1536
    s_mov_b32 m0, s74
    """)
    kwait(A)
    A(f"""
    s_bitcmp1_b32 s{S_WAVE}, 0
    s_cselect_b32 s8, s{P_WU}, s{P_WG}
    s_cselect_b32 s9, s{P_WU+1}, s{P_WG+1}
    """)
    steps = []
    for b in range(10):
        stp = [("W", b, ks) for ks in range(4)] + [("X0", b, 0)]
        if b >= 4: stp.append(("X1", b-4, 0))
        steps.append(stp)
    steps.append([("X1", b, 0) for b in range(6, 10)])
    seq = [p for stp in steps for p in stp]
    assert len(seq) == 60
    page = {p: i % 20 for i, p in enumerate(seq)}
    for g in range(4):
        for kb in range(5): seq.append(("M", g, kb))
    adv_ops = ["s_sub_u32 s75, s75, 1", "s_cmp_gt_i32 s75, 0", "s_cselect_b32 s76, s90, 0x8000000", "v_add_u32 v10, s76, v10"]
    def piece(i):
        p = seq[i]; pg = i % 20
        pre = []
        if p[0] == "W":
            if p[2] == 0: pre.append(f"s_mul_i32 s73, s{SB+p[1]}, 1536")
            else: pre.append(f"s_add_u32 s73, s73, 49152")
            iss = [f"buffer_load_dwordx4 v{VW}, s[8:11], s73 offen{CFG['wmod']} lds"]
        elif p[0] in ("X0", "X1"):
            iss = [f"buffer_load_dwordx4 v{VX0 if p[0] == 'X0' else VX1}, s[4:7], s{SB+p[1]} offen lds"]
        else:
            iss = [f"buffer_load_dwordx4 v10, s[4:7], s{SB+5*(p[1]&1)+p[2]} offen lds"]
            if (p[1] & 1) and p[2] == 4: iss += adv_ops
        pre.append(f"s_add_u32 m0, s74, {pg*4096}")
        return pre, iss
    vm = []
    def wait_for(npieces):
        pos = vm.index(npieces - 1)
        return len(vm) - 1 - pos
    for i in range(20):
        pre, iss = piece(i)
        if i == 0: pre = []
        for o in pre + iss: A(o)
        vm.append(i)
        if i == 0:
            A(f"s_mov_b32 s4, s{P_U}\ns_mov_b32 s5, s{P_U+1}")
        if i == 5:
            srd(A, 16, P_WS, WS_H, H_BYTES); srd(A, 24, P_WS, 0, FL_BYTES)
        if i == 9 and CFG["xtouch"]:
            A(f"buffer_load_dword v16, v{VTOUCH}, s[4:7], s77 offen"); vm.append(None)
    def epi_ops(acc):
        ops = []
        T = 16
        for g0 in (0, 4):
            E = range(g0, g0+4)
            ops += [f"v_mul_f32 v{T+e-g0}, v{acc+e}, v{acc+e}" for e in E]
            ops += [f"v_mul_f32 v{acc+8+e}, v{acc+e}, v{acc+8+e}" for e in E]
            ops += [f"v_fmaak_f32 v{T+e-g0}, v12, v{T+e-g0}, {fbits(C1)}" for e in E]
            ops += [f"v_mul_f32 v{T+e-g0}, v{T+e-g0}, v{acc+e}" for e in E]
            ops += [f"v_exp_f32 v{T+e-g0}, v{T+e-g0}" for e in E]
            ops += [f"v_add_f32 v{T+e-g0}, 1.0, v{T+e-g0}" for e in E]
            ops += [f"v_rcp_f32 v{T+e-g0}, v{T+e-g0}" for e in E]
            ops += [f"v_mul_f32 v{acc+8+e}, v{acc+8+e}, v{T+e-g0}" for e in E]
            ops += [f"v_cvt_pk_bf16_f32 v{24+(g0>>1)+p}, v{acc+8+g0+2*p}, v{acc+8+g0+2*p+1}" for p in range(2)]
        ops.append(f"buffer_store_dwordx4 v[24:27], v11, s[16:19], s78 offen{CFG['hsc']}")
        ops.append("s_add_u32 s78, s78, 98304")
        return ops
    def wgt(o): return 2.0 if ("v_exp" in o or "v_rcp" in o) else (0.0 if o.startswith("s_") else 1.0)
    def bread_at(pg, ks, slot):
        return f"ds_read_b128 {v(BR+4*(slot%RS),4)}, v{2+4*(pg>=10)+ks} offset:{(pg%10)*4096}"
    mf = []
    for s_, stp in enumerate(steps):
        L0 = [(0, 4*b+ks, page[(n, b, 0)], ks) for (n, b, _) in stp if n == "X0" for ks in range(4)]
        L1 = [(1, 4*b+ks, page[(n, b, 0)], ks) for (n, b, _) in stp if n == "X1" for ks in range(4)]
        if L0 and L1: L = [x for pr in zip(L0, L1) for x in pr]
        else: L = L0 + L1
        mf.append(L)
    allm = [m for L in mf for m in L]
    def frag_read(j):
        if j < 80: return bread_at(allm[j][2], allm[j][3], j)
        jj = j - 80
        return bread_at(jj >> 2, jj & 3, j)
    nissued = 20; rd = 0; mi = 0
    E = 0
    started = [False, False]
    def emit(o):
        A(o)
        if o.startswith("buffer_store"): vm.append(None)
    def issue(i):
        pre, iss = piece(i); return pre, iss
    for s_ in range(12):
        if s_ <= 10:
            E += len(steps[s_])
            A(f"s_waitcnt vmcnt({wait_for(E)}) lgkmcnt(0)\ns_barrier")
            if s_ == 0: ts(A, 1)
            trs = []
            for (n, b, ks) in steps[s_]:
                if n == "W":
                    pg = page[(n, b, ks)]
                    for hh in range(2):
                        trs.append(f"ds_read_b64_tr_b16 {v(AR+16*b+4*ks+2*hh,2)}, v{VT1 if pg >= 10 else VT0} offset:{(pg%10)*4096 + hh*512}")
            ndma = len(steps[s_-1]) if s_ else 0
            rlim = sum(len(mf[i]) for i in range(s_+1))
        else:
            trs = []; ndma = 0
        ms = mf[s_-1] if s_ else []
        dm = list(range(nissued, nissued + ndma)); nissued += ndma
        last = (s_ == 11)
        ops = epi_ops(ACC0) if last else []
        tot = sum(wgt(o) for o in ops); oi = 0; done = 0.0
        def rd_more(limit, maxn):
            nonlocal rd
            n = 0
            while rd < limit and rd < mi + RS and n < maxn:
                A(frag_read(rd)); rd += 1; n += 1
        if not ms:
            rd_more(rlim, 99)
            for o in trs: A(o)
            continue
        if not last: rd_more(rlim, 99)
        for k, (ac, kidx, pg, ks) in enumerate(ms):
            acc = ACC0 + 16*ac
            pi = dm.pop(0) if dm else None
            pre, iss = piece(pi) if pi is not None else ([], [])
            for o in pre: A(o)
            if last: A(f"s_waitcnt lgkmcnt({min(15, rd - mi - 1)})")
            A(f"v_mfma_f32_32x32x16_bf16 {v(acc,16)}, {v(AR+4*kidx,4)}, {v(BR+4*(mi%RS),4)}, {v(acc,16) if started[ac] else 0}")
            started[ac] = True; mi += 1
            if last:
                if k == 12:
                    A(f"s_waitcnt vmcnt({wait_for(65)}) lgkmcnt(0)\ns_barrier")
                lim = 80 if k < 12 else 80 + RA
                rd_more(min(lim, mi + (RS if k < 12 else RA)), 3)
                if k >= 1:
                    tgt = tot * k / 14.0
                    while oi < len(ops) and done < tgt:
                        emit(ops[oi]); done += wgt(ops[oi]); oi += 1
            else:
                rd_more(rlim, 1)
                ntr = -(-len(trs) // (len(ms) - k))
                for _ in range(ntr): A(trs.pop(0))
            for o in iss: A(o)
            if pi is not None: vm.append(pi)
        while dm:
            pi = dm.pop(0)
            pre, iss = piece(pi)
            for o in pre + iss: A(o)
            vm.append(pi)
        while oi < len(ops):
            emit(ops[oi]); oi += 1
    assert rd == 80 + RA and mi == 80 and nissued == 76, (rd, mi, nissued)
    ts(A, 2)
    tails = [A.label("g1tail"), A.label("g1tail")]
    A(f"s_sub_u32 s{snc}, s{snc}, 2\ns_cmp_eq_u32 s{snc}, 0\ns_cbranch_scc1 {tails[1]}")
    top = A.label("g1top")
    A(f"{top}:")
    cnt = RA
    for P in range(2):
        acc = ACC0 + 16*P
        ops = epi_ops(ACC0 + 16*(P ^ 1))
        tot = sum(wgt(o) for o in ops); oi = 0; done = 0.0
        issued = RA
        for k in range(40):
            kk = k % 20; stg = k // 20
            gs = 2*P + stg
            pi = None
            if kk == KBAR: pi = 60 + 5*gs
            elif kk in (0, 4, 8, 12): pi = 60 + 5*((gs - 1) & 3) + 1 + kk // 4
            pre, iss = piece(pi) if pi is not None else ([], [])
            for o in pre: A(o)
            A(f"s_waitcnt lgkmcnt({issued - k - 1})")
            A(f"v_mfma_f32_32x32x16_bf16 {v(acc,16)}, {v(AR+4*k,4)}, {v(BR+4*((40*P+k)%RS),4)}, {v(acc,16) if k else 0}")
            if kk == KBAR:
                A("s_waitcnt vmcnt(10) lgkmcnt(0)\ns_barrier")
            lim = 20*(stg+1) if kk < KBAR else 99
            n = 0
            while issued < min(k + 1 + RA, lim) and n < 3:
                j = (40*P + issued) % 80
                A(bread_at(j >> 2, j & 3, cnt)); cnt += 1; issued += 1; n += 1
            for o in iss: A(o)
            if k >= 1:
                tgt = tot * k / 38.0
                while oi < len(ops) and done < tgt:
                    A(ops[oi]); done += wgt(ops[oi]); oi += 1
        while oi < len(ops):
            A(ops[oi]); oi += 1
        A(f"s_sub_u32 s{snc}, s{snc}, 1\ns_cmp_eq_u32 s{snc}, 0\ns_cbranch_scc1 {tails[P]}" if P == 0 else
          f"s_sub_u32 s{snc}, s{snc}, 1\ns_cmp_lg_u32 s{snc}, 0\ns_cbranch_scc1 {top}")
    end = A.label("g1end")
    for P in (1, 0):
        A(f"{tails[P]}:\ns_nop 8")
        for o in epi_ops(ACC0 + 16*P): A(o)
        if P == 1: A(f"s_branch {end}")
    A(f"{end}:\ns_waitcnt vmcnt(0) lgkmcnt(0)\ns_barrier")
    if "prep" not in CFG["skip"]:
        mk_tag(A)
        publish(A, 24, sflag, 31, VZ)
    if CFG["prio"]: A("s_setprio 0")
    ts(A, 3)

def cmul(r, x, y, t, conj_out=False, pk=True):
    if pk:
        i1 = f"v_pk_mul_f32 {v(t,2)}, {v(x,2)}, {v(y,2)} op_sel_hi:[0,1]"
        i2 = f"v_pk_fma_f32 {v(r,2)}, {v(x,2)}, {v(y,2)}, {v(t,2)} op_sel:[1,1,0] op_sel_hi:[1,0,1] neg_lo:[0,1,0]"
        if conj_out: i2 += " neg_hi:[0,1,1]"
        return [i1, i2]
    o = [f"v_mul_f32 v{t}, v{x+1}, v{y+1}", f"v_mul_f32 v{t+1}, v{x+1}, v{y}"]
    if r == x or r == y:
        assert r == x and r != y
        o += [f"v_fma_f32 v{r+1}, v{x}, v{y+1}, v{t+1}" if not conj_out else f"v_fma_f32 v{r+1}, -v{x}, v{y+1}, -v{t+1}",
              f"v_fma_f32 v{r}, v{x}, v{y}, -v{t}"]
    else:
        o += [f"v_fma_f32 v{r+1}, v{x}, v{y+1}, v{t+1}" if not conj_out else f"v_fma_f32 v{r+1}, -v{x}, v{y+1}, -v{t+1}",
              f"v_fma_f32 v{r}, v{x}, v{y}, -v{t}"]
    return o

def interleave(*streams):
    out = []; idx = [0]*len(streams); tot = sum(len(x) for x in streams)
    while len(out) < tot:
        best = min((idx[i]/len(x), i) for i, x in enumerate(streams) if idx[i] < len(x))[1]
        out.append(streams[best][idx[best]]); idx[best] += 1
    return out

def role_ssm(A):
    sq = 68
    TB = 5760
    VKW, VKL, VKH = 241, 158, 159
    TBL, CS, MB = 5760, 1984, 9856
    C1_ = CS + 2
    WM = 216
    VF0, VF1, VG, VWA, VWB, VMW, VMR, VOUT = 243, 244, 245, 246, 249, 248, 250, 247
    PK = CFG["pk"]
    KA = 48
    FA, FB = 64, 96
    if CFG["prio"]: A(f"s_setprio 3")
    A(f"""
    s_lshl_b32 s70, s{sq}, 2
    s_add_u32 s70, s70, s{S_WAVE}           ; channel d
    s_mul_i32 s71, s70, 384
    s_lshl_b32 s72, s70, 1
    v_lshlrev_b32 v1, 2, v0
    v_lshlrev_b32 v2, 1, v0
    v_mov_b32 v3, 0
    s_mul_i32 s76, s{S_WAVE}, 20480
    s_mov_b32 m0, s76
    s_add_u32 s78, s76, {TBL}
    """)
    for d in (8, 12, 16, 20): A(f"s_mov_b32 s{d+2}, {640*384}\ns_mov_b32 s{d+3}, 0x20000")
    for d in (4, 32): A(f"s_mov_b32 s{d+2}, 1280\ns_mov_b32 s{d+3}, 0x20000")
    A("""
    v_and_b32 v45, 15, v0                   ; lane & 15
    v_lshrrev_b32 v40, 4, v0                ; g
    v_lshlrev_b32 v41, 3, v40               ; 8g
    v_sub_u32 v42, v41, v45
    v_add_u32 v42, 16, v42
    v_min_u32 v42, 31, v42
    """)
    BANDS = [(11, 13), (3, 5), (6, 10), (5, 11), (4, 12), (12, 13)]
    def band(q):
        lo, hi = BANDS[q]
        A(f"s_mov_b32 s79, {(((1 << (hi-lo+1)) - 1) << lo) << 16}\nv_lshrrev_b32 v43, v42, s79")
        for r in range(4):
            A(f"v_bfe_u32 v44, v43, {2*r}, 1\nv_bfe_u32 v46, v43, {2*r+1}, 1\nv_lshl_or_b32 v44, v46, 16, v44\nv_mul_u32_u24 v{WM+4*q+r}, 0x3f80, v44")
    for q in range(3): band(q)
    def params():
        pm = CFG.get("pmod", " nt")
        for d, p in ((4, P_DT), (8, P_LA)): A(f"s_mov_b64 s[{d}:{d+1}], s[{p}:{p+1}]")
        A(f"""
        buffer_load_ushort v16, v3, s[4:7], s72 offen
        buffer_load_dword v4, v1, s[8:11], s71 offen{pm}
        buffer_load_ushort v5, v2, s[8:11], s71 offen offset:256{pm}
        """)
        for d, p in ((12, P_AI), (16, P_CR), (20, P_CI), (32, P_DS)): A(f"s_mov_b64 s[{d}:{d+1}], s[{p}:{p+1}]")
        A(f"""
        buffer_load_dword v6, v1, s[12:15], s71 offen{pm}
        buffer_load_ushort v7, v2, s[12:15], s71 offen offset:256{pm}
        buffer_load_dword v8, v1, s[16:19], s71 offen{pm}
        buffer_load_ushort v9, v2, s[16:19], s71 offen offset:256{pm}
        buffer_load_dword v10, v1, s[20:23], s71 offen{pm}
        buffer_load_ushort v11, v2, s[20:23], s71 offen offset:256{pm}
        buffer_load_ushort v17, v3, s[32:35], s72 offen
        """)
    kwait(A)
    params()
    for q in range(3, 6): band(q)
    A(f"""
    s_add_u32 s79, s76, {TB}
    v_mul_u32_u24 v14, 208, v0
    v_add_u32 v{VKW}, s79, v14
    v_bfe_u32 v14, v0, 3, 1                 ; q>>1
    v_lshrrev_b32 v15, 5, v0                ; h
    v_lshlrev_b32 v14, 3, v14
    v_lshl_add_u32 v14, v15, 1, v14
    v_mul_u32_u24 v14, 208, v14
    v_add_u32 v14, s79, v14
    v_bfe_u32 v15, v0, 2, 1                 ; comp
    v_and_b32 v43, 3, v0
    v_bfe_u32 v44, v0, 4, 1
    v_lshl_add_u32 v{VKL}, v15, 6, v14
    v_lshl_add_u32 v{VKL}, v44, 5, v{VKL}
    v_lshl_add_u32 v{VKL}, v43, 3, v{VKL}
    v_lshlrev_b32 v46, 5, v15
    v_lshl_add_u32 v46, v43, 3, v46
    v_add_u32 v46, 128, v46
    v_lshlrev_b32 v15, 3, v15
    v_add_u32 v15, 192, v15
    v_cmp_eq_u32 vcc, 1, v44
    v_cndmask_b32 v46, v46, v15, vcc
    v_add_u32 v{VKH}, v14, v46
    ; conv addresses
    v_and_b32 v43, 1, v0
    v_mul_u32_u24 v43, {C1_}, v43
    v_add_u32 v43, v43, v41
    v_lshlrev_b32 v44, 1, v45
    v_sub_u32 v43, v43, v44
    v_add_u32 v{VF0}, s78, v43
    v_add_u32 v{VF1}, 1024, v{VF0}
    v_mul_u32_u24 v43, 272, v45
    v_add3_u32 v{VG}, v43, v41, s76
    v_lshl_add_u32 v43, v45, 4, v41         ; 16k + 8g
    v_add_u32 v44, 624, v43
    v_lshrrev_b32 v46, 7, v44
    v_lshlrev_b32 v46, 4, v46
    v_lshl_add_u32 v44, v44, 1, v46
    v_add_u32 v{VWA}, s76, v44
    v_add_u32 v44, 616, v43
    v_lshrrev_b32 v46, 7, v44
    v_lshlrev_b32 v46, 4, v46
    v_lshl_add_u32 v44, v44, 1, v46
    v_add_u32 v{VWB}, s76, v44
    s_add_u32 s79, s76, {MB}
    v_mul_u32_u24 v43, 528, v45
    v_lshl_add_u32 v43, v40, 4, v43
    v_add_u32 v{VMW}, s79, v43
    v_lshrrev_b32 v43, 3, v45
    v_add_u32 v43, v43, v40
    v_lshlrev_b32 v43, 4, v43
    v_lshl_add_u32 v43, v45, 6, v43
    v_add_u32 v{VMR}, s79, v43
    v_and_b32 v41, 1, v40                   ; g&1
    v_lshrrev_b32 v42, 1, v40               ; g>>1
    v_lshlrev_b32 v{VOUT}, 5, v45
    v_lshl_add_u32 v{VOUT}, v41, 9, v{VOUT}
    v_lshl_add_u32 v{VOUT}, v42, 4, v{VOUT}
    s_mul_i32 s79, s{S_WAVE}, {24*128}
    s_add_u32 s79, s79, {F_U}
    v_min_u32 v252, 23, v0
    v_lshl_add_u32 v252, v252, 7, s79
    v_min_u32 v251, 15, v0
    v_lshlrev_b32 v251, 7, v251
    v_add_u32 v251, {F_WD}, v251
    v_lshlrev_b32 v255, 7, v0
    v_lshrrev_b32 v43, 2, v0
    v_mul_u32_u24 v253, {UT_CH}, v43
    v_and_b32 v44, 3, v0
    v_lshl_add_u32 v253, v44, 4, v253
    v_mul_u32_u24 v240, 20480, v44
    v_lshl_add_u32 v240, v43, 4, v240
    s_mul_i32 s79, s{S_WAVE}, 1088
    s_add_u32 s79, s79, 1360
    v_add_u32 v240, s79, v240
    v_mov_b32 v254, 0
    """)
    for q in range(64): A(f"v_mov_b32 v{FA+q}, 0")
    srd(A, 24, P_WS, 0, FL_BYTES)
    for q in range(16): A(f"v_mov_b32 v{KA+q}, 0")
    A("s_waitcnt vmcnt(0) lgkmcnt(0)")
    tsn(A, 'q')
    Z, C = 20, 26
    A(f"""
    v_lshlrev_b32 v16, 16, v16
    v_mul_f32 v16, {fbits(LOG2E)}, v16
    v_exp_f32 v16, v16
    v_lshlrev_b32 v{Z}, 16, v4
    v_and_b32 v{Z+2}, 0xffff0000, v4
    v_lshlrev_b32 v{Z+4}, 16, v5
    v_cvt_pk_bf16_f32 v16, v16, v16
    v_lshlrev_b32 v16, 16, v16              ; dt
    """)
    for t in range(3): A(f"v_mul_f32 v{Z+2*t}, {fbits(LOG2E)}, v{Z+2*t}")
    for t in range(3): A(f"v_exp_f32 v{Z+2*t}, v{Z+2*t}")
    A(f"""
    v_lshlrev_b32 v{Z+1}, 16, v6
    v_and_b32 v{Z+3}, 0xffff0000, v6
    v_lshlrev_b32 v{Z+5}, 16, v7
    v_cvt_pk_bf16_f32 v4, v{Z}, v{Z+2}
    v_cvt_pk_bf16_f32 v5, v{Z+4}, v{Z+4}
    v_lshlrev_b32 v{Z}, 16, v4
    v_and_b32 v{Z+2}, 0xffff0000, v4
    v_lshlrev_b32 v{Z+4}, 16, v5
    v_lshlrev_b32 v{C}, 16, v8
    v_and_b32 v{C+2}, 0xffff0000, v8
    v_lshlrev_b32 v{C+4}, 16, v9
    v_lshlrev_b32 v{C+1}, 16, v10
    v_and_b32 v{C+3}, 0xffff0000, v10
    v_lshlrev_b32 v{C+5}, 16, v11
    v_add_f32 v18, v16, v16                 ; 2 dt
    v_lshlrev_b32 v242, 16, v17             ; D skip (persist)
    """)
    for q in range(6): A(f"v_mul_f32 v{Z+q}, v16, v{Z+q}")
    for q in range(6): A(f"v_mul_f32 v{C+q}, v18, v{C+q}")
    for t in range(3):
        A(f"v_mul_f32 v{Z+2*t}, {fbits(-LOG2E)}, v{Z+2*t}\nv_mul_f32 v{Z+2*t+1}, {fbits(0.15915494309189535)}, v{Z+2*t+1}")
    E1, E256, E2, E4, E8 = 32, 34, 36, 38, 40
    def exps():
        return [
            f"v_exp_f32 v4, v{Z}", f"v_fract_f32 v5, v{Z+1}", f"v_mul_f32 v6, 0x43800000, v{Z}", f"v_mul_f32 v7, 0x43800000, v{Z+1}",
            f"v_cos_f32 v8, v5", f"v_sin_f32 v9, v5", f"v_fract_f32 v7, v7", f"v_exp_f32 v6, v6", f"v_cos_f32 v10, v7", f"v_sin_f32 v11, v7",
            f"v_mul_f32 v{E1}, v4, v8", f"v_mul_f32 v{E1+1}, v4, v9", f"v_mul_f32 v{E256}, v6, v10", f"v_mul_f32 v{E256+1}, v6, v11"]
    for o in exps(): A(o)
    mk_tag(A)
    tsn(A, 'p')
    if "kgen" in CFG["skip"]: A("s_branch L_done")
    srd(A, 4, P_WS, WS_UT, UT_BYTES)
    srd(A, 32, P_WS, WS_AT, AT_BYTES)
    srd(A, 8, P_WS, WS_WD, WD_BYTES)
    A(f"""
    s_mul_i32 s72, s{S_WAVE}, {64*UT_CH}
    s_lshl_b32 s73, s{sq}, 6
    s_add_u32 s72, s72, s73
    """)
    if CFG["prio"]: A(f"s_setprio {CFG['kprio']}")
    A("v_mov_b32 v19, 0\ns_mov_b32 s77, 3")
    def utload():
        for j in range(4):
            A(f"buffer_load_dwordx4 {v(160+4*j,4)}, v253, s[4:7], s72 offen{SC}")
            if j < 3: A(f"s_add_u32 s72, s72, {16*UT_CH}")
    top = A.label("kgen")
    A(f"{top}:")
    tsn(A, 'a')
    cm = lambda r, x, y, t, conj_out=False: cmul(r, x, y, t, conj_out, PK)
    def pair(dre, dim, x, y):
        xr, xi = (f"v{x}", f"v{x+1}") if x is not None else ("1.0", "0")
        return [f"v_cvt_pk_bf16_f32 v{dre}, {xr}, v{y}", f"v_cvt_pk_bf16_f32 v{dim}, {xi}, v{y+1}"]
    wr = lambda r, off: [f"ds_write_b128 v{VKW}, {v(r,4)} offset:{off}"]
    pre = cm(E2, E1, E1, 42) + cm(E4, E2, E2, 42) + cm(E8, E4, E4, 42, True)
    LA, LB, LT, SL = 128, 130, 132, 200
    lo = pair(SL, SL+4, None, E8)
    for i in range(2, 32, 2):
        b = SL + 8*((i//8) & 1); o = (i % 8)//2
        lo += cm(LA, LB if i > 2 else E8, E8, LT) + cm(LB, LA, E8, LT) + pair(b+o, b+4+o, LA, LB)
        if o == 3: lo += wr(b, 16*(i//8)) + wr(b+4, 64 + 16*(i//8))
    HA, HB_, HT, GA, GB, GT, S1, S3 = 134, 136, 138, 140, 142, 144, 146, 154
    hi = cm(HA, C, E1, HT) + pair(S1, S1+4, C, HA)
    for o in range(1, 4): hi += cm(HB_, HA, E1, HT) + cm(HA, HB_, E1, HT) + pair(S1+o, S1+4+o, HB_, HA)
    hi += wr(S1, 128) + wr(S1+4, 160)
    hi += cm(GA, C, E256, GT) + cm(HA, GA, E2, HT) + pair(S3, S3+2, GA, HA)
    hi += cm(HB_, HA, E2, HT) + cm(HA, HB_, E2, HT) + pair(S3+1, S3+3, HB_, HA) + wr(S3, 192)
    hi += cm(GB, GA, E256, GT) + cm(HA, GB, E4, HT) + pair(S1, S1+4, GB, HA)
    hi += cm(GA, GB, E256, GT) + cm(HA, GA, E4, HT) + pair(S1+2, S1+6, GA, HA)
    hi += cm(GB, GA, E256, GT) + cm(GA, GB, E256, GT) + pair(S1+1, S1+5, GB, GA)
    hi += cm(GB, GA, E256, GT) + cm(GA, GB, E256, GT) + pair(S1+3, S1+7, GB, GA)
    hi += wr(S1, 144) + wr(S1+4, 176)
    hi += [f"v_fma_f32 v19, v{GA}, v{E256}, v19", f"v_fma_f32 v19, -v{GA+1}, v{E256+1}, v19"]
    hi0 = hi[:CFG["hi0"]]
    st = interleave(pre, hi0) + interleave(lo, hi[len(hi0):])
    if "kw" in CFG["skip"]: st = [o for o in st if not o.startswith("ds_write")]
    if "kv" in CFG["skip"]: st = [o for o in st if o.startswith("ds_write")]
    DL = CFG["wdelay"]
    out = []; pend = []; gap = 99
    for o in st:
        if o.startswith("ds_write"): pend.append([o, DL])
        else:
            out.append(o); gap += 1
            for x in pend: x[1] -= 1
            if pend and pend[0][1] <= 0 and gap >= CFG["wsp"]: out.append(pend.pop(0)[0]); gap = 0
    out += [x[0] for x in pend]
    kmf = lambda k: f"v_mfma_f32_32x32x16_bf16 {v(KA,16)}, {v(FA+4*k,4)}, {v(FB+4*k,4)}, {v(KA,16)}"
    nw = 0; k = 0
    for n, o in enumerate(out):
        if k < 8 and n >= CFG["kmf0"] + 14*k:
            A((f"s_waitcnt lgkmcnt({min(15, nw)})\n" if k == 0 else "") + kmf(k)); k += 1
        if n == int(len(out)*CFG["fpos"]) and "poll" not in CFG["skip"]:
            nf = A.label("nf")
            A(f"s_cmp_lg_u32 s77, 1\ns_cbranch_scc1 {nf}\nbuffer_load_dword v196, v252, s[24:27], 0 offen{SC}\n{nf}:")
        A(o)
        if o.startswith("ds_write"): nw += 1
    tsn(A, 'b')
    for q in range(4): A(f"v_mov_b32 v{Z+q}, v{Z+2+q}\nv_mov_b32 v{C+q}, v{C+2+q}")
    ex = exps()
    for k in range(8):
        for t in range(2):
            off = (16*(k >> 1) + 4*(k & 1) + t)*208
            A(f"ds_read_b64_tr_b16 {v(FA+4*k+2*t,2)}, v{VKH} offset:{off}\nds_read_b64_tr_b16 {v(FB+4*k+2*t,2)}, v{VKL} offset:{off}")
            for o in ex[2*k+t:2*k+t+1]: A(o)
    tsn(A, 'd')
    for nm, val in (('1', 3), ('2', 2), ('3', 1)):
        if nm in CFG['marks'] and CFG['dbg']:
            lb = A.label("cm"); A(f"s_cmp_lg_u32 s77, {val}\ns_cbranch_scc1 {lb}"); tsn(A, nm); A(f"{lb}:")
    A(f"s_sub_u32 s77, s77, 1\ns_cmp_lg_u32 s77, 0\ns_cbranch_scc1 {top}")
    if "poll" in CFG["skip"]: A("s_branch L_done")
    A("s_waitcnt vmcnt(0)")
    poll(A, 24, 196, 252, 73, preissued=True, slp=CFG["slpU"])
    utload()
    tsn(A, 'f')
    A(f"buffer_load_dword v198, v251, s[24:27], 0 offen{SC}")
    side = f"""
    v_add_f32_dpp v19, v19, v19 row_ror:8 row_mask:0xf bank_mask:0xf
    v_lshlrev_b32 v4, 4, v0
    v_add_u32 v5, s78, v4
    v_add_f32_dpp v19, v19, v19 row_ror:4 row_mask:0xf bank_mask:0xf
    v_add_u32 v4, s76, v4
    v_mov_b32 v8, 0
    v_add_f32_dpp v19, v19, v19 row_ror:2 row_mask:0xf bank_mask:0xf
    v_mov_b32 v9, 0
    v_mov_b32 v10, 0
    v_add_f32_dpp v19, v19, v19 row_ror:1 row_mask:0xf bank_mask:0xf
    v_mov_b32 v11, 0
    ds_write_b128 v5, v[8:11]
    v_add_f32_dpp v19, v19, v19 row_bcast:15 row_mask:0xa bank_mask:0xf
    ds_write_b128 v5, v[8:11] offset:1024
    v_add_f32_dpp v19, v19, v19 row_bcast:31 row_mask:0xc bank_mask:0xf
    ds_write_b128 v5, v[8:11] offset:2048
    ds_write_b128 v5, v[8:11] offset:3072
    ds_write_b128 v4, v[8:11]
    s_mov_b64 exec, 0x1fffff
    ds_write_b128 v4, v[8:11] offset:1024
    s_mov_b64 exec, -1
    v_readlane_b32 s75, v19, 63
    v_and_b32 v4, 31, v0                    ; i
    v_lshrrev_b32 v5, 5, v0                 ; h
    v_lshlrev_b32 v6, 4, v4
    v_sub_u32 v6, s78, v6                   ; base - 16 i   (seg1)
    v_lshlrev_b32 v7, 3, v5
    v_sub_u32 v7, v6, v7                    ; seg0
    v_add_u32 v12, {CS + 1084}, v7
    v_add_u32 v13, {C1_ + 566}, v6
    v_and_b32 v14, 30, v0                   ; 2 i2
    v_sub_u32 v14, s78, v14
    v_lshlrev_b32 v15, 5, v5
    v_sub_u32 v14, v14, v15                 ; base - 32h - 2 i2
    v_sub_u32 v15, v14, v15                 ; base - 64h - 2 i2
    v_and_b32 v18, 1, v0
    v_cmp_eq_u32 vcc, 1, v18
    v_mov_b32 v18, 1474
    v_mov_b32 v19, 1184
    v_mov_b32 v20, {1794 - 32}
    v_mov_b32 v24, 1280
    v_mov_b32 v25, 1376
    v_mov_b32 v26, {1632 - 32}
    v_cndmask_b32 v18, v18, v24, vcc
    v_cndmask_b32 v19, v19, v25, vcc
    v_cndmask_b32 v20, v20, v26, vcc
    v_add_u32 v18, v14, v18                 ; VA
    v_add_u32 v19, v14, v19                 ; VB
    v_add_u32 v20, v15, v20                 ; VC7
    v_add_u32 v21, 32, v20                  ; VC6
    s_add_u32 s72, s78, 1410
    s_add_u32 s73, s78, 1824
    v_mov_b32 v24, s72
    v_mov_b32 v25, s73
    v_cmp_eq_u32 vcc, 0, v0
    v_cndmask_b32 v18, v18, v24, vcc
    v_cndmask_b32 v21, v21, v25, vcc
    v_cndmask_b32 v22, v254, v242, vcc      ; skip term on lag 0
    v_cvt_pk_bf16_f32 v27, s75, s75
    """.strip().split("\n")
    side = [x.strip() for x in side]
    nw = 0; per = -(-len(side) // 8)
    for k in range(8):
        A(f"s_waitcnt lgkmcnt({min(15, 28 - 4*k + nw)})\n" + kmf(k))
        for o in side[per*k:per*(k+1)]:
            A(o)
            if o.startswith("ds_write"): nw += 1
    if CFG["prio"]: A(f"s_setprio {CFG['cprio']}")
    tsn(A, 'k')
    if "conv" in CFG["skip"]: A("s_branch L_done")
    A(f"s_mul_i32 s78, s70, {AT_ROW}")
    a0, a1, a2, a3 = KA, KA+1, KA+2, KA+3
    b0, b1, b2, b3 = KA+8, KA+9, KA+10, KA+11
    A(f"""
    v_cmp_eq_u32 vcc, 0, v0
    v_add_f32 v{a0}, v{a0}, v22
    v_cndmask_b32 v24, v{KA+4}, v{KA+6}, vcc
    v_cvt_pk_bf16_f32 v64, v{b3}, v{b2}
    v_cvt_pk_bf16_f32 v65, v{b2}, v{b2}
    v_cvt_pk_bf16_f32 v66, v{b1}, v{b0}
    v_cvt_pk_bf16_f32 v67, v{b0}, v{b0}
    v_cvt_pk_bf16_f32 v68, v{b2}, v{b1}
    v_cvt_pk_bf16_f32 v69, v{KA+4}, v{KA+4}
    v_cvt_pk_bf16_f32 v70, v24, v{KA+5}
    v_cvt_pk_bf16_f32 v71, v{KA+6}, v{KA+7}
    v_cvt_pk_bf16_f32 v72, v{a3}, v{a2}
    v_cvt_pk_bf16_f32 v73, v{a1}, v{a0}
    v_cvt_pk_bf16_f32 v74, v{a2}, v{a1}
    s_mov_b32 exec_hi, 0
    ds_write2_b32 v6, v64, v65 offset0:141 offset1:142
    ds_write2_b32 v6, v66, v67 offset0:143 offset1:144
    ds_write_b16 v6, v64 offset:{C1_ + 564}
    ds_write2_b32 v13, v65, v68 offset0:0 offset1:1
    ds_write_b32 v6, v67 offset:{C1_ + 574}
    ds_write_b16 v6, v67 offset:{C1_ + 578}
    s_mov_b32 exec_lo, 1
    ds_write2_b32 v6, v69, v69 offset0:15 offset1:16
    ds_write_b16 v6, v69 offset:{C1_ + 60}
    ds_write_b32 v6, v69 offset:{C1_ + 62}
    ds_write_b16 v6, v69 offset:{C1_ + 66}
    s_mov_b32 exec_lo, 0
    s_mov_b32 exec_hi, 1
    ds_write_b16 v6, v27 offset:1666
    ds_write_b16 v6, v27 offset:{1666 + C1_}
    s_mov_b64 exec, -1
    ds_write_b16 v7, v72 offset:1082
    ds_write_b32 v7, v74 offset:1084
    ds_write_b16_d16_hi v7, v73 offset:1088
    ds_write2_b32 v12, v72, v73 offset0:0 offset1:1
    """)
    for c in (0, C1_):
        A(f"ds_write_b16 v18, v70 offset:{c}\nds_write_b16_d16_hi v19, v70 offset:{c}\nds_write_b16 v21, v71 offset:{c}\nds_write_b16_d16_hi v20, v71 offset:{c}")
    tsn(A, 'c')
    ACC, GR, FR, WIN, F2, FX = 16, 48, 130, 142, 190, 120
    XA, XB, XU, XF = 48, 72, 96, 112
    lds = []
    def lop(txt, tag=None):
        A(txt); lds.append(tag)
    def lwait(*tags):
        pos = max(max(i for i, t in enumerate(lds) if t == tg) for tg in tags)
        A(f"s_waitcnt lgkmcnt({min(15, len(lds) - 1 - pos)})")
    def fread(dst, Y, h, tag):
        off = 2*Y - 32*h; va = VF0
        if off > 1016: off -= 1024; va = VF1
        lop(f"ds_read2_b32 {v(dst,2)}, v{va} offset0:{off//4} offset1:{off//4+1}", tag)
    def gread(j):
        z = 640 + 16*j
        lop(f"ds_read_b64 {v(GR+2*(j+33),2)}, v{VG} offset:{2*z + 16*(z >> 7)}", ("G", j))
    def aread(s_):
        r = FR + 4*(s_ % 3)
        fread(r, 544, 2*s_+1, ("A", s_)); fread(r+2, 544, 2*s_, ("A", s_))
    aread(0); aread(1)
    for j in range(4):
        if j == 0: A("s_waitcnt vmcnt(1)")
        lop(f"ds_write_b128 v240, {v(160+4*j,4)} offset:{j*272}")
    A(f"s_lshl_b32 s79, s{sq}, 7\ns_add_u32 s0, s79, {F_A}")
    A("s_waitcnt lgkmcnt(0)\ns_barrier")
    tsn(A, 'u')
    for j in range(-1, 8): gread(j)
    nTS = -(-(240 - 48*CFG["nTA"]) // 80)
    TD = [214, 215, 15]
    extra = []
    for d in (2, 3, 4):
        r = F2 + 8*(d-2)
        extra += [("F", r, 624, d, "F2"), ("F", r+2, 720, d, "F2"), ("F", r+4, 672, d, "F2"), ("F", r+6, 768, d, "F2")]
    for kt in range(6):
        extra += [("W", WIN+8*kt, VWA, kt), ("W", WIN+8*kt+4, VWB, kt)]
    m16 = lambda d, a, b, c: f"v_mfma_f32_16x16x32_bf16 {v(d,4)}, {v(a,4)}, {v(b,4)}, {c}"
    def warm():
        sk = A.label("nowarm")
        A(f"s_waitcnt vmcnt(0)\nv_cmp_ne_u32 vcc, s{S_TAG}, v198\ns_mov_b32 s77, 0\ns_cbranch_vccnz {sk}")
        for k in range(nTS): touch(A, k, TD[k], 255, False)
        A(f"s_mov_b32 s77, 1\n{sk}:")
    for s_ in range(17):
        side = []
        if s_ + 2 <= 16: side.append(lambda s_=s_: aread(s_+2))
        if s_ + 1 <= 16: side += [lambda j=-2*s_-2: gread(j), lambda j=-2*s_-3: gread(j)]
        if s_ >= 3:
            for _ in range(2):
                if extra:
                    x = extra.pop(0)
                    if x[0] == "F": side.append(lambda x=x: fread(x[1], x[2], x[3], x[4]))
                    else: side.append(lambda x=x: lop(f"ds_read_b128 {v(x[1],4)}, v{x[2]} offset:{544*x[3]}", ("W", x[3])))
        for n, T in enumerate(range(8) if s_ == 0 else range(7, -1, -1)):
            j = T - 2*s_ - 1
            if s_ == 0: lwait(("A", 0), ("G", j+1))
            elif n == 0: lwait(("A", s_))
            elif T == 1: lwait(("G", -2*s_))
            elif T == 0: lwait(("G", -2*s_-1))
            A(m16(ACC+4*T, FR+4*(s_%3), GR+2*(j+33), v(ACC+4*T,4) if s_ else 0))
            if n >= 1 and side: side.pop(0)()
        assert not side
        if s_ == CFG["warmat"]: warm()
    assert not extra
    tsn(A, 'g')
    gen = []
    for kt in range(6):
        wa, wb = WIN+8*kt, WIN+8*kt+4
        gen += [(XA+4*kt, wa, 0, kt), (XA+4*kt+2, wa, 1, kt), (XB+4*kt, wa, 2, kt), (XB+4*kt+2, wb, 2, kt)]
        if kt < 4: gen += [(XU+4*kt, wa, 3, kt), (XU+4*kt+2, wb, 4, kt), (XF+2*kt, wa, 5, kt)]
    TMP = [FR, FR+4, FR+8, 124]
    side = [lambda T=T: lop(f"ds_write_b128 v{VMW}, {v(ACC+4*T,4)} offset:{64*T}") for T in range(7, -1, -1)]
    side += [lambda T=T: lop(f"ds_read_b128 {v(ACC+4*T,4)}, v{VMR} offset:{1056*T}", ("C", T)) for T in range(8)]
    side += [lambda: fread(FX, 976, 4, "FX")]
    F3 = WIN
    for d in (4, 5, 6, 7):
        side += [lambda d=d: fread(F3+4*(d-4), 880, d, ("F3", d)), lambda d=d: fread(F3+4*(d-4)+2, 960, d, ("F3", d))]
    LAG = 3
    def cv(q):
        t = TMP[q % 4]; dst = gen[q][0]
        A(f"v_cvt_pk_bf16_f32 v{dst}, v{t}, v{t+1}\nv_cvt_pk_bf16_f32 v{dst+1}, v{t+2}, v{t+3}")
    lwait(("W", 5))
    for q, (dst, w, b, kt) in enumerate(gen):
        A(m16(TMP[q % 4], w, WM+4*b, 0))
        if q >= LAG: cv(q - LAG)
        if q >= 2 and side and (q % 4 != 3 or len(side) > 34 - q): side.pop(0)()
    A(f"v_mov_b32 v{FX+2}, 0\nv_mov_b32 v{FX+3}, 0")
    for q in range(len(gen) - LAG, len(gen)): cv(q)
    assert not side
    main = []
    for T in range(2, 8):
        for d in (2, 3, 4):
            if T - d >= 0: main += [(T, XA+4*(T-d), F2+8*(d-2), None), (T, XB+4*(T-d), F2+8*(d-2)+4, None)]
        for d in (4, 5, 6, 7):
            if T - d >= 0: main.append((T, XU+4*(T-d), F3+4*(d-4), ("F3", d)))
        if T >= 4: main.append((T, XF+2*(T-4), FX, "FX"))
    def fin(p):
        o = WM + 4*p
        r = []
        for T in (2*p, 2*p+1):
            for h in range(2): r.append(f"v_cvt_pk_bf16_f32 v{o+2*(T&1)+h}, v{ACC+4*T+2*h}, v{ACC+4*T+2*h+1}")
        r += [f"v_permlane16_swap_b32 v{o}, v{o+2}", f"v_permlane16_swap_b32 v{o+1}, v{o+3}",
              f"buffer_store_dwordx4 {v(o,4)}, v{VOUT}, s[32:35], s78 offen offset:{1024*p}{SC}"]
        return r
    seen = set(); pend = []; hold = 0
    for q, (T, a, b, tag) in enumerate(main):
        tags = []
        if ("C", T) not in seen: tags.append(("C", T)); seen.add(("C", T))
        if tag and tag not in seen: tags.append(tag); seen.add(tag)
        if tags: lwait(*tags)
        if q == 0: pend += fin(0)
        if q and main[q-1][0] != T and T in (4, 6): pend += fin(T//2 - 1); hold = 4
        A(m16(ACC+4*T, a, b, v(ACC+4*T,4)))
        if hold: hold -= 1
        elif pend: A(pend.pop(0))
    for o in pend: A(o)
    for o in fin(3): A(o)
    tsn(A, 'e')
    if CFG["prio"]: A("s_setprio 0")
    ok = A.label("warmok")
    A(f"s_cmp_lg_u32 s77, 0\ns_cbranch_scc1 {ok}")
    poll(A, 24, 196, 251, 72)
    for k in range(nTS): touch(A, k, TD[k], 255, False)
    A(f"{ok}:")

def role_g2(A):
    split = CFG["split"]
    st = [sum(split[:i]) for i in range(5)] + [32]
    slot_of = [max(s for s in range(5) if st[s] <= c) for c in range(32)]
    pk0 = [sum(slot_of[2*t] << (4*(t % 8)) for t in range(8*h, 8*h+8)) for h in range(2)]
    pk1 = [sum(slot_of[2*t+1] << (4*(t % 8)) for t in range(8*h, 8*h+8)) for h in range(2)]
    ACC, WR, HB, AT = 16, 96, 196, 244
    KO = 80
    STG, SDT = 68, 69
    VL, VK0, VK1, VF, VT, VAL, VAG, VTOK, VLW, VZ, VG = 1, 2, 3, 4, 5, 6, 7, 8, 9, 10, 14
    srd(A, 4, P_WS, WS_H, H_BYTES)
    srd(A, 8, P_WS, WS_WD, WD_BYTES)
    srd(A, 12, P_WS, WS_AT, AT_BYTES)
    srd(A, 16, P_WS, WS_G, G_BYTES)
    srd(A, 20, P_OUT, 0, X_BYTES)
    A(f"""
    s_lshr_b32 s70, s{S_J}, 3               ; r
    s_lshl_b32 s{STG}, s{S_X}, 2
    s_add_u32 s{STG}, s{STG}, s70           ; tg
    s_and_b32 s{SDT}, s{S_J}, 7             ; dt
    v_mov_b32 v{VZ}, 0
    v_lshlrev_b32 v{VL}, 4, v0
    s_mul_i32 s72, s70, 3
    s_mul_i32 s73, s{SDT}, 3
    s_lshr_b32 s73, s73, 1
    s_add_u32 s72, s72, s73
    s_cmp_ge_u32 s72, 12
    s_cselect_b32 s73, 12, 0
    s_sub_u32 s72, s72, s73                 ; rot
    """)
    for p in range(12):
        A(f"s_lshl_b32 s{KO+p}, s72, 10")
        if p < 11: A("s_add_u32 s72, s72, 1\ns_cmp_ge_u32 s72, 12\ns_cselect_b32 s72, 0, s72")
    A(f"""
    s_mul_i32 s70, s{S_WAVE}, 12288
    s_mul_i32 s71, s{STG}, {4*49152}
    s_add_u32 s71, s71, s70                 ; h base
    s_mul_i32 s72, s{SDT}, {5*49152}
    s_add_u32 s72, s72, s70
    """)
    for i in range(4):
        A(f"s_add_u32 s73, s{S_WAVE}, {1+i}\ns_and_b32 s73, s73, 3\ns_mul_i32 s73, s73, 49152\ns_add_u32 s{74+i}, s71, s73")
    WS_ = [32, 33, 34, 35, 78]
    for m in range(5): A(f"s_add_u32 s{WS_[m]}, s72, {m*49152}")
    A(f"""
    s_mul_i32 s79, s{S_WAVE}, 20480
    v_add_u32 v{VLW}, s79, v{VL}
    v_and_b32 v{VTOK}, 15, v0
    s_lshl_b32 s70, s{STG}, 6
    s_lshl_b32 s71, s{S_WAVE}, 4
    s_add_u32 s70, s70, s71
    v_add_u32 v{VTOK}, s70, v{VTOK}         ; token
    v_lshlrev_b32 v{VG}, 3, v{VTOK}
    """)
    kv = [0]
    def kaddr(p):
        r = (VK0, VK1)[kv[0] & 1]; kv[0] += 1
        A(f"v_add_u32 v{r}, s{KO+p}, v{VL}")
        return r
    def wload(dst, m, va): return f"buffer_load_dwordx4 {v(dst+4*m,4)}, v{va}, s[8:11], s{WS_[m]} offen{SC}"
    def prefetch(nb):
        plan = [(6, ACC), (7, ACC+20), (8, ACC+40), (9, HB), (0, ACC+60)] + [(1+q, WR+20*q) for q in range(5)]
        n = 0; wr = 0
        for (p, dst) in plan:
            va = kaddr(p)
            for m in range(5):
                if n >= nb: A(f"s_waitcnt vmcnt({nb-1})")
                if n == nb:
                    np_ = A.label("nopub")
                    A(f"s_barrier\ns_cmp_eq_u32 s0, 0\ns_cbranch_scc1 {np_}")
                    publish(A, 24, 0, VT, VZ)
                    A(f"{np_}:")
                while wr < 20 and wr <= n - nb:
                    q, mm = divmod(wr, 5)
                    A(f"ds_write_b128 v{VLW}, {v(plan[q][1]+4*mm,4)} offset:{wr*1024}"); wr += 1
                A(wload(dst, m, va)); n += 1
        assert wr == 20
    slow, jn = A.label("g2slow"), A.label("g2pj")
    A(f"s_cmp_lt_u32 s{S_J}, 12\ns_cbranch_scc1 {slow}")
    prefetch(CFG["nbB"])
    A(f"s_branch {jn}\n{slow}:")
    prefetch(CFG["nbA"])
    A(f"""{jn}:
    s_and_b32 s70, s{STG}, 7
    s_lshl_b32 s70, s70, 2
    s_bitcmp1_b32 s{STG}, 3
    s_mov_b32 s71, {pk0[0]}
    s_cmov_b32 s71, {pk0[1]}
    s_mov_b32 s72, {pk1[0]}
    s_cmov_b32 s72, {pk1[1]}
    s_lshr_b32 s71, s71, s70
    s_lshr_b32 s72, s72, s70
    s_and_b32 s71, s71, 15
    s_and_b32 s72, s72, 15
    s_lshr_b32 s70, s{STG}, 4
    s_mul_i32 s70, s70, 5
    s_add_u32 s71, s71, s70
    s_add_u32 s72, s72, s70
    s_mul_i32 s71, s71, {24*128}
    s_mul_i32 s72, s72, {24*128}
    v_mov_b32 v11, s71
    v_mov_b32 v12, s72
    v_cmp_gt_u32 vcc, 32, v0
    v_cndmask_b32 v11, v12, v11, vcc
    v_and_b32 v12, 31, v0
    v_min_u32 v12, 23, v12
    v_lshl_add_u32 v{VF}, v12, 7, v11
    v_add_u32 v{VF}, {F_H}, v{VF}
    v_lshrrev_b32 v11, 3, v0
    v_and_b32 v12, 7, v0
    v_mul_u32_u24 v{VAL}, 160, v11
    v_lshl_add_u32 v{VAL}, v12, 4, v{VAL}
    s_add_u32 s70, s79, 15360
    v_add_u32 v{VAL}, s70, v{VAL}
    s_lshl_b32 s70, s{S_WAVE}, 3
    v_add_u32 v11, s70, v11
    v_mul_u32_u24 v{VAG}, {AT_ROW}, v11
    v_lshl_add_u32 v{VAG}, v12, 4, v{VAG}
    v_min_u32 v13, 19, v0
    s_mul_i32 s70, s{SDT}, {20*128}
    s_add_u32 s70, s70, {F_A}
    v_lshl_add_u32 v13, v13, 7, s70         ; a flags
    s_mul_i32 s70, s{SDT}, {80*AT_ROW}
    s_lshl_b32 s71, s{STG}, 7
    s_add_u32 s70, s70, s71
    s_add_u32 s71, s70, {32*AT_ROW}
    s_add_u32 s72, s70, {64*AT_ROW}
    s_cmp_ge_u32 s{S_WAVE}, 2
    s_cselect_b32 s72, 0x8000000, s72
    s_waitcnt vmcnt(0) lgkmcnt(0)
    """)
    tsn(A, 'P')
    nw = A.label("g2nw")
    A(f"s_cmp_lg_u32 s{S_WAVE}, 0\ns_cbranch_scc1 {nw}")
    A(f"buffer_load_dword v12, v13, s[24:27], 0 offen{SC}")
    poll(A, 24, VT, VF, 73, slp=CFG['slpH'])
    poll(A, 24, 12, 13, 73, slp=CFG['slpH'], preissued=True)
    A(f"{nw}:\ns_barrier")
    tsn(A, 'H')
    vm = []
    def vmw(tag):
        pos = max(i for i, t in enumerate(vm) if t == tag)
        return len(vm) - 1 - pos
    def hloads(p):
        va = kaddr(p)
        return [(f"buffer_load_dwordx4 {v(HB+16*(p%3)+4*i,4)}, v{va}, s[4:7], s{74+i} offen{SC}", ("h", p)) for i in range(4)]
    def iss(x):
        A(x[0]); vm.append(x[1])
    for p in range(3):
        for x in hloads(p): iss(x)
    iss((f"buffer_load_dwordx2 v[{VG}:{VG+1}], v{VG}, s[16:19], 0 offen{SC}", "g"))
    for r in range(3):
        iss((f"buffer_load_dwordx4 {v(AT+4*r,4)}, v{VAG}, s[12:15], s{70+r} offen{SC}", "at"))
    aslot = {0: ACC+60, 1: WR, 2: WR+20, 3: WR+40, 4: WR+60, 5: WR+80, 6: WR+40, 7: WR+60, 8: WR+80, 9: WR+40, 10: WR, 11: WR+20}
    def mfma(p, i, m):
        acc = v(ACC + (i*5+m)*4, 4)
        return f"v_mfma_f32_16x16x32_bf16 {acc}, {v(aslot[p]+4*m,4)}, {v(HB+16*(p%3)+4*i,4)}, {acc if p else 0}"
    lds = []
    for p in range(9):
        w = f"s_waitcnt vmcnt({vmw(('h', p))})"
        if p >= 6:
            pos = max(i for i, t in enumerate(lds) if t == p)
            w += f" lgkmcnt({len(lds) - 1 - pos})"
        A(w)
        side = {}
        def add(k, x): side.setdefault(k, []).append(x)
        va = None
        hl = None
        if p in (2, 3):
            q = p + 8
            add(0, ("K", q))
            for m in range(5): add(1 + 3*m, ("WL", q, m))
        if 4 <= p <= 7:
            q = p + 2
            for m in range(5): add(1 + 3*m, ("SR", q, m))
        wva = None
        hq = []
        for i in range(4):
            for m in range(5):
                k = 5*i + m
                A(mfma(p, i, m))
                for x in side.get(k, []):
                    if x[0] == "K": wva = kaddr(x[1])
                    elif x[0] == "WL": iss((wload(aslot[x[1]], x[2], wva), ("w", x[1])))
                    elif x[0] == "SR":
                        A(f"ds_read_b128 {v(aslot[x[1]]+4*x[2],4)}, v{VLW} offset:{((x[1]-6)*5+x[2])*1024}"); lds.append(x[1])
                if k == 3:
                    A(f"v_add_u32 v{VF}, s{KO+p+3}, v{VL}")
                if m == 4:
                    iss((f"buffer_load_dwordx4 {v(HB+16*(p%3)+4*i,4)}, v{VF}, s[4:7], s{74+i} offen{SC}", ("h", p+3)))
    pend = []
    A("s_waitcnt lgkmcnt(0)")
    for i in range(4):
        for p in (9, 10, 11):
            if i == 0:
                n = vmw(("h", p))
                if p >= 10: n = min(n, vmw(("w", p)))
                A(f"s_waitcnt vmcnt({n})")
            for m in range(5):
                A(mfma(p, i, m))
                k = 5*(p-9) + m
                if pend and k >= 2 and k % 2 == 0: A(pend.pop(0))
        assert not pend, pend
        if i < 3:
            pend = [f"ds_write_b128 v{VLW}, {v(ACC+(i*5+m)*4,4)} offset:{(i*5+m)*1024}" for m in range(5)]
            if i == 0: pend.append(f"ds_write_b128 v{VAL}, {v(AT,4)}")
            if i == 1: pend.append(f"ds_write_b128 v{VAL}, {v(AT+4,4)} offset:1280")
            if i == 2: pend.append(f"ds_write_b128 v{VAL}, {v(AT+8,4)} offset:2560")
    tsn(A, 'M')
    for d in range(1, 4):
        A(f"s_add_u32 s73, s{S_WAVE}, {d}\ns_and_b32 s73, s73, 3\ns_mul_i32 s73, s73, 20480\nv_add_u32 v{1+d}, s73, v{VL}")
    A(f"""
    v_lshrrev_b32 v11, 5, v0                ; g>>1
    v_mul_u32_u24 v11, 20480, v11
    v_bfe_u32 v12, v0, 2, 3                 ; 4(g&1)+r
    v_mul_u32_u24 v12, 160, v12
    v_add_u32 v11, v11, v12
    v_and_b32 v12, 3, v0
    v_lshl_add_u32 v11, v12, 3, v11
    s_lshl_b32 s73, s{S_WAVE}, 5
    s_add_u32 s73, s73, 15360
    v_add_u32 v11, s73, v11
    s_waitcnt lgkmcnt(0)
    s_barrier
    """)
    RD = WR
    for d in range(1, 4):
        for m in range(5):
            A(f"ds_read_b128 {v(RD+((d-1)*5+m)*4,4)}, v{1+d} offset:{((3-d)*5+m)*1024}")
    AF = HB
    for m in range(5):
        A(f"ds_read_b64_tr_b16 {v(AF+2*m,2)}, v11 offset:{(m&1)*40960 + (m>>1)*1280}")
    A(f"""
    v_mul_u32_u24 v5, 1280, v{VTOK}
    v_lshrrev_b32 v6, 4, v0                 ; g
    v_and_b32 v7, 1, v6
    v_lshrrev_b32 v9, 1, v6
    v_lshlrev_b32 v7, 5, v7
    v_lshl_add_u32 v7, v9, 4, v7
    v_add_u32 v7, v5, v7
    v_lshl_add_u32 v6, v6, 3, v5
    s_mul_i32 s73, s{SDT}, 160
    """)
    F = ACC + 60
    for d in range(3):
        A(f"s_waitcnt lgkmcnt({min(15, 15 - 5*d)})")
        for q in range(20): A(f"v_add_f32 v{F+q}, v{F+q}, v{RD+d*20+q}")
    A("s_waitcnt lgkmcnt(0)")
    G, OM = VG, VG+1
    O = HB + 16
    for m in range(5):
        for h in range(2):
            A(f"""
            v_lshlrev_b32 v12, 16, v{AF+2*m+h}
            v_and_b32 v13, 0xffff0000, v{AF+2*m+h}
            v_mul_f32 v{F+4*m+2*h}, v{OM}, v{F+4*m+2*h}
            v_mul_f32 v{F+4*m+2*h+1}, v{OM}, v{F+4*m+2*h+1}
            v_fmac_f32 v{F+4*m+2*h}, v{G}, v12
            v_fmac_f32 v{F+4*m+2*h+1}, v{G}, v13
            v_cvt_pk_bf16_f32 v{O+2*m+h}, v{F+4*m+2*h}, v{F+4*m+2*h+1}
            """)
        if m & 1:
            b = O + 2*(m-1); p = m >> 1
            A(f"v_permlane16_swap_b32 v{b}, v{b+2}\nv_permlane16_swap_b32 v{b+1}, v{b+3}")
            A(f"buffer_store_dwordx4 {v(b,4)}, v7, s[20:23], s73 offen offset:{64*p}")
    A(f"buffer_store_dwordx2 {v(O+8,2)}, v6, s[20:23], s73 offen offset:128")

def body(A):
    prologue(A, 512)
    skip = CFG["skip"]
    A(f"""
    s_cmp_{'lt' if CFG['swap'] else 'ge'}_u32 s2, 256
    s_cbranch_scc1 L_half1
    s_cmp_ge_u32 s{S_J}, 30
    s_cbranch_scc1 L_prepC
    """)
    if "g1" in skip: A("s_waitcnt lgkmcnt(0)\ns_branch L_done")
    role_g1(A)
    A(f"""
    s_branch L_done
    L_prepC:
    s_lshl_b32 s69, s{S_X}, 1
    s_add_u32 s69, s69, s{S_J}
    s_sub_u32 s69, s69, 30
    """)
    if "C" in skip: A("s_waitcnt lgkmcnt(0)\ns_branch L_done")
    role_prep_w(A)
    A(f"""
    s_branch L_done
    L_half1:
    {"s_waitcnt lgkmcnt(0)" if "half1" in skip else ""}
    {"s_branch L_done" if "half1" in skip else ""}
    s_and_b32 s69, s{S_X}, 1
    s_lshl_b32 s69, s69, 2
    s_lshr_b32 s70, s{S_X}, 1
    s_add_u32 s69, s69, s70
    s_lshl_b32 s69, s69, 5
    s_cmp_ge_u32 s{S_J}, 12
    s_cbranch_scc1 L_ssm
    """)
    role_idle(A)
    A(f"""
    s_branch L_g2
    L_ssm:
    s_mul_i32 s68, s{S_X}, 20
    s_add_u32 s68, s68, s{S_J}
    s_sub_u32 s68, s68, 12
    """)
    role_ssm(A)
    A("L_g2:")
    if "g2" in skip: A("s_branch L_done")
    role_g2(A)
    A("L_done:")
    if CFG["dbg"]: ts_end(A)
    if CFG.get("span"):
        A("s_waitcnt vmcnt(0)\ns_memrealtime vcc\ns_waitcnt lgkmcnt(0)")
        srd(A, 4, P_DBG, 0, 256)
        A(f"""
        s_cmp_lg_u32 s{S_WAVE}, 0
        s_cbranch_scc1 L_exit
        v_mov_b32 v1, 0
        v_mov_b32 v2, s{TSR}
        v_mov_b32 v3, vcc_lo
        s_mov_b64 exec, 1
        s_cmp_lt_u32 s2, 6
        s_cbranch_scc0 L_sp1
        s_lshl_b32 s9, s2, 2
        buffer_store_dword v3, v1, s[4:7], s9 offen offset:16
        s_cmp_lg_u32 s2, 0
        s_cbranch_scc1 L_exit
        buffer_store_dword v2, v1, s[4:7], 0 offen
        s_branch L_exit
        L_sp1:
        s_cmp_eq_u32 s2, 256
        s_cbranch_scc0 L_sp2
        buffer_store_dwordx2 v[2:3], v1, s[4:7], 0 offen offset:4
        s_branch L_exit
        L_sp2:
        s_cmp_eq_u32 s2, 487
        s_cbranch_scc0 L_sp3
        buffer_store_dwordx2 v[2:3], v1, s[4:7], 0 offen offset:56
        s_branch L_exit
        L_sp3:
        s_sub_u32 s9, s2, 200
        s_cmp_lt_u32 s9, 4
        s_cbranch_scc0 L_exit
        s_lshl_b32 s9, s9, 2
        buffer_store_dword v3, v1, s[4:7], s9 offen offset:40
        """)
    A("L_exit:\ns_endpgm")

def build(verbose=False):
    kname = NAME + "_kernel"
    A = Asm(); A.kname = kname
    A(f".globl {kname}\n.p2align 8\n.type {kname},@function\n{kname}:")
    body(A)
    lines, nn = fix_hazards(A.lines, verbose)
    head = "; @launch grid=(512,1,1) block=(256,1,1) lds=81920\n.amdgcn_target \"amdgcn-amd-amdhsa--gfx950\"\n.text\n"
    desc = f""".section .rodata,"a"
.p2align 6
.amdhsa_kernel {kname}
  .amdhsa_next_free_vgpr 256
  .amdhsa_next_free_sgpr 102
  .amdhsa_accum_offset 256
  .amdhsa_group_segment_fixed_size 0
  .amdhsa_kernarg_size 120
  .amdhsa_user_sgpr_count 2
  .amdhsa_user_sgpr_kernarg_segment_ptr 1
  .amdhsa_system_sgpr_workgroup_id_x 1
.end_amdhsa_kernel
"""
    return head + "\n".join(lines) + "\n" + desc

if __name__ == "__main__":
    out = sys.argv[1] if len(sys.argv) > 1 else "f.s"
    src = build()
    open(out, "w").write(src)
    print("written", out, len(src))
```

```python
import sys, struct
sys.path.insert(0, "work")
from asmlib import *

NAME = "gated_mix__ssm_conv_s4d__geglu_ffn__prompt"
WS_H    = 0x100000
WS_AT   = 0x800000
WS_WD   = 0xC00000
WS_G    = 0xF00000
WS_UT   = 0x1000000
WS_TS   = 0x1400000
AT_ROW = 4224
UT_CH = 10368
H_BYTES, AT_BYTES, WD_BYTES, G_BYTES, UT_BYTES = 2048*1536*2, 640*AT_ROW, 1536*640*2, 2048*8, 256*UT_CH
X_BYTES = 2048*1280
FL_BYTES = 0x1c000
F_EP, F_G, F_WD, F_H, F_A, F_T = 0x0, 0x1000, 0x2000, 0x6000, 0x6000 + 240*128, 0x14000
P_U, P_LA, P_AI, P_CR, P_CI, P_DT, P_DS, P_BX = 36, 38, 40, 42, 44, 46, 48, 50
P_WG, P_WU, P_WD, P_GW, P_OUT, P_DBG, P_WS = 52, 54, 56, 58, 60, 62, 64
S_WAVE, S_J, S_X, S_TAG = 66, 67, 3, 1
LOG2E = 1.4426950408889634
SC = " sc1"
SPIN = 20000
CFG = dict(split=(8, 8, 6, 5, 5), wmod=" nt", wdmod=" nt", rot=(0,2,4,6,8), rotx=1, rotl=7, gostep=10, slp=6, slpH=1, nbU=3, kprio=3, nbA=3, nbB=12,
           umod="", wdelay=2, kmf0=40, warmat=2, nTA=0, nT0=1, waitT=True, tpub=2, slpI=16, marks='kuePHM', swap=False, cwarm=None, nTS=None, dlyW=0, gnb=2, xl=2, fpos=0.6, dlyI=0, dlyC=0, iprio=3, hi0=12, wsp=8, slpU=16, cprio=3, xtouch=True, prio=True, skip=(), dbg=False, pk=True, hsc=SC, psc=SC)
def fbits(x): return "0x%08x" % struct.unpack("<I", struct.pack("<f", x))[0]

def srd(A, dst, ptr, off, nbytes):
    if off:
        A(f"s_add_u32 s{dst}, s{ptr}, {off}\ns_addc_u32 s{dst+1}, s{ptr+1}, 0")
    else:
        A(f"s_mov_b32 s{dst}, s{ptr}\ns_mov_b32 s{dst+1}, s{ptr+1}")
    A(f"s_mov_b32 s{dst+2}, {nbytes}\ns_mov_b32 s{dst+3}, 0x20000")

TSR = 92
def ts(A, i):
    if CFG["dbg"]:
        A(f"s_waitcnt lgkmcnt(0)\ns_memtime vcc\ns_waitcnt lgkmcnt(0)\ns_mov_b32 s{TSR+2+i}, vcc_lo")
def tsn(A, n):
    if n in CFG['marks']: ts(A, 1 + CFG['marks'].index(n))
def kwait(A):
    A(f"s_waitcnt lgkmcnt(0)\ns_load_dword s{S_TAG}, s[{P_WS}:{P_WS+1}], {F_EP}")
    if CFG["dbg"]:
        for i in range(1, 8): A(f"s_mov_b32 s{TSR+2+i}, 0")
def ts_end(A):
    A("s_waitcnt vmcnt(0)")
    ts(A, 7)
    A(f"s_memrealtime vcc\ns_waitcnt lgkmcnt(0)\ns_mov_b32 s{TSR+1}, vcc_lo")
    srd(A, 4, P_WS, WS_TS, 0x100000)
    A(f"s_lshl_b32 s8, s2, 2\ns_add_u32 s8, s8, s{S_WAVE}\ns_lshl_b32 s8, s8, 6\nv_mov_b32 v1, 0")
    for i in range(10): A(f"v_mov_b32 v{2+i}, s{TSR+i}")
    A("s_getreg_b32 s9, hwreg(HW_REG_HW_ID)\ns_getreg_b32 s10, hwreg(HW_REG_XCC_ID)\nv_mov_b32 v12, s9\nv_mov_b32 v13, s10")
    A("s_mov_b64 exec, 1")
    for i in range(3): A(f"buffer_store_dwordx4 {v(2+4*i,4)}, v1, s[4:7], s8 offen offset:{16*i}")

def prologue(A, nwg):
    if CFG["dbg"]: A(f"s_memrealtime s[{TSR}:{TSR+1}]\ns_memtime s[{TSR+2}:{TSR+3}]")
    if CFG.get("span"): A(f"s_memrealtime s[{TSR}:{TSR+1}]")
    A(f"""
    s_load_dwordx16 s[36:51], s[0:1], 0
    s_load_dwordx8 s[52:59], s[0:1], 64
    s_load_dwordx4 s[60:63], s[0:1], 96
    s_load_dwordx2 s[64:65], s[0:1], 112
    s_cmp_ge_u32 s2, {nwg}
    s_cbranch_scc1 L_exit
    v_lshrrev_b32 v1, 6, v0
    v_and_b32 v0, 63, v0
    v_readfirstlane_b32 s{S_WAVE}, v1
    s_and_b32 s{S_X}, s2, 7
    s_bfe_u32 s{S_J}, s2, 0x50003
    """)
    if CFG["cwarm"]:
        n, w0 = CFG["cwarm"]
        A(f"""
        s_lshr_b32 s70, s2, 3
        s_lshl_b32 s70, s70, 2
        s_add_u32 s70, s70, s{S_WAVE}
        s_sub_u32 s70, s70, {w0}
        s_cmp_ge_u32 s70, {n}
        s_cbranch_scc1 L_nocw
        s_getpc_b64 s[72:73]
        s_and_b32 s72, s72, 0xffffff00
        s_lshl_b32 s70, s70, 13
        v_lshl_add_u32 v1, v0, 7, s70
        v_min_u32 v1, L_end-{A.kname}-4, v1
        global_load_dword v255, v1, s[72:73]
        L_nocw:
        """)

def spin_tail(A, lab, done, cnt, slp=None):
    slp = CFG["slp"] if slp is None else slp
    if slp: A(f"s_sleep {slp}")
    A(f"s_sub_u32 s{cnt}, s{cnt}, 1\ns_cbranch_scc0 {lab}\n{done}:")

def mk_tag(A):
    A(f"s_mul_i32 s{S_TAG}, s{S_TAG}, 0x9e3779b1\ns_add_u32 s{S_TAG}, s{S_TAG}, 0x7f4a7c15\ns_or_b32 s{S_TAG}, s{S_TAG}, 1")

def poll(A, sfl, vt, va, cnt, preissued=False, slp=None):
    lab, done = A.label("poll"), A.label("pollok")
    A(f"s_mov_b32 s{cnt}, {12000000 // (64*(CFG['slp'] if slp is None else slp) + 600)}")
    if preissued:
        A(f"v_cmp_ne_u32 vcc, s{S_TAG}, v{vt}\ns_cbranch_vccz {done}")
    A(f"""{lab}:
    buffer_load_dword v{vt}, v{va}, s[{sfl}:{sfl+3}], 0 offen{SC}
    s_waitcnt vmcnt(0)
    v_cmp_ne_u32 vcc, s{S_TAG}, v{vt}
    s_cbranch_vccz {done}
    """)
    spin_tail(A, lab, done, cnt, slp)

def publish(A, sfl, soff, vt, vz):
    lab = A.label("pub")
    A(f"""
    s_cmp_lg_u32 s{S_WAVE}, 0
    s_cbranch_scc1 {lab}
    v_mov_b32 v{vt}, s{S_TAG}
    s_mov_b64 exec, 1
    buffer_store_dword v{vt}, v{vz}, s[{sfl}:{sfl+3}], s{soff} offen{SC}
    s_mov_b64 exec, -1
    {lab}:
    """)

IMG = 2688
HALF = "s_mov_b32 exec_lo, 0xffff\ns_mov_b32 exec_hi, 0xffff"
def p8_addr(A):
    A(f"""
    v_mul_u32_u24 v57, 1296, v61
    v_add_u32 v57, v57, v62
    s_mul_i32 s70, s{S_WAVE}, 20480
    v_add_u32 v57, s70, v57
    v_bfe_u32 v58, v0, 3, 1                 ; r>>1
    v_mul_u32_u24 v58, 20480, v58
    v_bfe_u32 v59, v0, 2, 1                 ; r&1
    v_mul_u32_u24 v59, 1296, v59
    v_add_u32 v58, v58, v59
    v_lshrrev_b32 v60, 4, v0                ; g
    v_lshl_add_u32 v58, v60, 5, v58
    v_and_b32 v59, 3, v0
    v_lshl_add_u32 v58, v59, 3, v58
    s_lshl_b32 s70, s{S_WAVE}, 7
    v_add_u32 v58, s70, v58
    v_mul_u32_u24 v60, 49152, v60
    v_and_b32 v59, 15, v0
    v_lshl_add_u32 v60, v59, 4, v60
    v_mov_b32 v61, 0
    """)
def p8_load(A, dst, sr, soff, mod, va=56):
    A(f"buffer_load_dwordx4 {v(dst,4)}, v{va}, s[{sr}:{sr+3}], {soff} offen{mod}")
    A(f"buffer_load_dwordx4 {v(dst+4,4)}, v{va}, s[{sr}:{sr+3}], {soff} offen offset:512{mod}")
    A(HALF)
    A(f"buffer_load_dwordx4 {v(dst+8,4)}, v{va}, s[{sr}:{sr+3}], {soff} offen offset:1024{mod}")
    A("s_mov_b64 exec, -1")
def p8_write(A, src, slot):
    A(f"ds_write_b128 v57, {v(src,4)} offset:{slot*IMG}\nds_write_b128 v57, {v(src+4,4)} offset:{slot*IMG+512}")
    A(HALF)
    A(f"ds_write_b128 v57, {v(src+8,4)} offset:{slot*IMG+1024}\ns_mov_b64 exec, -1")
def p8_out(A, dst, slot, sr, soff, va, step):
    for q in range(3):
        A(f"ds_read_b64_tr_b16 {v(dst+4*q,2)}, v58 offset:{slot*IMG+q*512}\nds_read_b64_tr_b16 {v(dst+4*q+2,2)}, v58 offset:{slot*IMG+q*512+40960}")
    sk = A.label("p8s")
    for q in range(3):
        if q == 2: A(f"s_cmp_ge_u32 s{S_WAVE}, 2\ns_cbranch_scc1 {sk}")
        A(f"s_waitcnt lgkmcnt({4-2*q})")
        if "pstore" not in CFG["skip"]: A(f"buffer_store_dwordx4 {v(dst+4*q,4)}, v{va}, s[{sr}:{sr+3}], s{soff} offen{CFG['psc']}")
        if q < 2: A(f"s_add_u32 s{soff}, s{soff}, {step}")
    A(f"{sk}:\ns_waitcnt lgkmcnt(0)")
def gate_dot(A, X, W):
    A("v_mov_b32 v52, 0")
    for j in range(12): A(f"v_dot2_f32_bf16 v52, v{X+j}, v{W+j}, v52")
    for sh in (8, 4, 2, 1):
        A(f"v_add_f32_dpp v52, v52, v52 row_ror:{sh} row_mask:0xf bank_mask:0xf")
    A("v_add_f32_dpp v52, v52, v52 row_bcast:15 row_mask:0xa bank_mask:0xf")
def gate_out(A, sr, soff):
    A(f"""
    v_cvt_pk_bf16_f32 v53, v53, v53
    v_lshlrev_b32 v53, 16, v53
    v_mul_f32 v53, {fbits(-LOG2E)}, v53
    v_exp_f32 v53, v53
    v_add_f32 v53, 1.0, v53
    v_rcp_f32 v53, v53
    v_cvt_pk_bf16_f32 v53, v53, v53
    v_lshlrev_b32 v54, 16, v53
    v_sub_f32 v53, 1.0, v54
    v_cvt_pk_bf16_f32 v53, v53, v53
    v_lshlrev_b32 v55, 16, v53
    s_mov_b32 exec_lo, 0xffff0000
    s_mov_b32 exec_hi, 0xffff0000
    buffer_store_dwordx2 v[54:55], v63, s[{sr}:{sr+3}], s{soff} offen{SC}
    s_mov_b64 exec, -1
    """)
NWDF = 16
def role_prep_w(A):
    NB = CFG["gnb"]
    GX, GW = 64, 16
    A(f"""
    s_lshl_b32 s79, s69, 7
    s_add_u32 s79, s79, {F_G}
    s_lshl_b32 s69, s69, 2
    s_add_u32 s69, s69, s{S_WAVE}
    s_mul_i32 s88, s69, {32*1280}
    s_lshl_b32 s89, s69, 8
    v_lshrrev_b32 v63, 5, v0                ; row&1
    v_and_b32 v62, 31, v0
    v_lshlrev_b32 v62, 4, v62
    v_mul_u32_u24 v56, 1280, v63
    v_add_u32 v56, v56, v62
    v_lshlrev_b32 v63, 3, v63
    v_and_b32 v61, 15, v0
    v_lshl_add_u32 v63, v61, 4, v63
    v_mov_b32 v8, 0
    s_mov_b32 s71, 0
    s_mov_b32 s82, {X_BYTES}
    s_mov_b32 s83, 0x20000
    s_mov_b32 s86, 1280
    s_mov_b32 s87, 0x20000
    """)
    for j in range(8, 12):
        for q in range(NB): A(f"v_mov_b32 v{GX+12*q+j}, 0")
        A(f"v_mov_b32 v{GW+j}, 0")
    kwait(A)
    if CFG["dlyC"]: A(f"s_sleep {CFG['dlyC']}")
    A(f"s_mov_b64 s[80:81], s[{P_U}:{P_U+1}]\ns_mov_b64 s[84:85], s[{P_GW}:{P_GW+1}]")
    p8_load(A, GW, 84, "0", "", va=62)
    for q in range(NB):
        p8_load(A, GX+12*q, 80, "s88", "")
        A("s_add_u32 s88, s88, 2560")
    srd(A, 16, P_WS, WS_G, G_BYTES)
    srd(A, 24, P_WS, 0, FL_BYTES)
    top = A.label("gl")
    A(f"s_mov_b32 s70, {16//NB - 1}\n{top}:\ns_cmp_eq_u32 s70, 0\ns_cselect_b32 s88, 0x8000000, s88")
    for q in range(NB):
        A(f"s_waitcnt vmcnt({3*(NB-1)})")
        gate_dot(A, GX+12*q, GW)
        p8_load(A, GX+12*q, 80, "s88", "")
        A("s_add_u32 s88, s88, 2560\nv_cmp_eq_u32 vcc, s71, v61\nv_cndmask_b32 v53, v53, v52, vcc\ns_add_u32 s71, s71, 1")
    A(f"s_sub_u32 s70, s70, 1\ns_cbranch_scc0 {top}\ns_waitcnt lgkmcnt(0)")
    gate_out(A, 16, 89)
    ts(A, 2)
    mk_tag(A)
    A(f"s_waitcnt vmcnt(0)\ns_barrier")
    publish(A, 24, 79, 9, 8)
    ts(A, 3)
    if not CFG["skip"]:
        ne = A.label("noep")
        A(f"""
        s_sub_u32 s70, s79, {F_G}
        s_or_b32 s70, s70, s{S_WAVE}
        s_cmp_lg_u32 s70, 0
        s_cbranch_scc1 {ne}
        s_setprio 0
        v_lshlrev_b32 v2, 7, v0
        v_add_u32 v2, {F_H}, v2
        s_mov_b32 s71, 7
        """)
        top = A.label("ep")
        A(f"{top}:\nv_min_u32 v3, {F_H + 399*128}, v2")
        poll(A, 24, 9, 3, 72, slp=32)
        A(f"""
        v_add_u32 v2, {64*128}, v2
        s_sub_u32 s71, s71, 1
        s_cmp_lg_u32 s71, 0
        s_cbranch_scc1 {top}
        v_min_u32 v3, 15, v0
        v_lshlrev_b32 v3, 7, v3
        v_add_u32 v3, {F_G}, v3
        """)
        poll(A, 24, 9, 3, 72, slp=32)
        A(f"""
        v_mov_b32 v2, s{S_TAG}
        s_mov_b64 exec, 1
        buffer_store_dword v2, v8, s[24:27], 0 offen{SC}
        s_mov_b64 exec, -1
        {ne}:
        """)

def touch(A, k, dst, va, idle):
    base = (48*k) if idle else (48*CFG["nTA"] + 80*k - 48)
    A(f"""
    s_lshl_b32 s88, s{S_J}, 2
    s_add_u32 s88, s88, s{S_WAVE}
    s_add_u32 s88, s88, {base & 0xffffffff}
    s_lshl_b32 s88, s88, 13
    buffer_load_dword v{dst}, v{va}, s[8:11], s88 offen{SC}
    """)

def polln(A, n, va, r, cnt, preissued=False, slp=None):
    lab, done = A.label("poll"), A.label("pollok")
    def chk():
        o = "".join(f"v_xor_b32 v{r+q}, s{S_TAG}, v{r+q}\n" for q in range(n))
        o += f"v_or_b32 v{r}, v{r}, v{r+1}\n" + (f"v_or3_b32 v{r}, v{r}, v{r+2}, v{r+3}\n" if n == 4 else "")
        return o + f"v_cmp_ne_u32 vcc, 0, v{r}\ns_cbranch_vccz {done}"
    A(f"s_mov_b32 s{cnt}, {SPIN}")
    if preissued: A(chk())
    A(f"{lab}:\nbuffer_load_dwordx{n} {v(r,n)}, v{va}, s[24:27], 0 offen{SC}\ns_waitcnt vmcnt(0)")
    A(chk())
    spin_tail(A, lab, done, cnt, slp)
def poll4(A, va, r, cnt, preissued=False): polln(A, 4, va, r, cnt, preissued)
def poll2w(A, va, r, cnt): polln(A, 2, va, r, cnt)

def role_idle(A):
    if CFG["prio"]: A(f"s_setprio {CFG['iprio']}")
    QX, QO = 64, 128
    A(f"""
    s_mul_i32 s68, s{S_X}, 12
    s_add_u32 s68, s68, s{S_J}
    s_mul_i32 s90, s68, 20480
    s_mul_i32 s89, s{S_WAVE}, 2560
    s_add_u32 s90, s90, s89
    s_mov_b32 s6, {WD_BYTES}
    s_mov_b32 s7, 0x20000
    v_lshrrev_b32 v61, 5, v0                ; row&1
    v_and_b32 v62, 31, v0
    v_lshlrev_b32 v62, 4, v62               ; piece*16
    v_mul_u32_u24 v56, 1280, v61
    v_add_u32 v56, v56, v62
    """)
    kwait(A)
    if CFG["dlyI"]: A(f"s_sleep {CFG['dlyI']}")
    A(f"s_mov_b64 s[4:5], s[{P_WD}:{P_WD+1}]")
    for q in range(2):
        p8_load(A, QX+12*q, 4, "s90", CFG["wdmod"])
        if q == 0: A("s_add_u32 s90, s90, 10240")
    p8_addr(A)
    srd(A, 8, P_WS, WS_WD, WD_BYTES)
    srd(A, 24, P_WS, 0, FL_BYTES)
    A(f"""
    v_lshlrev_b32 v40, 7, v0
    v_min_u32 v41, 19, v0
    s_mul_i32 s70, s{S_X}, {20*128}
    s_add_u32 s70, s70, {F_A}
    v_lshl_add_u32 v41, v41, 7, s70
    s_mul_i32 s70, s{S_WAVE}, {24*128}
    s_add_u32 s70, s70, {F_WD}
    v_min_u32 v42, 23, v0
    v_lshl_add_u32 v42, v42, 7, s70
    s_lshl_b32 s78, s68, 7
    s_add_u32 s78, s78, {F_WD}
    s_lshr_b32 s90, s68, 1
    s_lshl_b32 s90, s90, 10
    s_and_b32 s70, s68, 1
    s_lshl_b32 s70, s70, 9
    s_add_u32 s90, s90, s70
    s_mul_i32 s70, s{S_WAVE}, {4*49152}
    s_add_u32 s90, s90, s70
    """)
    for q in range(2):
        A(f"s_waitcnt vmcnt({3*(1-q)})")
        p8_write(A, QX+12*q, q)
    tsn(A, 'p')
    A("s_waitcnt lgkmcnt(0)\ns_barrier")
    for q in range(2):
        A(f"s_add_u32 s91, s90, {q*256}")
        p8_out(A, QO+12*q, q, 8, 91, 60, 16*49152)
    tsn(A, 'y')
    mk_tag(A)
    A("s_waitcnt vmcnt(0)\ns_barrier")
    publish(A, 24, 78, 16, 61)
    if CFG["prio"]: A("s_setprio 0")
    tsn(A, 's')
    if "idle" in CFG["skip"]: A("s_branch L_done")
    if CFG["nTA"] or not CFG["waitT"]:
        if CFG["dlyW"]: A(f"s_sleep {CFG['dlyW']}")
        poll(A, 24, 16, 42, 72, slp=CFG["slpI"])
        A("s_barrier")
        tsn(A, 'k')
        for k in range(CFG["nTA"]):
            touch(A, k, 237, 40, True)
            A("s_waitcnt vmcnt(0)")
    if CFG["waitT"]:
        nw = A.label("nw")
        A(f"s_cmp_lg_u32 s{S_WAVE}, 0\ns_cbranch_scc1 {nw}")
        poll(A, 24, 16, 41, 72, slp=CFG["slpI"])
        A(f"{nw}:\ns_barrier")
    A("s_mov_b32 s0, 0")
    tsn(A, 'u')

C1 = -2.0 * LOG2E * 0.7978845608028654
C2 = C1 * 0.044715
def role_g1(A0):
    def A(x):
        for l in x.split("\n"):
            t = l.strip()
            if "g1m" in CFG["skip"] and t.startswith("v_mfma"): l = "s_nop 7\ns_nop 7\ns_nop 7\ns_nop 5"
            if "g1r" in CFG["skip"] and t.startswith("ds_read"): l = "s_nop 0"
            A0(l)
    A.label = A0.label
    split = CFG["split"]
    st = [sum(split[:i]) for i in range(5)]
    assert sum(split) == 32 and min(split) >= 4 and max(split) <= 8
    pack_c0 = sum(st[i] << (6*i) for i in range(5)); pack_nc = sum(split[i] << (6*i) for i in range(5))
    sline, sc0, snc, srot, sflag = 69, 68, 79, 72, 91
    AR, ACC0, BR = 96, 64, 32
    RS, RA, KBAR = 8, 6, 16
    SB = 80
    VW, VX0, VX1, VT0, VT1 = 28, 29, 30, 14, 15
    VTOUCH, VHINT, VZ = 31, 13, 1
    if CFG["prio"]: A("s_setprio 2")
    A(f"""
    s_mul_i32 s68, s{S_J}, 43
    s_lshr_b32 s68, s68, 8               ; slot = j/6
    s_mul_i32 s69, s68, 6
    s_sub_u32 s69, s{S_J}, s69           ; j%6
    s_and_b32 s70, s{S_X}, 1             ; half
    s_add_u32 s72, s68, s69
    s_lshl_b32 s72, s72, 1
    s_add_u32 s72, s72, s70
    s_cmp_eq_u32 s69, 5
    s_cselect_b32 s12, 0x8000000, 0
    s_addc_u32 s72, s72, 0
    s_mul_i32 s73, s70, 5
    s_add_u32 s73, s73, s68
    s_mul_i32 s{sflag}, s73, {24*128}
    s_lshr_b32 s71, s{S_X}, 1            ; q
    s_mul_i32 s73, s71, 6
    s_add_u32 s69, s69, s73              ; line
    s_lshl_b32 s73, s69, 7
    s_add_u32 s{sflag}, s{sflag}, s73
    s_add_u32 s20, s{sflag}, {F_T}
    s_add_u32 s{sflag}, s{sflag}, {F_H}
    s_mul_i32 s73, s68, 6
    s_lshr_b32 s79, {pack_nc}, s73
    s_and_b32 s79, s79, 63               ; nc
    s_lshr_b32 s68, {pack_c0}, s73
    s_and_b32 s68, s68, 63
    s_lshl_b32 s70, s70, 5
    s_add_u32 s68, s68, s70              ; c0
    s_mul_i32 s70, s72, 205
    s_lshr_b32 s70, s70, 11
    s_mul_i32 s70, s70, 10
    s_sub_u32 s72, s72, s70              ; rot
    s_lshl_b32 s71, s71, 1
    s_cmp_ge_u32 s71, s79
    s_cselect_b32 s13, 0x8000000, s12
    s_cselect_b32 s70, s79, 0
    s_sub_u32 s14, s71, s70              ; o0
    s_add_u32 s71, s71, 1
    s_cmp_ge_u32 s71, s79
    s_cselect_b32 s12, 0x8000000, s12
    s_add_u32 s15, s14, 1
    s_cmp_eq_u32 s15, s79
    s_cselect_b32 s15, 0, s15            ; o1
    s_add_u32 s21, s15, 1
    s_cmp_eq_u32 s21, s79
    s_cselect_b32 s21, 0, s21            ; o2
    s_mul_i32 s21, s21, 40960
    s_mul_i32 s22, s79, 40960
    v_lshrrev_b32 v1, 3, v0                 ; lane>>3
    v_and_b32 v13, 7, v0                    ; chunk
    s_lshr_b32 s70, s{S_WAVE}, 1
    s_lshl_b32 s70, s70, 3
    v_add_u32 v16, s70, v1
    v_mul_u32_u24 v{VW}, 3072, v16
    v_bfe_u32 v17, v0, 4, 1
    s_and_b32 s70, s{S_WAVE}, 1
    s_lshl_b32 s70, s70, 2
    v_lshl_or_b32 v17, v17, 1, s70          ; swz
    v_xor_b32 v17, v17, v13
    v_lshl_add_u32 v{VW}, v17, 4, v{VW}
    s_lshl_b32 s71, s{sline}, 7
    v_add_u32 v{VW}, s71, v{VW}             ; W voffset
    s_lshl_b32 s70, s{S_WAVE}, 3
    v_add_u32 v{VX0}, s70, v1
    v_bfe_u32 v17, v{VX0}, 1, 3             ; swz
    v_xor_b32 v17, v17, v13
    v_mul_u32_u24 v{VX0}, 1280, v{VX0}
    v_lshl_add_u32 v{VX0}, v17, 4, v{VX0}
    s_mul_i32 s73, s{sc0}, 40960
    v_add_u32 v13, s73, v{VX0}
    s_mul_i32 s70, s14, 40960
    v_add_u32 v{VX0}, s70, v13
    s_mul_i32 s70, s15, 40960
    v_add_u32 v{VX1}, s70, v13
    s_lshl_b32 s74, s{S_WAVE}, 10           ; m0 base
    """)
    for b in range(10):
        A(f"s_lshl_b32 s{SB+b}, s72, 7\ns_add_u32 s72, s72, 1\ns_cmp_ge_u32 s72, 10\ns_cselect_b32 s72, 0, s72")
    A(f"""
    s_mov_b32 s90, 40960
    s_sub_u32 s75, s{snc}, 2
    v_add_u32 v10, s21, v13
    v_bfe_u32 v16, v0, 4, 1                 ; mat
    v_lshrrev_b32 v17, 5, v0                ; h
    v_bfe_u32 v18, v0, 2, 2                 ; r
    v_and_b32 v19, 1, v0                    ; c&1
    v_bfe_u32 v20, v0, 1, 1                 ; c>>1
    s_lshl_b32 s70, s{S_WAVE}, 1
    v_or_b32 v19, s70, v19                  ; chunk
    v_and_b32 v21, 2, v18
    v_lshl_or_b32 v21, v16, 2, v21          ; swz
    v_xor_b32 v19, v19, v21
    v_lshl_add_u32 v22, v17, 1, v16         ; mat + 2h
    v_lshlrev_b32 v{VT0}, 10, v22
    v_lshl_add_u32 v{VT0}, v18, 7, v{VT0}
    v_lshl_add_u32 v{VT0}, v19, 4, v{VT0}
    v_lshl_add_u32 v{VT0}, v20, 3, v{VT0}
    v_add_u32 v{VT1}, s90, v{VT0}
    v_and_b32 v16, 31, v0                   ; n
    v_bfe_u32 v18, v0, 1, 3                 ; (n>>1)&7
    v_xor_b32 v18, v18, v17
    v_lshlrev_b32 v2, 7, v16
    v_lshl_add_u32 v2, v18, 4, v2
    v_xor_b32 v3, 32, v2
    v_xor_b32 v4, 64, v2
    v_xor_b32 v5, 96, v2
    v_add_u32 v6, s90, v2
    v_add_u32 v7, s90, v3
    v_add_u32 v8, s90, v4
    v_add_u32 v9, s90, v5
    v_bfe_u32 v18, v0, 4, 1                 ; n>>4
    v_mul_u32_u24 v11, 49152, v18
    s_and_b32 s70, s{S_WAVE}, 1
    s_lshl_b32 s70, s70, 1
    v_add_u32 v18, s70, v17                 ; 2(w&1)+h
    v_lshlrev_b32 v18, 4, v18
    v_and_or_b32 v18, v0, 15, v18
    v_lshl_add_u32 v11, v18, 4, v11
    s_lshl_b32 s78, s{sline}, 1
    s_lshr_b32 s70, s{S_WAVE}, 1
    s_add_u32 s78, s78, s70
    s_lshl_b32 s78, s78, 10
    s_mul_i32 s70, s{sc0}, 98304
    s_add_u32 s28, s78, s70
    s_mul_i32 s70, s{snc}, 98304
    s_add_u32 s29, s28, s70
    s_mul_i32 s70, s14, 98304
    s_add_u32 s78, s28, s70
    v_mov_b32 v12, {fbits(C2)}
    v_mov_b32 v{VZ}, 0
    s_mov_b32 s10, {640*3072}
    s_mov_b32 s11, 0x20000
    s_mov_b32 s6, {X_BYTES}
    s_mov_b32 s7, 0x20000
    s_mul_i32 s73, s{SB}, 1536
    s_mov_b32 m0, s74
    """)
    kwait(A)
    A(f"""
    s_bitcmp1_b32 s{S_WAVE}, 0
    s_cselect_b32 s8, s{P_WU}, s{P_WG}
    s_cselect_b32 s9, s{P_WU+1}, s{P_WG+1}
    """)
    XL = CFG["xl"]
    steps = []
    for b in range(10):
        stp = [("W", b, ks) for ks in range(4)] + [("X0", b, 0)]
        if b in (XL, XL+1): stp.append(("X1", b-XL, 0))
        if b >= 6: stp.append(("X1", b-4, 0))
        steps.append(stp)
    steps.append([("X1", b, 0) for b in range(6, 10)])
    seq = [p for stp in steps for p in stp]
    assert len(seq) == 60
    page = {p: i % 20 for i, p in enumerate(seq)}
    for g in range(4):
        for kb in range(5): seq.append(("M", g, kb))
    adv_ops = ["s_add_u32 s21, s21, s90", "s_cmp_eq_u32 s21, s22", "s_cselect_b32 s21, 0, s21",
               "s_sub_u32 s75, s75, 1", "s_cmp_gt_i32 s75, 0", "s_cselect_b32 s76, s21, 0x8000000", "v_add_u32 v10, s76, v13"]
    def piece(i):
        p = seq[i]; pg = i % 20
        pre = []
        if p[0] == "W":
            if p[2] == 0: pre.append(f"s_mul_i32 s73, s{SB+p[1]}, 1536")
            else: pre.append(f"s_add_u32 s73, s73, 49152")
            iss = [f"buffer_load_dwordx4 v{VW}, s[8:11], s73 offen{CFG['wmod']} lds"]
        elif p[0] in ("X0", "X1"):
            iss = [f"buffer_load_dwordx4 v{VX0 if p[0] == 'X0' else VX1}, s[4:7], s{SB+p[1]} offen lds"]
        else:
            iss = [f"buffer_load_dwordx4 v10, s[4:7], s{SB+5*(p[1]&1)+p[2]} offen lds"]
            if (p[1] & 1) and p[2] == 4: iss += adv_ops
        pre.append(f"s_add_u32 m0, s74, {pg*4096}")
        return pre, iss
    vm = []
    def wait_for(npieces):
        pos = vm.index(npieces - 1)
        return len(vm) - 1 - pos
    for i in range(20):
        pre, iss = piece(i)
        if i == 0: pre = []
        for o in pre + iss: A(o)
        vm.append(i)
        if i == 0:
            A(f"s_mov_b32 s4, s{P_U}\ns_mov_b32 s5, s{P_U+1}")
        if i == 5:
            srd(A, 16, P_WS, WS_H, H_BYTES); srd(A, 24, P_WS, 0, FL_BYTES)
    UH, USO = AR + 144, (23, 30, 31, 77)
    srd(A, 32, P_WS, WS_UT, UT_BYTES)
    A(f"""
    v_bfe_u32 v16, v0, 2, 2                 ; r
    s_lshl_b32 s70, s{S_WAVE}, 3
    v_add_u32 v17, s70, v16                 ; row
    v_bfe_u32 v18, v17, 1, 3                ; swizzle
    v_lshrrev_b32 v19, 4, v0
    v_bfe_u32 v20, v0, 1, 1
    v_lshl_or_b32 v19, v19, 1, v20          ; chunk
    v_xor_b32 v18, v18, v19
    v_lshlrev_b32 v17, 7, v17
    v_lshl_add_u32 v17, v18, 4, v17
    v_and_b32 v20, 1, v0
    v_lshl_add_u32 v18, v20, 3, v17         ; tokens 0..3
    v_xor_b32 v19, 32, v18
    v_add_u32 v19, 512, v19                 ; tokens 4..7
    v_lshlrev_b32 v17, 4, v0
    """)
    for c in range(2):
        A(f"""
        s_add_u32 s70, s{sc0}, s{14+c}
        s_lshl_b32 s70, s70, 2
        s_add_u32 s70, s70, s{S_WAVE}
        s_mul_i32 s70, s70, {UT_CH}
        s_add_u32 s70, s70, s{13-c}
        """)
        for b in range(2): A(f"s_lshl_b32 s71, s{SB+b}, 3\ns_add_u32 s{USO[2*c+b]}, s70, s71")
    duty = {0: ("X0", 0, 0), 1: ("X0", 1, 1), XL: ("X1", 0, 2), XL+1: ("X1", 1, 3)}
    ust = [f"buffer_store_dwordx4 {v(UH+4*k,4)}, v17, s[32:35], s{USO[k]} offen{SC}" for k in range(4)]
    upos = None; upub = False
    def epi_ops(acc):
        ops = []
        T = 16
        for g0 in (0, 4):
            E = range(g0, g0+4)
            ops += [f"v_mul_f32 v{T+e-g0}, v{acc+e}, v{acc+e}" for e in E]
            ops += [f"v_mul_f32 v{acc+8+e}, v{acc+e}, v{acc+8+e}" for e in E]
            ops += [f"v_fmaak_f32 v{T+e-g0}, v12, v{T+e-g0}, {fbits(C1)}" for e in E]
            ops += [f"v_mul_f32 v{T+e-g0}, v{T+e-g0}, v{acc+e}" for e in E]
            ops += [f"v_exp_f32 v{T+e-g0}, v{T+e-g0}" for e in E]
            ops += [f"v_add_f32 v{T+e-g0}, 1.0, v{T+e-g0}" for e in E]
            ops += [f"v_rcp_f32 v{T+e-g0}, v{T+e-g0}" for e in E]
            ops += [f"v_mul_f32 v{acc+8+e}, v{acc+8+e}, v{T+e-g0}" for e in E]
            ops += [f"v_cvt_pk_bf16_f32 v{24+(g0>>1)+p}, v{acc+8+g0+2*p}, v{acc+8+g0+2*p+1}" for p in range(2)]
        ops.append(f"buffer_store_dwordx4 v[24:27], v11, s[16:19], s78 offen{CFG['hsc']}")
        ops.append("s_add_u32 s78, s78, 98304\ns_cmp_eq_u32 s78, s29\ns_cselect_b32 s78, s28, s78")
        return ops
    def wgt(o): return 2.0 if ("v_exp" in o or "v_rcp" in o) else (0.0 if o.startswith("s_") else 1.0)
    def bread_at(pg, ks, slot):
        return f"ds_read_b128 {v(BR+4*(slot%RS),4)}, v{2+4*(pg>=10)+ks} offset:{(pg%10)*4096}"
    mf = []
    for s_, stp in enumerate(steps):
        L0 = [(0, 4*b+ks, page[(n, b, 0)], ks) for (n, b, _) in stp if n == "X0" for ks in range(4)]
        L1 = [(1, 4*b+ks, page[(n, b, 0)], ks) for (n, b, _) in stp if n == "X1" for ks in range(4)]
        if L0 and L1: L = [x for pr in zip(L0, L1) for x in pr]
        else: L = L0 + L1
        mf.append(L)
    allm = [m for L in mf for m in L]
    def frag_read(j):
        if j < 80: return bread_at(allm[j][2], allm[j][3], j)
        jj = j - 80
        return bread_at(jj >> 2, jj & 3, j)
    nissued = 20; rd = 0; mi = 0
    E = 0
    started = [False, False]
    def emit(o):
        A(o)
        if o.startswith("buffer_store"): vm.append(None)
    def issue(i):
        pre, iss = piece(i); return pre, iss
    for s_ in range(12):
        if s_ <= 10:
            E += len(steps[s_])
            A(f"s_waitcnt vmcnt({wait_for(E)}) lgkmcnt(0)\ns_barrier")
            if s_ == 0: ts(A, 1)
            if upos is not None and not upub and len(vm) - wait_for(E) > upos:
                mk_tag(A); publish(A, 24, 20, 31, VZ); upub = True
                ts(A, 4)
            trs = []
            if s_ in duty:
                n, b, k = duty[s_]; pg = page[(n, b, 0)]
                assert pg <= 15
                trs += [f"ds_read_b64_tr_b16 {v(UH+4*k+2*t,2)}, v{18+t} offset:{pg*4096}" for t in range(2)]
            for (n, b, ks) in steps[s_]:
                if n == "W":
                    pg = page[(n, b, ks)]
                    for hh in range(2):
                        trs.append(f"ds_read_b64_tr_b16 {v(AR+16*b+4*ks+2*hh,2)}, v{VT1 if pg >= 10 else VT0} offset:{(pg%10)*4096 + hh*512}")
            ndma = len(steps[s_-1]) if s_ else 0
            rlim = sum(len(mf[i]) for i in range(s_+1))
        else:
            trs = []; ndma = 0
        ms = mf[s_-1] if s_ else []
        dm = list(range(nissued, nissued + ndma)); nissued += ndma
        last = (s_ == 11)
        ops = epi_ops(ACC0) if last else []
        tot = sum(wgt(o) for o in ops); oi = 0; done = 0.0
        def rd_more(limit, maxn):
            nonlocal rd
            n = 0
            while rd < limit and rd < mi + RS and n < maxn:
                A(frag_read(rd)); rd += 1; n += 1
        if not ms:
            rd_more(rlim, 99)
            for o in trs: A(o)
            continue
        if not last: rd_more(rlim, 99)
        for k, (ac, kidx, pg, ks) in enumerate(ms):
            acc = ACC0 + 16*ac
            pi = dm.pop(0) if dm else None
            pre, iss = piece(pi) if pi is not None else ([], [])
            for o in pre: A(o)
            if last: A(f"s_waitcnt lgkmcnt({min(15, rd - mi - 1)})")
            A(f"v_mfma_f32_32x32x16_bf16 {v(acc,16)}, {v(AR+4*kidx,4)}, {v(BR+4*(mi%RS),4)}, {v(acc,16) if started[ac] else 0}")
            started[ac] = True; mi += 1
            if last:
                if k == 12:
                    A(f"s_waitcnt vmcnt({wait_for(65)}) lgkmcnt(0)\ns_barrier")
                lim = 80 if k < 12 else 80 + RA
                rd_more(min(lim, mi + (RS if k < 12 else RA)), 3)
                if k >= 1:
                    tgt = tot * k / 14.0
                    while oi < len(ops) and done < tgt:
                        emit(ops[oi]); done += wgt(ops[oi]); oi += 1
            else:
                rd_more(rlim, 1)
                ntr = -(-len(trs) // (len(ms) - k))
                for _ in range(ntr): A(trs.pop(0))
            for o in iss: A(o)
            if pi is not None: vm.append(pi)
            if s_ == XL + 2 and ust:
                A(ust.pop(0)); vm.append(None)
                if not ust: upos = len(vm) - 1
        while dm:
            pi = dm.pop(0)
            pre, iss = piece(pi)
            for o in pre + iss: A(o)
            vm.append(pi)
        while oi < len(ops):
            emit(ops[oi]); oi += 1
    assert rd == 80 + RA and mi == 80 and nissued == 76 and upub, (rd, mi, nissued)
    ts(A, 2)
    tails = [A.label("g1tail"), A.label("g1tail")]
    A(f"s_sub_u32 s{snc}, s{snc}, 2\ns_cmp_eq_u32 s{snc}, 0\ns_cbranch_scc1 {tails[1]}")
    top = A.label("g1top")
    A(f"{top}:")
    cnt = RA
    for P in range(2):
        acc = ACC0 + 16*P
        ops = epi_ops(ACC0 + 16*(P ^ 1))
        tot = sum(wgt(o) for o in ops); oi = 0; done = 0.0
        issued = RA
        for k in range(40):
            kk = k % 20; stg = k // 20
            gs = 2*P + stg
            pi = None
            if kk == KBAR: pi = 60 + 5*gs
            elif kk in (0, 4, 8, 12): pi = 60 + 5*((gs - 1) & 3) + 1 + kk // 4
            pre, iss = piece(pi) if pi is not None else ([], [])
            for o in pre: A(o)
            A(f"s_waitcnt lgkmcnt({issued - k - 1})")
            A(f"v_mfma_f32_32x32x16_bf16 {v(acc,16)}, {v(AR+4*k,4)}, {v(BR+4*((40*P+k)%RS),4)}, {v(acc,16) if k else 0}")
            if kk == KBAR:
                A("s_waitcnt vmcnt(10) lgkmcnt(0)\ns_barrier")
            lim = 20*(stg+1) if kk < KBAR else 99
            n = 0
            while issued < min(k + 1 + RA, lim) and n < 3:
                j = (40*P + issued) % 80
                A(bread_at(j >> 2, j & 3, cnt)); cnt += 1; issued += 1; n += 1
            for o in iss: A(o)
            if k >= 1:
                tgt = tot * k / 38.0
                while oi < len(ops) and done < tgt:
                    A(ops[oi]); done += wgt(ops[oi]); oi += 1
        while oi < len(ops):
            A(ops[oi]); oi += 1
        A(f"s_sub_u32 s{snc}, s{snc}, 1\ns_cmp_eq_u32 s{snc}, 0\ns_cbranch_scc1 {tails[P]}" if P == 0 else
          f"s_sub_u32 s{snc}, s{snc}, 1\ns_cmp_lg_u32 s{snc}, 0\ns_cbranch_scc1 {top}")
    end = A.label("g1end")
    for P in (1, 0):
        A(f"{tails[P]}:\ns_nop 8")
        for o in epi_ops(ACC0 + 16*P): A(o)
        if P == 1: A(f"s_branch {end}")
    A(f"{end}:\ns_waitcnt vmcnt(0) lgkmcnt(0)\ns_barrier")
    publish(A, 24, sflag, 31, VZ)
    if CFG["prio"]: A("s_setprio 0")
    ts(A, 3)

def cmul(r, x, y, t, conj_out=False, pk=True):
    if pk:
        i1 = f"v_pk_mul_f32 {v(t,2)}, {v(x,2)}, {v(y,2)} op_sel_hi:[0,1]"
        i2 = f"v_pk_fma_f32 {v(r,2)}, {v(x,2)}, {v(y,2)}, {v(t,2)} op_sel:[1,1,0] op_sel_hi:[1,0,1] neg_lo:[0,1,0]"
        if conj_out: i2 += " neg_hi:[0,1,1]"
        return [i1, i2]
    o = [f"v_mul_f32 v{t}, v{x+1}, v{y+1}", f"v_mul_f32 v{t+1}, v{x+1}, v{y}"]
    if r == x or r == y:
        assert r == x and r != y
        o += [f"v_fma_f32 v{r+1}, v{x}, v{y+1}, v{t+1}" if not conj_out else f"v_fma_f32 v{r+1}, -v{x}, v{y+1}, -v{t+1}",
              f"v_fma_f32 v{r}, v{x}, v{y}, -v{t}"]
    else:
        o += [f"v_fma_f32 v{r+1}, v{x}, v{y+1}, v{t+1}" if not conj_out else f"v_fma_f32 v{r+1}, -v{x}, v{y+1}, -v{t+1}",
              f"v_fma_f32 v{r}, v{x}, v{y}, -v{t}"]
    return o

def interleave(*streams):
    out = []; idx = [0]*len(streams); tot = sum(len(x) for x in streams)
    while len(out) < tot:
        best = min((idx[i]/len(x), i) for i, x in enumerate(streams) if idx[i] < len(x))[1]
        out.append(streams[best][idx[best]]); idx[best] += 1
    return out

def role_ssm(A):
    sq = 68
    TB = 5760
    VKW, VKL, VKH = 241, 158, 159
    TBL, CS, MB = 5760, 1984, 9856
    C1_ = CS + 2
    WM = 216
    VF0, VF1, VG, VWA, VWB, VMW, VMR, VOUT = 243, 244, 245, 246, 249, 248, 250, 247
    PK = CFG["pk"]
    st_ = [sum(CFG["split"][:i]) for i in range(5)]
    sl_ = [max(q for q in range(5) if st_[q] <= c) for c in range(32)]
    LS = [sum(sl_[16*h+c] << (4*c) for c in range(16)) for h in range(2)]
    LQ = [sum(((16*h + c - st_[sl_[16*h+c]]) >> 1) << (2*c) for c in range(16)) for h in range(2)]
    KA = 48
    FA, FB = 64, 96
    if CFG["prio"]: A(f"s_setprio 3")
    A(f"""
    s_lshl_b32 s70, s{sq}, 2
    s_add_u32 s70, s70, s{S_WAVE}           ; channel d
    s_mul_i32 s71, s70, 384
    s_lshl_b32 s72, s70, 1
    v_lshlrev_b32 v1, 2, v0
    v_lshlrev_b32 v2, 1, v0
    v_mov_b32 v3, 0
    s_mul_i32 s76, s{S_WAVE}, 20480
    s_mov_b32 m0, s76
    s_add_u32 s78, s76, {TBL}
    """)
    for d in (8, 12, 16, 20): A(f"s_mov_b32 s{d+2}, {640*384}\ns_mov_b32 s{d+3}, 0x20000")
    for d in (4, 32): A(f"s_mov_b32 s{d+2}, 1280\ns_mov_b32 s{d+3}, 0x20000")
    A("""
    v_and_b32 v45, 15, v0                   ; lane & 15
    v_lshrrev_b32 v40, 4, v0                ; g
    v_lshlrev_b32 v41, 3, v40               ; 8g
    v_sub_u32 v42, v41, v45
    v_add_u32 v42, 16, v42
    v_min_u32 v42, 31, v42
    """)
    BANDS = [(11, 13), (3, 5), (6, 10), (5, 11), (4, 12), (12, 13)]
    def band(q):
        lo, hi = BANDS[q]
        A(f"s_mov_b32 s79, {(((1 << (hi-lo+1)) - 1) << lo) << 16}\nv_lshrrev_b32 v43, v42, s79")
        for r in range(4):
            A(f"v_bfe_u32 v44, v43, {2*r}, 1\nv_bfe_u32 v46, v43, {2*r+1}, 1\nv_lshl_or_b32 v44, v46, 16, v44\nv_mul_u32_u24 v{WM+4*q+r}, 0x3f80, v44")
    for q in range(3): band(q)
    def params():
        pm = CFG.get("pmod", " nt")
        for d, p in ((4, P_DT), (8, P_LA)): A(f"s_mov_b64 s[{d}:{d+1}], s[{p}:{p+1}]")
        A(f"""
        buffer_load_ushort v16, v3, s[4:7], s72 offen
        buffer_load_dword v4, v1, s[8:11], s71 offen{pm}
        buffer_load_ushort v5, v2, s[8:11], s71 offen offset:256{pm}
        """)
        for d, p in ((12, P_AI), (16, P_CR), (20, P_CI), (32, P_DS)): A(f"s_mov_b64 s[{d}:{d+1}], s[{p}:{p+1}]")
        A(f"""
        buffer_load_dword v6, v1, s[12:15], s71 offen{pm}
        buffer_load_ushort v7, v2, s[12:15], s71 offen offset:256{pm}
        buffer_load_dword v8, v1, s[16:19], s71 offen{pm}
        buffer_load_ushort v9, v2, s[16:19], s71 offen offset:256{pm}
        buffer_load_dword v10, v1, s[20:23], s71 offen{pm}
        buffer_load_ushort v11, v2, s[20:23], s71 offen offset:256{pm}
        buffer_load_ushort v17, v3, s[32:35], s72 offen
        """)
    kwait(A)
    params()
    for q in range(3, 6): band(q)
    A(f"""
    s_add_u32 s79, s76, {TB}
    v_mul_u32_u24 v14, 208, v0
    v_add_u32 v{VKW}, s79, v14
    v_bfe_u32 v14, v0, 3, 1                 ; q>>1
    v_lshrrev_b32 v15, 5, v0                ; h
    v_lshlrev_b32 v14, 3, v14
    v_lshl_add_u32 v14, v15, 1, v14
    v_mul_u32_u24 v14, 208, v14
    v_add_u32 v14, s79, v14
    v_bfe_u32 v15, v0, 2, 1                 ; comp
    v_and_b32 v43, 3, v0
    v_bfe_u32 v44, v0, 4, 1
    v_lshl_add_u32 v{VKL}, v15, 6, v14
    v_lshl_add_u32 v{VKL}, v44, 5, v{VKL}
    v_lshl_add_u32 v{VKL}, v43, 3, v{VKL}
    v_lshlrev_b32 v46, 5, v15
    v_lshl_add_u32 v46, v43, 3, v46
    v_add_u32 v46, 128, v46
    v_lshlrev_b32 v15, 3, v15
    v_add_u32 v15, 192, v15
    v_cmp_eq_u32 vcc, 1, v44
    v_cndmask_b32 v46, v46, v15, vcc
    v_add_u32 v{VKH}, v14, v46
    ; conv addresses
    v_and_b32 v43, 1, v0
    v_mul_u32_u24 v43, {C1_}, v43
    v_add_u32 v43, v43, v41
    v_lshlrev_b32 v44, 1, v45
    v_sub_u32 v43, v43, v44
    v_add_u32 v{VF0}, s78, v43
    v_add_u32 v{VF1}, 1024, v{VF0}
    v_mul_u32_u24 v43, 272, v45
    v_add3_u32 v{VG}, v43, v41, s76
    v_lshl_add_u32 v43, v45, 4, v41         ; 16k + 8g
    v_add_u32 v44, 624, v43
    v_lshrrev_b32 v46, 7, v44
    v_lshlrev_b32 v46, 4, v46
    v_lshl_add_u32 v44, v44, 1, v46
    v_add_u32 v{VWA}, s76, v44
    v_add_u32 v44, 616, v43
    v_lshrrev_b32 v46, 7, v44
    v_lshlrev_b32 v46, 4, v46
    v_lshl_add_u32 v44, v44, 1, v46
    v_add_u32 v{VWB}, s76, v44
    s_add_u32 s79, s76, {MB}
    v_mul_u32_u24 v43, 528, v45
    v_lshl_add_u32 v43, v40, 4, v43
    v_add_u32 v{VMW}, s79, v43
    v_lshrrev_b32 v43, 3, v45
    v_add_u32 v43, v43, v40
    v_lshlrev_b32 v43, 4, v43
    v_lshl_add_u32 v43, v45, 6, v43
    v_add_u32 v{VMR}, s79, v43
    v_and_b32 v41, 1, v40                   ; g&1
    v_lshrrev_b32 v42, 1, v40               ; g>>1
    v_lshlrev_b32 v{VOUT}, 5, v45
    v_lshl_add_u32 v{VOUT}, v41, 9, v{VOUT}
    v_lshl_add_u32 v{VOUT}, v42, 4, v{VOUT}
    s_bitcmp1_b32 s{S_WAVE}, 0
    s_mov_b32 s80, {LS[0] & 0xffffffff}
    s_mov_b32 s81, {LS[0] >> 32}
    s_cmov_b32 s80, {LS[1] & 0xffffffff}
    s_cmov_b32 s81, {LS[1] >> 32}
    s_mov_b32 s82, {LQ[0]}
    s_cmov_b32 s82, {LQ[1]}
    v_lshlrev_b32 v43, 2, v45
    v_lshrrev_b64 v[46:47], v43, s[80:81]
    v_and_b32 v46, 7, v46                   ; slot
    v_lshlrev_b32 v43, 1, v45
    v_lshrrev_b32 v43, v43, s82
    v_and_b32 v43, 3, v43                   ; q
    s_lshr_b32 s79, s{S_WAVE}, 1            ; half
    s_lshr_b32 s80, s{sq}, 4
    s_add_u32 s80, s80, 10
    s_sub_u32 s80, s80, s79
    v_lshlrev_b32 v44, 1, v46
    v_sub_u32 v44, s80, v44
    v_subrev_u32 v47, 10, v44
    v_min_u32 v44, v44, v47
    v_lshrrev_b32 v44, 1, v44
    v_mad_u32_u24 v44, v43, 6, v44
    v_mad_u32_u24 v44, v46, 24, v44
    s_mul_i32 s79, s79, {120*128}
    s_add_u32 s79, s79, {F_T}
    v_lshl_add_u32 v44, v44, 7, s79
    s_mul_i32 s79, s{S_WAVE}, {24*128}
    s_add_u32 s79, s79, {F_WD - 16*128}
    v_min_u32 v252, 39, v0
    v_lshl_add_u32 v252, v252, 7, s79
    v_cmp_gt_u32 vcc, 16, v0
    v_cndmask_b32 v252, v252, v44, vcc
    v_lshlrev_b32 v255, 7, v0
    v_lshrrev_b32 v43, 2, v0
    v_mul_u32_u24 v253, {UT_CH}, v43
    v_and_b32 v44, 3, v0
    v_lshl_add_u32 v253, v44, 4, v253
    v_mul_u32_u24 v240, 20480, v44
    v_lshl_add_u32 v240, v43, 4, v240
    s_mul_i32 s79, s{S_WAVE}, 1088
    s_add_u32 s79, s79, 1360
    v_add_u32 v240, s79, v240
    v_mov_b32 v254, 0
    """)
    for q in range(64): A(f"v_mov_b32 v{FA+q}, 0")
    srd(A, 24, P_WS, 0, FL_BYTES)
    for q in range(16): A(f"v_mov_b32 v{KA+q}, 0")
    A("s_waitcnt vmcnt(0) lgkmcnt(0)")
    tsn(A, 'q')
    Z, C = 20, 26
    A(f"""
    v_lshlrev_b32 v16, 16, v16
    v_mul_f32 v16, {fbits(LOG2E)}, v16
    v_exp_f32 v16, v16
    v_lshlrev_b32 v{Z}, 16, v4
    v_and_b32 v{Z+2}, 0xffff0000, v4
    v_lshlrev_b32 v{Z+4}, 16, v5
    v_cvt_pk_bf16_f32 v16, v16, v16
    v_lshlrev_b32 v16, 16, v16              ; dt
    """)
    for t in range(3): A(f"v_mul_f32 v{Z+2*t}, {fbits(LOG2E)}, v{Z+2*t}")
    for t in range(3): A(f"v_exp_f32 v{Z+2*t}, v{Z+2*t}")
    A(f"""
    v_lshlrev_b32 v{Z+1}, 16, v6
    v_and_b32 v{Z+3}, 0xffff0000, v6
    v_lshlrev_b32 v{Z+5}, 16, v7
    v_cvt_pk_bf16_f32 v4, v{Z}, v{Z+2}
    v_cvt_pk_bf16_f32 v5, v{Z+4}, v{Z+4}
    v_lshlrev_b32 v{Z}, 16, v4
    v_and_b32 v{Z+2}, 0xffff0000, v4
    v_lshlrev_b32 v{Z+4}, 16, v5
    v_lshlrev_b32 v{C}, 16, v8
    v_and_b32 v{C+2}, 0xffff0000, v8
    v_lshlrev_b32 v{C+4}, 16, v9
    v_lshlrev_b32 v{C+1}, 16, v10
    v_and_b32 v{C+3}, 0xffff0000, v10
    v_lshlrev_b32 v{C+5}, 16, v11
    v_add_f32 v18, v16, v16                 ; 2 dt
    v_lshlrev_b32 v242, 16, v17             ; D skip (persist)
    """)
    for q in range(6): A(f"v_mul_f32 v{Z+q}, v16, v{Z+q}")
    for q in range(6): A(f"v_mul_f32 v{C+q}, v18, v{C+q}")
    for t in range(3):
        A(f"v_mul_f32 v{Z+2*t}, {fbits(-LOG2E)}, v{Z+2*t}\nv_mul_f32 v{Z+2*t+1}, {fbits(0.15915494309189535)}, v{Z+2*t+1}")
    E1, E256, E2, E4, E8 = 32, 34, 36, 38, 40
    def exps():
        return [
            f"v_exp_f32 v4, v{Z}", f"v_fract_f32 v5, v{Z+1}", f"v_mul_f32 v6, 0x43800000, v{Z}", f"v_mul_f32 v7, 0x43800000, v{Z+1}",
            f"v_cos_f32 v8, v5", f"v_sin_f32 v9, v5", f"v_fract_f32 v7, v7", f"v_exp_f32 v6, v6", f"v_cos_f32 v10, v7", f"v_sin_f32 v11, v7",
            f"v_mul_f32 v{E1}, v4, v8", f"v_mul_f32 v{E1+1}, v4, v9", f"v_mul_f32 v{E256}, v6, v10", f"v_mul_f32 v{E256+1}, v6, v11"]
    for o in exps(): A(o)
    mk_tag(A)
    tsn(A, 'p')
    if "kgen" in CFG["skip"]: A("s_branch L_done")
    srd(A, 4, P_WS, WS_UT, UT_BYTES)
    srd(A, 32, P_WS, WS_AT, AT_BYTES)
    srd(A, 8, P_WS, WS_WD, WD_BYTES)
    A(f"""
    s_mul_i32 s72, s{S_WAVE}, {64*UT_CH}
    s_lshl_b32 s73, s{sq}, 6
    s_add_u32 s72, s72, s73
    """)
    if CFG["prio"]: A(f"s_setprio {CFG['kprio']}")
    A("v_mov_b32 v19, 0\ns_mov_b32 s77, 3")
    def utload():
        for j in range(4):
            A(f"buffer_load_dwordx4 {v(160+4*j,4)}, v253, s[4:7], s72 offen{SC}")
            if j < 3: A(f"s_add_u32 s72, s72, {16*UT_CH}")
    top = A.label("kgen")
    A(f"{top}:")
    tsn(A, 'a')
    cm = lambda r, x, y, t, conj_out=False: cmul(r, x, y, t, conj_out, PK)
    def pair(dre, dim, x, y):
        xr, xi = (f"v{x}", f"v{x+1}") if x is not None else ("1.0", "0")
        return [f"v_cvt_pk_bf16_f32 v{dre}, {xr}, v{y}", f"v_cvt_pk_bf16_f32 v{dim}, {xi}, v{y+1}"]
    wr = lambda r, off: [f"ds_write_b128 v{VKW}, {v(r,4)} offset:{off}"]
    pre = cm(E2, E1, E1, 42) + cm(E4, E2, E2, 42) + cm(E8, E4, E4, 42, True)
    LA, LB, LT, SL = 128, 130, 132, 200
    lo = pair(SL, SL+4, None, E8)
    for i in range(2, 32, 2):
        b = SL + 8*((i//8) & 1); o = (i % 8)//2
        lo += cm(LA, LB if i > 2 else E8, E8, LT) + cm(LB, LA, E8, LT) + pair(b+o, b+4+o, LA, LB)
        if o == 3: lo += wr(b, 16*(i//8)) + wr(b+4, 64 + 16*(i//8))
    HA, HB_, HT, GA, GB, GT, S1, S3 = 134, 136, 138, 140, 142, 144, 146, 154
    hi = cm(HA, C, E1, HT) + pair(S1, S1+4, C, HA)
    for o in range(1, 4): hi += cm(HB_, HA, E1, HT) + cm(HA, HB_, E1, HT) + pair(S1+o, S1+4+o, HB_, HA)
    hi += wr(S1, 128) + wr(S1+4, 160)
    hi += cm(GA, C, E256, GT) + cm(HA, GA, E2, HT) + pair(S3, S3+2, GA, HA)
    hi += cm(HB_, HA, E2, HT) + cm(HA, HB_, E2, HT) + pair(S3+1, S3+3, HB_, HA) + wr(S3, 192)
    hi += cm(GB, GA, E256, GT) + cm(HA, GB, E4, HT) + pair(S1, S1+4, GB, HA)
    hi += cm(GA, GB, E256, GT) + cm(HA, GA, E4, HT) + pair(S1+2, S1+6, GA, HA)
    hi += cm(GB, GA, E256, GT) + cm(GA, GB, E256, GT) + pair(S1+1, S1+5, GB, GA)
    hi += cm(GB, GA, E256, GT) + cm(GA, GB, E256, GT) + pair(S1+3, S1+7, GB, GA)
    hi += wr(S1, 144) + wr(S1+4, 176)
    hi += [f"v_fma_f32 v19, v{GA}, v{E256}, v19", f"v_fma_f32 v19, -v{GA+1}, v{E256+1}, v19"]
    hi0 = hi[:CFG["hi0"]]
    st = interleave(pre, hi0) + interleave(lo, hi[len(hi0):])
    if "kw" in CFG["skip"]: st = [o for o in st if not o.startswith("ds_write")]
    if "kv" in CFG["skip"]: st = [o for o in st if o.startswith("ds_write")]
    DL = CFG["wdelay"]
    out = []; pend = []; gap = 99
    for o in st:
        if o.startswith("ds_write"): pend.append([o, DL])
        else:
            out.append(o); gap += 1
            for x in pend: x[1] -= 1
            if pend and pend[0][1] <= 0 and gap >= CFG["wsp"]: out.append(pend.pop(0)[0]); gap = 0
    out += [x[0] for x in pend]
    kmf = lambda k: f"v_mfma_f32_32x32x16_bf16 {v(KA,16)}, {v(FA+4*k,4)}, {v(FB+4*k,4)}, {v(KA,16)}"
    nw = 0; k = 0
    for n, o in enumerate(out):
        if k < 8 and n >= CFG["kmf0"] + 14*k:
            A((f"s_waitcnt lgkmcnt({min(15, nw)})\n" if k == 0 else "") + kmf(k)); k += 1
        if n == int(len(out)*CFG["fpos"]) and "poll" not in CFG["skip"]:
            nf = A.label("nf")
            A(f"s_cmp_lg_u32 s77, 1\ns_cbranch_scc1 {nf}\nbuffer_load_dword v196, v252, s[24:27], 0 offen{SC}\n{nf}:")
        A(o)
        if o.startswith("ds_write"): nw += 1
    tsn(A, 'b')
    for q in range(4): A(f"v_mov_b32 v{Z+q}, v{Z+2+q}\nv_mov_b32 v{C+q}, v{C+2+q}")
    ex = exps()
    for k in range(8):
        for t in range(2):
            off = (16*(k >> 1) + 4*(k & 1) + t)*208
            A(f"ds_read_b64_tr_b16 {v(FA+4*k+2*t,2)}, v{VKH} offset:{off}\nds_read_b64_tr_b16 {v(FB+4*k+2*t,2)}, v{VKL} offset:{off}")
            for o in ex[2*k+t:2*k+t+1]: A(o)
    tsn(A, 'd')
    for nm, val in (('1', 3), ('2', 2), ('3', 1)):
        if nm in CFG['marks'] and CFG['dbg']:
            lb = A.label("cm"); A(f"s_cmp_lg_u32 s77, {val}\ns_cbranch_scc1 {lb}"); tsn(A, nm); A(f"{lb}:")
    A(f"s_sub_u32 s77, s77, 1\ns_cmp_lg_u32 s77, 0\ns_cbranch_scc1 {top}")
    if "poll" in CFG["skip"]: A("s_branch L_done")
    A("s_waitcnt vmcnt(0)")
    poll(A, 24, 196, 252, 73, preissued=True, slp=CFG["slpU"])
    utload()
    tsn(A, 'f')
    side = f"""
    v_add_f32_dpp v19, v19, v19 row_ror:8 row_mask:0xf bank_mask:0xf
    v_lshlrev_b32 v4, 4, v0
    v_add_u32 v5, s78, v4
    v_add_f32_dpp v19, v19, v19 row_ror:4 row_mask:0xf bank_mask:0xf
    v_add_u32 v4, s76, v4
    v_mov_b32 v8, 0
    v_add_f32_dpp v19, v19, v19 row_ror:2 row_mask:0xf bank_mask:0xf
    v_mov_b32 v9, 0
    v_mov_b32 v10, 0
    v_add_f32_dpp v19, v19, v19 row_ror:1 row_mask:0xf bank_mask:0xf
    v_mov_b32 v11, 0
    ds_write_b128 v5, v[8:11]
    v_add_f32_dpp v19, v19, v19 row_bcast:15 row_mask:0xa bank_mask:0xf
    ds_write_b128 v5, v[8:11] offset:1024
    v_add_f32_dpp v19, v19, v19 row_bcast:31 row_mask:0xc bank_mask:0xf
    ds_write_b128 v5, v[8:11] offset:2048
    ds_write_b128 v5, v[8:11] offset:3072
    ds_write_b128 v4, v[8:11]
    s_mov_b64 exec, 0x1fffff
    ds_write_b128 v4, v[8:11] offset:1024
    s_mov_b64 exec, -1
    v_readlane_b32 s75, v19, 63
    v_and_b32 v4, 31, v0                    ; i
    v_lshrrev_b32 v5, 5, v0                 ; h
    v_lshlrev_b32 v6, 4, v4
    v_sub_u32 v6, s78, v6                   ; base - 16 i   (seg1)
    v_lshlrev_b32 v7, 3, v5
    v_sub_u32 v7, v6, v7                    ; seg0
    v_add_u32 v12, {CS + 1084}, v7
    v_add_u32 v13, {C1_ + 566}, v6
    v_and_b32 v14, 30, v0                   ; 2 i2
    v_sub_u32 v14, s78, v14
    v_lshlrev_b32 v15, 5, v5
    v_sub_u32 v14, v14, v15                 ; base - 32h - 2 i2
    v_sub_u32 v15, v14, v15                 ; base - 64h - 2 i2
    v_and_b32 v18, 1, v0
    v_cmp_eq_u32 vcc, 1, v18
    v_mov_b32 v18, 1474
    v_mov_b32 v19, 1184
    v_mov_b32 v20, {1794 - 32}
    v_mov_b32 v24, 1280
    v_mov_b32 v25, 1376
    v_mov_b32 v26, {1632 - 32}
    v_cndmask_b32 v18, v18, v24, vcc
    v_cndmask_b32 v19, v19, v25, vcc
    v_cndmask_b32 v20, v20, v26, vcc
    v_add_u32 v18, v14, v18                 ; VA
    v_add_u32 v19, v14, v19                 ; VB
    v_add_u32 v20, v15, v20                 ; VC7
    v_add_u32 v21, 32, v20                  ; VC6
    s_add_u32 s72, s78, 1410
    s_add_u32 s73, s78, 1824
    v_mov_b32 v24, s72
    v_mov_b32 v25, s73
    v_cmp_eq_u32 vcc, 0, v0
    v_cndmask_b32 v18, v18, v24, vcc
    v_cndmask_b32 v21, v21, v25, vcc
    v_cndmask_b32 v22, v254, v242, vcc      ; skip term on lag 0
    v_cvt_pk_bf16_f32 v27, s75, s75
    """.strip().split("\n")
    side = [x.strip() for x in side]
    nw = 0; per = -(-len(side) // 8)
    for k in range(8):
        A(f"s_waitcnt lgkmcnt({min(15, 28 - 4*k + nw)})\n" + kmf(k))
        for o in side[per*k:per*(k+1)]:
            A(o)
            if o.startswith("ds_write"): nw += 1
    if CFG["prio"]: A(f"s_setprio {CFG['cprio']}")
    tsn(A, 'k')
    if "conv" in CFG["skip"]: A("s_branch L_done")
    A(f"s_mul_i32 s78, s70, {AT_ROW}")
    a0, a1, a2, a3 = KA, KA+1, KA+2, KA+3
    b0, b1, b2, b3 = KA+8, KA+9, KA+10, KA+11
    A(f"""
    v_cmp_eq_u32 vcc, 0, v0
    v_add_f32 v{a0}, v{a0}, v22
    v_cndmask_b32 v24, v{KA+4}, v{KA+6}, vcc
    v_cvt_pk_bf16_f32 v64, v{b3}, v{b2}
    v_cvt_pk_bf16_f32 v65, v{b2}, v{b2}
    v_cvt_pk_bf16_f32 v66, v{b1}, v{b0}
    v_cvt_pk_bf16_f32 v67, v{b0}, v{b0}
    v_cvt_pk_bf16_f32 v68, v{b2}, v{b1}
    v_cvt_pk_bf16_f32 v69, v{KA+4}, v{KA+4}
    v_cvt_pk_bf16_f32 v70, v24, v{KA+5}
    v_cvt_pk_bf16_f32 v71, v{KA+6}, v{KA+7}
    v_cvt_pk_bf16_f32 v72, v{a3}, v{a2}
    v_cvt_pk_bf16_f32 v73, v{a1}, v{a0}
    v_cvt_pk_bf16_f32 v74, v{a2}, v{a1}
    s_mov_b32 exec_hi, 0
    ds_write2_b32 v6, v64, v65 offset0:141 offset1:142
    ds_write2_b32 v6, v66, v67 offset0:143 offset1:144
    ds_write_b16 v6, v64 offset:{C1_ + 564}
    ds_write2_b32 v13, v65, v68 offset0:0 offset1:1
    ds_write_b32 v6, v67 offset:{C1_ + 574}
    ds_write_b16 v6, v67 offset:{C1_ + 578}
    s_mov_b32 exec_lo, 1
    ds_write2_b32 v6, v69, v69 offset0:15 offset1:16
    ds_write_b16 v6, v69 offset:{C1_ + 60}
    ds_write_b32 v6, v69 offset:{C1_ + 62}
    ds_write_b16 v6, v69 offset:{C1_ + 66}
    s_mov_b32 exec_lo, 0
    s_mov_b32 exec_hi, 1
    ds_write_b16 v6, v27 offset:1666
    ds_write_b16 v6, v27 offset:{1666 + C1_}
    s_mov_b64 exec, -1
    ds_write_b16 v7, v72 offset:1082
    ds_write_b32 v7, v74 offset:1084
    ds_write_b16_d16_hi v7, v73 offset:1088
    ds_write2_b32 v12, v72, v73 offset0:0 offset1:1
    """)
    for c in (0, C1_):
        A(f"ds_write_b16 v18, v70 offset:{c}\nds_write_b16_d16_hi v19, v70 offset:{c}\nds_write_b16 v21, v71 offset:{c}\nds_write_b16_d16_hi v20, v71 offset:{c}")
    tsn(A, 'c')
    ACC, GR, FR, WIN, F2, FX = 16, 48, 130, 142, 190, 120
    XA, XB, XU, XF = 48, 72, 96, 112
    lds = []
    def lop(txt, tag=None):
        A(txt); lds.append(tag)
    def lwait(*tags):
        pos = max(max(i for i, t in enumerate(lds) if t == tg) for tg in tags)
        A(f"s_waitcnt lgkmcnt({min(15, len(lds) - 1 - pos)})")
    def fread(dst, Y, h, tag):
        off = 2*Y - 32*h; va = VF0
        if off > 1016: off -= 1024; va = VF1
        lop(f"ds_read2_b32 {v(dst,2)}, v{va} offset0:{off//4} offset1:{off//4+1}", tag)
    def gread(j):
        z = 640 + 16*j
        lop(f"ds_read_b64 {v(GR+2*(j+33),2)}, v{VG} offset:{2*z + 16*(z >> 7)}", ("G", j))
    def aread(s_):
        r = FR + 4*(s_ % 3)
        fread(r, 544, 2*s_+1, ("A", s_)); fread(r+2, 544, 2*s_, ("A", s_))
    aread(0); aread(1)
    for j in range(4):
        if j == 0: A("s_waitcnt vmcnt(0)")
        lop(f"ds_write_b128 v240, {v(160+4*j,4)} offset:{j*272}")
    A(f"s_lshl_b32 s79, s{sq}, 7\ns_add_u32 s0, s79, {F_A}")
    A("s_waitcnt lgkmcnt(0)\ns_barrier")
    tsn(A, 'u')
    for j in range(-1, 8): gread(j)
    nTS = -(-(240 - 48*CFG["nTA"]) // 80) if CFG["nTS"] is None else CFG["nTS"]
    TD = [214, 215, 15]
    extra = []
    for d in (2, 3, 4):
        r = F2 + 8*(d-2)
        extra += [("F", r, 624, d, "F2"), ("F", r+2, 720, d, "F2"), ("F", r+4, 672, d, "F2"), ("F", r+6, 768, d, "F2")]
    for kt in range(6):
        extra += [("W", WIN+8*kt, VWA, kt), ("W", WIN+8*kt+4, VWB, kt)]
    m16 = lambda d, a, b, c: f"v_mfma_f32_16x16x32_bf16 {v(d,4)}, {v(a,4)}, {v(b,4)}, {c}"
    def warm():
        for k in range(nTS): touch(A, k, TD[k], 255, False)
    for s_ in range(17):
        side = []
        if s_ + 2 <= 16: side.append(lambda s_=s_: aread(s_+2))
        if s_ + 1 <= 16: side += [lambda j=-2*s_-2: gread(j), lambda j=-2*s_-3: gread(j)]
        if s_ >= 3:
            for _ in range(2):
                if extra:
                    x = extra.pop(0)
                    if x[0] == "F": side.append(lambda x=x: fread(x[1], x[2], x[3], x[4]))
                    else: side.append(lambda x=x: lop(f"ds_read_b128 {v(x[1],4)}, v{x[2]} offset:{544*x[3]}", ("W", x[3])))
        for n, T in enumerate(range(8) if s_ == 0 else range(7, -1, -1)):
            j = T - 2*s_ - 1
            if s_ == 0: lwait(("A", 0), ("G", j+1))
            elif n == 0: lwait(("A", s_))
            elif T == 1: lwait(("G", -2*s_))
            elif T == 0: lwait(("G", -2*s_-1))
            A(m16(ACC+4*T, FR+4*(s_%3), GR+2*(j+33), v(ACC+4*T,4) if s_ else 0))
            if n >= 1 and side: side.pop(0)()
        assert not side
        if s_ == CFG["warmat"]: warm()
    assert not extra
    tsn(A, 'g')
    gen = []
    for kt in range(6):
        wa, wb = WIN+8*kt, WIN+8*kt+4
        gen += [(XA+4*kt, wa, 0, kt), (XA+4*kt+2, wa, 1, kt), (XB+4*kt, wa, 2, kt), (XB+4*kt+2, wb, 2, kt)]
        if kt < 4: gen += [(XU+4*kt, wa, 3, kt), (XU+4*kt+2, wb, 4, kt), (XF+2*kt, wa, 5, kt)]
    TMP = [FR, FR+4, FR+8, 124]
    side = [lambda T=T: lop(f"ds_write_b128 v{VMW}, {v(ACC+4*T,4)} offset:{64*T}") for T in range(7, -1, -1)]
    side += [lambda T=T: lop(f"ds_read_b128 {v(ACC+4*T,4)}, v{VMR} offset:{1056*T}", ("C", T)) for T in range(8)]
    side += [lambda: fread(FX, 976, 4, "FX")]
    F3 = WIN
    for d in (4, 5, 6, 7):
        side += [lambda d=d: fread(F3+4*(d-4), 880, d, ("F3", d)), lambda d=d: fread(F3+4*(d-4)+2, 960, d, ("F3", d))]
    LAG = 3
    def cv(q):
        t = TMP[q % 4]; dst = gen[q][0]
        A(f"v_cvt_pk_bf16_f32 v{dst}, v{t}, v{t+1}\nv_cvt_pk_bf16_f32 v{dst+1}, v{t+2}, v{t+3}")
    lwait(("W", 5))
    for q, (dst, w, b, kt) in enumerate(gen):
        A(m16(TMP[q % 4], w, WM+4*b, 0))
        if q >= LAG: cv(q - LAG)
        if q >= 2 and side and (q % 4 != 3 or len(side) > 34 - q): side.pop(0)()
    A(f"v_mov_b32 v{FX+2}, 0\nv_mov_b32 v{FX+3}, 0")
    for q in range(len(gen) - LAG, len(gen)): cv(q)
    assert not side
    main = []
    for T in range(2, 8):
        for d in (2, 3, 4):
            if T - d >= 0: main += [(T, XA+4*(T-d), F2+8*(d-2), None), (T, XB+4*(T-d), F2+8*(d-2)+4, None)]
        for d in (4, 5, 6, 7):
            if T - d >= 0: main.append((T, XU+4*(T-d), F3+4*(d-4), ("F3", d)))
        if T >= 4: main.append((T, XF+2*(T-4), FX, "FX"))
    def fin(p):
        o = WM + 4*p
        r = []
        for T in (2*p, 2*p+1):
            for h in range(2): r.append(f"v_cvt_pk_bf16_f32 v{o+2*(T&1)+h}, v{ACC+4*T+2*h}, v{ACC+4*T+2*h+1}")
        r += [f"v_permlane16_swap_b32 v{o}, v{o+2}", f"v_permlane16_swap_b32 v{o+1}, v{o+3}",
              f"buffer_store_dwordx4 {v(o,4)}, v{VOUT}, s[32:35], s78 offen offset:{1024*p}{SC}"]
        return r
    seen = set(); pend = []; hold = 0
    for q, (T, a, b, tag) in enumerate(main):
        tags = []
        if ("C", T) not in seen: tags.append(("C", T)); seen.add(("C", T))
        if tag and tag not in seen: tags.append(tag); seen.add(tag)
        if tags: lwait(*tags)
        if q == 0: pend += fin(0)
        if q and main[q-1][0] != T and T in (4, 6): pend += fin(T//2 - 1); hold = 4
        A(m16(ACC+4*T, a, b, v(ACC+4*T,4)))
        if hold: hold -= 1
        elif pend: A(pend.pop(0))
    for o in pend: A(o)
    for o in fin(3): A(o)
    tsn(A, 'e')
    if CFG["prio"]: A("s_setprio 0")

def role_g2(A):
    split = CFG["split"]
    st = [sum(split[:i]) for i in range(5)] + [32]
    slot_of = [max(s for s in range(5) if st[s] <= c) for c in range(32)]
    pk0 = [sum(slot_of[2*t] << (4*(t % 8)) for t in range(8*h, 8*h+8)) for h in range(2)]
    pk1 = [sum(slot_of[2*t+1] << (4*(t % 8)) for t in range(8*h, 8*h+8)) for h in range(2)]
    ACC, WR, HB, AT = 16, 96, 196, 244
    KO = 80
    STG, SDT = 68, 69
    VL, VK0, VK1, VF, VT, VAL, VAG, VTOK, VLW, VZ, VG = 1, 2, 3, 4, 5, 6, 7, 8, 9, 10, 14
    srd(A, 4, P_WS, WS_H, H_BYTES)
    srd(A, 8, P_WS, WS_WD, WD_BYTES)
    srd(A, 12, P_WS, WS_AT, AT_BYTES)
    srd(A, 16, P_WS, WS_G, G_BYTES)
    srd(A, 20, P_OUT, 0, X_BYTES)
    A(f"""
    s_lshr_b32 s70, s{S_J}, 3               ; r
    s_lshl_b32 s{STG}, s{S_X}, 2
    s_add_u32 s{STG}, s{STG}, s70           ; tg
    s_and_b32 s{SDT}, s{S_J}, 7             ; dt
    v_mov_b32 v{VZ}, 0
    v_lshlrev_b32 v{VL}, 4, v0
    s_mul_i32 s72, s70, 3
    s_mul_i32 s73, s{SDT}, 3
    s_lshr_b32 s73, s73, 1
    s_add_u32 s72, s72, s73
    s_cmp_ge_u32 s72, 12
    s_cselect_b32 s73, 12, 0
    s_sub_u32 s72, s72, s73                 ; rot
    """)
    for p in range(12):
        A(f"s_lshl_b32 s{KO+p}, s72, 10")
        if p < 11: A("s_add_u32 s72, s72, 1\ns_cmp_ge_u32 s72, 12\ns_cselect_b32 s72, 0, s72")
    A(f"""
    s_mul_i32 s70, s{S_WAVE}, 12288
    s_mul_i32 s71, s{STG}, {4*49152}
    s_add_u32 s71, s71, s70                 ; h base
    s_mul_i32 s72, s{SDT}, {5*49152}
    s_add_u32 s72, s72, s70
    """)
    for i in range(4):
        A(f"s_add_u32 s73, s{S_WAVE}, {1+i}\ns_and_b32 s73, s73, 3\ns_mul_i32 s73, s73, 49152\ns_add_u32 s{74+i}, s71, s73")
    WS_ = [32, 33, 34, 35, 78]
    for m in range(5): A(f"s_add_u32 s{WS_[m]}, s72, {m*49152}")
    A(f"""
    s_mul_i32 s79, s{S_WAVE}, 20480
    v_add_u32 v{VLW}, s79, v{VL}
    v_and_b32 v{VTOK}, 15, v0
    s_lshl_b32 s70, s{STG}, 6
    s_lshl_b32 s71, s{S_WAVE}, 4
    s_add_u32 s70, s70, s71
    v_add_u32 v{VTOK}, s70, v{VTOK}         ; token
    v_lshlrev_b32 v{VG}, 3, v{VTOK}
    """)
    kv = [0]
    def kaddr(p):
        r = (VK0, VK1)[kv[0] & 1]; kv[0] += 1
        A(f"v_add_u32 v{r}, s{KO+p}, v{VL}")
        return r
    def wload(dst, m, va): return f"buffer_load_dwordx4 {v(dst+4*m,4)}, v{va}, s[8:11], s{WS_[m]} offen{SC}"
    def prefetch(nb):
        plan = [(6, ACC), (7, ACC+20), (8, ACC+40), (9, HB), (0, ACC+60)] + [(1+q, WR+20*q) for q in range(5)]
        n = 0; wr = 0
        for (p, dst) in plan:
            va = kaddr(p)
            for m in range(5):
                if n >= nb: A(f"s_waitcnt vmcnt({nb-1})")
                if n == nb:
                    np_ = A.label("nopub")
                    A(f"s_barrier\ns_cmp_eq_u32 s0, 0\ns_cbranch_scc1 {np_}")
                    publish(A, 24, 0, VT, VZ)
                    A(f"{np_}:")
                while wr < 20 and wr <= n - nb:
                    q, mm = divmod(wr, 5)
                    A(f"ds_write_b128 v{VLW}, {v(plan[q][1]+4*mm,4)} offset:{wr*1024}"); wr += 1
                A(wload(dst, m, va)); n += 1
        assert wr == 20
    slow, jn = A.label("g2slow"), A.label("g2pj")
    A(f"s_cmp_lt_u32 s{S_J}, 12\ns_cbranch_scc1 {slow}")
    prefetch(CFG["nbB"])
    A(f"s_branch {jn}\n{slow}:")
    prefetch(CFG["nbA"])
    A(f"""{jn}:
    s_and_b32 s70, s{STG}, 7
    s_lshl_b32 s70, s70, 2
    s_bitcmp1_b32 s{STG}, 3
    s_mov_b32 s71, {pk0[0]}
    s_cmov_b32 s71, {pk0[1]}
    s_mov_b32 s72, {pk1[0]}
    s_cmov_b32 s72, {pk1[1]}
    s_lshr_b32 s71, s71, s70
    s_lshr_b32 s72, s72, s70
    s_and_b32 s71, s71, 15
    s_and_b32 s72, s72, 15
    s_lshr_b32 s70, s{STG}, 4
    s_mul_i32 s70, s70, 5
    s_add_u32 s71, s71, s70
    s_add_u32 s72, s72, s70
    s_mul_i32 s71, s71, {24*128}
    s_mul_i32 s72, s72, {24*128}
    v_mov_b32 v11, s71
    v_mov_b32 v12, s72
    v_cmp_gt_u32 vcc, 32, v0
    v_cndmask_b32 v11, v12, v11, vcc
    v_and_b32 v12, 31, v0
    v_min_u32 v12, 23, v12
    v_lshl_add_u32 v{VF}, v12, 7, v11
    v_add_u32 v{VF}, {F_H}, v{VF}
    v_lshrrev_b32 v11, 3, v0
    v_and_b32 v12, 7, v0
    v_mul_u32_u24 v{VAL}, 160, v11
    v_lshl_add_u32 v{VAL}, v12, 4, v{VAL}
    s_add_u32 s70, s79, 15360
    v_add_u32 v{VAL}, s70, v{VAL}
    s_lshl_b32 s70, s{S_WAVE}, 3
    v_add_u32 v11, s70, v11
    v_mul_u32_u24 v{VAG}, {AT_ROW}, v11
    v_lshl_add_u32 v{VAG}, v12, 4, v{VAG}
    v_min_u32 v13, 19, v0
    s_mul_i32 s70, s{SDT}, {20*128}
    s_add_u32 s70, s70, {F_A}
    v_lshl_add_u32 v13, v13, 7, s70         ; a flags
    s_lshr_b32 s70, s{STG}, 1
    s_lshl_b32 s70, s70, 7
    s_add_u32 s70, s70, {F_G}
    v_mov_b32 v12, s70
    v_cmp_gt_u32 vcc, 20, v0
    v_cndmask_b32 v13, v12, v13, vcc
    s_mul_i32 s70, s{SDT}, {80*AT_ROW}
    s_lshl_b32 s71, s{STG}, 7
    s_add_u32 s70, s70, s71
    s_add_u32 s71, s70, {32*AT_ROW}
    s_add_u32 s72, s70, {64*AT_ROW}
    s_cmp_ge_u32 s{S_WAVE}, 2
    s_cselect_b32 s72, 0x8000000, s72
    s_waitcnt vmcnt(0) lgkmcnt(0)
    """)
    tsn(A, 'P')
    nw = A.label("g2nw")
    A(f"s_cmp_lg_u32 s{S_WAVE}, 0\ns_cbranch_scc1 {nw}")
    A(f"buffer_load_dword v12, v13, s[24:27], 0 offen{SC}")
    poll(A, 24, VT, VF, 73, slp=CFG['slpH'])
    poll(A, 24, 12, 13, 73, slp=CFG['slpH'], preissued=True)
    A(f"{nw}:\ns_barrier")
    tsn(A, 'H')
    vm = []
    def vmw(tag):
        pos = max(i for i, t in enumerate(vm) if t == tag)
        return len(vm) - 1 - pos
    def hloads(p):
        va = kaddr(p)
        return [(f"buffer_load_dwordx4 {v(HB+16*(p%3)+4*i,4)}, v{va}, s[4:7], s{74+i} offen{SC}", ("h", p)) for i in range(4)]
    def iss(x):
        A(x[0]); vm.append(x[1])
    for p in range(3):
        for x in hloads(p): iss(x)
    iss((f"buffer_load_dwordx2 v[{VG}:{VG+1}], v{VG}, s[16:19], 0 offen{SC}", "g"))
    for r in range(3):
        iss((f"buffer_load_dwordx4 {v(AT+4*r,4)}, v{VAG}, s[12:15], s{70+r} offen{SC}", "at"))
    aslot = {0: ACC+60, 1: WR, 2: WR+20, 3: WR+40, 4: WR+60, 5: WR+80, 6: WR+40, 7: WR+60, 8: WR+80, 9: WR+40, 10: WR, 11: WR+20}
    def mfma(p, i, m):
        acc = v(ACC + (i*5+m)*4, 4)
        return f"v_mfma_f32_16x16x32_bf16 {acc}, {v(aslot[p]+4*m,4)}, {v(HB+16*(p%3)+4*i,4)}, {acc if p else 0}"
    lds = []
    for p in range(9):
        w = f"s_waitcnt vmcnt({vmw(('h', p))})"
        if p >= 6:
            pos = max(i for i, t in enumerate(lds) if t == p)
            w += f" lgkmcnt({len(lds) - 1 - pos})"
        A(w)
        side = {}
        def add(k, x): side.setdefault(k, []).append(x)
        va = None
        hl = None
        if p in (2, 3):
            q = p + 8
            add(0, ("K", q))
            for m in range(5): add(1 + 3*m, ("WL", q, m))
        if 4 <= p <= 7:
            q = p + 2
            for m in range(5): add(1 + 3*m, ("SR", q, m))
        wva = None
        hq = []
        for i in range(4):
            for m in range(5):
                k = 5*i + m
                A(mfma(p, i, m))
                for x in side.get(k, []):
                    if x[0] == "K": wva = kaddr(x[1])
                    elif x[0] == "WL": iss((wload(aslot[x[1]], x[2], wva), ("w", x[1])))
                    elif x[0] == "SR":
                        A(f"ds_read_b128 {v(aslot[x[1]]+4*x[2],4)}, v{VLW} offset:{((x[1]-6)*5+x[2])*1024}"); lds.append(x[1])
                if k == 3:
                    A(f"v_add_u32 v{VF}, s{KO+p+3}, v{VL}")
                if m == 4:
                    iss((f"buffer_load_dwordx4 {v(HB+16*(p%3)+4*i,4)}, v{VF}, s[4:7], s{74+i} offen{SC}", ("h", p+3)))
    pend = []
    A("s_waitcnt lgkmcnt(0)")
    for i in range(4):
        for p in (9, 10, 11):
            if i == 0:
                n = vmw(("h", p))
                if p >= 10: n = min(n, vmw(("w", p)))
                A(f"s_waitcnt vmcnt({n})")
            for m in range(5):
                A(mfma(p, i, m))
                k = 5*(p-9) + m
                if pend and k >= 2 and k % 2 == 0: A(pend.pop(0))
        assert not pend, pend
        if i < 3:
            pend = [f"ds_write_b128 v{VLW}, {v(ACC+(i*5+m)*4,4)} offset:{(i*5+m)*1024}" for m in range(5)]
            if i == 0: pend.append(f"ds_write_b128 v{VAL}, {v(AT,4)}")
            if i == 1: pend.append(f"ds_write_b128 v{VAL}, {v(AT+4,4)} offset:1280")
            if i == 2: pend.append(f"ds_write_b128 v{VAL}, {v(AT+8,4)} offset:2560")
    tsn(A, 'M')
    for d in range(1, 4):
        A(f"s_add_u32 s73, s{S_WAVE}, {d}\ns_and_b32 s73, s73, 3\ns_mul_i32 s73, s73, 20480\nv_add_u32 v{1+d}, s73, v{VL}")
    A(f"""
    v_lshrrev_b32 v11, 5, v0                ; g>>1
    v_mul_u32_u24 v11, 20480, v11
    v_bfe_u32 v12, v0, 2, 3                 ; 4(g&1)+r
    v_mul_u32_u24 v12, 160, v12
    v_add_u32 v11, v11, v12
    v_and_b32 v12, 3, v0
    v_lshl_add_u32 v11, v12, 3, v11
    s_lshl_b32 s73, s{S_WAVE}, 5
    s_add_u32 s73, s73, 15360
    v_add_u32 v11, s73, v11
    s_waitcnt lgkmcnt(0)
    s_barrier
    """)
    RD = WR
    for d in range(1, 4):
        for m in range(5):
            A(f"ds_read_b128 {v(RD+((d-1)*5+m)*4,4)}, v{1+d} offset:{((3-d)*5+m)*1024}")
    AF = HB
    for m in range(5):
        A(f"ds_read_b64_tr_b16 {v(AF+2*m,2)}, v11 offset:{(m&1)*40960 + (m>>1)*1280}")
    A(f"""
    v_mul_u32_u24 v5, 1280, v{VTOK}
    v_lshrrev_b32 v6, 4, v0                 ; g
    v_and_b32 v7, 1, v6
    v_lshrrev_b32 v9, 1, v6
    v_lshlrev_b32 v7, 5, v7
    v_lshl_add_u32 v7, v9, 4, v7
    v_add_u32 v7, v5, v7
    v_lshl_add_u32 v6, v6, 3, v5
    s_mul_i32 s73, s{SDT}, 160
    """)
    F = ACC + 60
    for d in range(3):
        A(f"s_waitcnt lgkmcnt({min(15, 15 - 5*d)})")
        for q in range(20): A(f"v_add_f32 v{F+q}, v{F+q}, v{RD+d*20+q}")
    A("s_waitcnt lgkmcnt(0)")
    G, OM = VG, VG+1
    O = HB + 16
    for m in range(5):
        for h in range(2):
            A(f"""
            v_lshlrev_b32 v12, 16, v{AF+2*m+h}
            v_and_b32 v13, 0xffff0000, v{AF+2*m+h}
            v_mul_f32 v{F+4*m+2*h}, v{OM}, v{F+4*m+2*h}
            v_mul_f32 v{F+4*m+2*h+1}, v{OM}, v{F+4*m+2*h+1}
            v_fmac_f32 v{F+4*m+2*h}, v{G}, v12
            v_fmac_f32 v{F+4*m+2*h+1}, v{G}, v13
            v_cvt_pk_bf16_f32 v{O+2*m+h}, v{F+4*m+2*h}, v{F+4*m+2*h+1}
            """)
        if m & 1:
            b = O + 2*(m-1); p = m >> 1
            A(f"v_permlane16_swap_b32 v{b}, v{b+2}\nv_permlane16_swap_b32 v{b+1}, v{b+3}")
            A(f"buffer_store_dwordx4 {v(b,4)}, v7, s[20:23], s73 offen offset:{64*p}")
    A(f"buffer_store_dwordx2 {v(O+8,2)}, v6, s[20:23], s73 offen offset:128")

def body(A):
    prologue(A, 512)
    skip = CFG["skip"]
    A(f"""
    s_cmp_{'lt' if CFG['swap'] else 'ge'}_u32 s2, 256
    s_cbranch_scc1 L_half1
    s_cmp_ge_u32 s{S_J}, 30
    s_cbranch_scc1 L_prepC
    """)
    if "g1" in skip: A("s_waitcnt lgkmcnt(0)\ns_branch L_done")
    role_g1(A)
    A(f"""
    s_branch L_done
    L_prepC:
    s_lshl_b32 s69, s{S_X}, 1
    s_add_u32 s69, s69, s{S_J}
    s_sub_u32 s69, s69, 30
    """)
    if "C" in skip: A("s_waitcnt lgkmcnt(0)\ns_branch L_done")
    role_prep_w(A)
    A(f"""
    s_branch L_done
    L_half1:
    {"s_waitcnt lgkmcnt(0)" if "half1" in skip else ""}
    {"s_branch L_done" if "half1" in skip else ""}
    s_cmp_ge_u32 s{S_J}, 12
    s_cbranch_scc1 L_ssm
    """)
    role_idle(A)
    A(f"""
    s_branch L_g2
    L_ssm:
    s_mul_i32 s68, s{S_X}, 20
    s_add_u32 s68, s68, s{S_J}
    s_sub_u32 s68, s68, 12
    """)
    role_ssm(A)
    A("L_g2:")
    if "g2" in skip: A("s_branch L_done")
    role_g2(A)
    A("L_done:")
    if CFG["dbg"]: ts_end(A)
    if CFG.get("span"):
        A("s_waitcnt vmcnt(0)\ns_memrealtime vcc\ns_waitcnt lgkmcnt(0)")
        srd(A, 4, P_DBG, 0, 256)
        A(f"""
        s_cmp_lg_u32 s{S_WAVE}, 0
        s_cbranch_scc1 L_exit
        v_mov_b32 v1, 0
        v_mov_b32 v2, s{TSR}
        v_mov_b32 v3, vcc_lo
        s_mov_b64 exec, 1
        s_cmp_lt_u32 s2, 6
        s_cbranch_scc0 L_sp1
        s_lshl_b32 s9, s2, 2
        buffer_store_dword v3, v1, s[4:7], s9 offen offset:16
        s_cmp_lg_u32 s2, 0
        s_cbranch_scc1 L_exit
        buffer_store_dword v2, v1, s[4:7], 0 offen
        s_branch L_exit
        L_sp1:
        s_cmp_eq_u32 s2, 256
        s_cbranch_scc0 L_sp2
        buffer_store_dwordx2 v[2:3], v1, s[4:7], 0 offen offset:4
        s_branch L_exit
        L_sp2:
        s_cmp_eq_u32 s2, 487
        s_cbranch_scc0 L_sp3
        buffer_store_dwordx2 v[2:3], v1, s[4:7], 0 offen offset:56
        s_branch L_exit
        L_sp3:
        s_sub_u32 s9, s2, 200
        s_cmp_lt_u32 s9, 4
        s_cbranch_scc0 L_exit
        s_lshl_b32 s9, s9, 2
        buffer_store_dword v3, v1, s[4:7], s9 offen offset:40
        """)
    A("L_exit:\ns_endpgm\nL_end:")

def build(verbose=False):
    kname = NAME + "_kernel"
    A = Asm(); A.kname = kname
    A(f".globl {kname}\n.p2align 8\n.type {kname},@function\n{kname}:")
    body(A)
    lines, nn = fix_hazards(A.lines, verbose)
    head = "; @launch grid=(512,1,1) block=(256,1,1) lds=81920\n.amdgcn_target \"amdgcn-amd-amdhsa--gfx950\"\n.text\n"
    desc = f""".section .rodata,"a"
.p2align 6
.amdhsa_kernel {kname}
  .amdhsa_next_free_vgpr 256
  .amdhsa_next_free_sgpr 102
  .amdhsa_accum_offset 256
  .amdhsa_group_segment_fixed_size 0
  .amdhsa_kernarg_size 120
  .amdhsa_user_sgpr_count 2
  .amdhsa_user_sgpr_kernarg_segment_ptr 1
  .amdhsa_system_sgpr_workgroup_id_x 1
.end_amdhsa_kernel
"""
    return head + "\n".join(lines) + "\n" + desc

if __name__ == "__main__":
    out = sys.argv[1] if len(sys.argv) > 1 else "f.s"
    src = build()
    open(out, "w").write(src)
    print("written", out, len(src))
```

```python
import sys, struct
sys.path.insert(0, "work")
from asmlib import *

NAME = "gated_mix__ssm_conv_s4d__geglu_ffn__prompt"
WS_H    = 0x100000
WS_AT   = 0x800000
WS_WD   = 0xC00000
WS_G    = 0xF00000
WS_UT   = 0x1000000
WS_TS   = 0x1400000
AT_ROW = 4224
UT_CH = 10368
H_BYTES, AT_BYTES, WD_BYTES, G_BYTES, UT_BYTES = 2048*1536*2, 640*AT_ROW, 1536*640*2, 2048*8, 256*UT_CH
X_BYTES = 2048*1280
FL_BYTES = 0x1c000
F_EP, F_G, F_WD, F_H, F_A, F_T = 0x0, 0x1000, 0x2000, 0x6000, 0x6000 + 240*128, 0x14000
P_U, P_LA, P_AI, P_CR, P_CI, P_DT, P_DS, P_BX = 36, 38, 40, 42, 44, 46, 48, 50
P_WG, P_WU, P_WD, P_GW, P_OUT, P_DBG, P_WS = 52, 54, 56, 58, 60, 62, 64
S_WAVE, S_J, S_X, S_TAG = 66, 67, 3, 1
LOG2E = 1.4426950408889634
SC = " sc1"
SPIN = 20000
CFG = dict(split=(8, 8, 6, 5, 5), wmod=" nt", wdmod=" nt", rot=(0,2,4,6,8), rotx=1, rotl=7, gostep=10, slp=6, slpH=8, nbU=3, kprio=3, nbA=3, nbB=12,
           umod="", wdelay=2, kmf0=40, warmat=2, nTA=0, nT0=1, waitT=True, tpub=2, slpI=16, marks='kuePHM', swap=True, cwarm=(4,0), nTS=None, dlyW=0, gnb=2, xl=2, fpos=0.6, dlyI=0, dlyC=0, iprio=3, hi0=12, wsp=8, slpU=8, cprio=3, xtouch=True, prio=True, skip=(), dbg=False, pk=False, hsc=SC, psc=SC, omod='')
def fbits(x): return "0x%08x" % struct.unpack("<I", struct.pack("<f", x))[0]

def srd(A, dst, ptr, off, nbytes):
    if off:
        A(f"s_add_u32 s{dst}, s{ptr}, {off}\ns_addc_u32 s{dst+1}, s{ptr+1}, 0")
    else:
        A(f"s_mov_b32 s{dst}, s{ptr}\ns_mov_b32 s{dst+1}, s{ptr+1}")
    A(f"s_mov_b32 s{dst+2}, {nbytes}\ns_mov_b32 s{dst+3}, 0x20000")

TSR = 92
def ts(A, i):
    if CFG["dbg"]:
        A(f"s_waitcnt lgkmcnt(0)\ns_memtime vcc\ns_waitcnt lgkmcnt(0)\ns_mov_b32 s{TSR+2+i}, vcc_lo")
def tsn(A, n):
    if n in CFG['marks']: ts(A, 1 + CFG['marks'].index(n))
def kwait(A):
    A(f"s_waitcnt lgkmcnt(0)\ns_load_dword s{S_TAG}, s[{P_WS}:{P_WS+1}], {F_EP}")
    if CFG["dbg"]:
        for i in range(1, 8): A(f"s_mov_b32 s{TSR+2+i}, 0")
def ts_end(A):
    A("s_waitcnt vmcnt(0)")
    ts(A, 7)
    A(f"s_memrealtime vcc\ns_waitcnt lgkmcnt(0)\ns_mov_b32 s{TSR+1}, vcc_lo")
    srd(A, 4, P_WS, WS_TS, 0x100000)
    A(f"s_lshl_b32 s8, s2, 2\ns_add_u32 s8, s8, s{S_WAVE}\ns_lshl_b32 s8, s8, 6\nv_mov_b32 v1, 0")
    for i in range(10): A(f"v_mov_b32 v{2+i}, s{TSR+i}")
    A("s_getreg_b32 s9, hwreg(HW_REG_HW_ID)\ns_getreg_b32 s10, hwreg(HW_REG_XCC_ID)\nv_mov_b32 v12, s9\nv_mov_b32 v13, s10")
    A("s_mov_b64 exec, 1")
    for i in range(3): A(f"buffer_store_dwordx4 {v(2+4*i,4)}, v1, s[4:7], s8 offen offset:{16*i}")

def prologue(A, nwg):
    if CFG["dbg"]: A(f"s_memrealtime s[{TSR}:{TSR+1}]\ns_memtime s[{TSR+2}:{TSR+3}]")
    if CFG.get("span") or CFG.get("pad"): A(f"s_memrealtime s[{TSR}:{TSR+1}]")
    A(f"""
    s_load_dwordx16 s[36:51], s[0:1], 0
    s_load_dwordx8 s[52:59], s[0:1], 64
    s_load_dwordx4 s[60:63], s[0:1], 96
    s_load_dwordx2 s[64:65], s[0:1], 112
    s_cmp_ge_u32 s2, {nwg}
    s_cbranch_scc1 L_exit
    v_lshrrev_b32 v1, 6, v0
    v_and_b32 v0, 63, v0
    v_readfirstlane_b32 s{S_WAVE}, v1
    s_and_b32 s{S_X}, s2, 7
    s_bfe_u32 s{S_J}, s2, 0x50003
    """)
    if CFG["cwarm"]:
        n, w0 = CFG["cwarm"]
        A(f"""
        s_lshr_b32 s70, s2, 3
        s_lshl_b32 s70, s70, 2
        s_add_u32 s70, s70, s{S_WAVE}
        s_sub_u32 s70, s70, {w0}
        s_cmp_ge_u32 s70, {n}
        s_cbranch_scc1 L_nocw
        s_getpc_b64 s[72:73]
        s_and_b32 s72, s72, 0xffffff00
        s_lshl_b32 s70, s70, 13
        v_lshl_add_u32 v1, v0, 7, s70
        v_min_u32 v1, L_end-{A.kname}-4, v1
        global_load_dword v255, v1, s[72:73]
        L_nocw:
        """)

def spin_tail(A, lab, done, cnt, slp=None):
    slp = CFG["slp"] if slp is None else slp
    if slp: A(f"s_sleep {slp}")
    A(f"s_sub_u32 s{cnt}, s{cnt}, 1\ns_cbranch_scc0 {lab}\n{done}:")

def mk_tag(A):
    A(f"s_mul_i32 s{S_TAG}, s{S_TAG}, 0x9e3779b1\ns_add_u32 s{S_TAG}, s{S_TAG}, 0x7f4a7c15\ns_or_b32 s{S_TAG}, s{S_TAG}, 1")

def poll(A, sfl, vt, va, cnt, preissued=False, slp=None):
    lab, done = A.label("poll"), A.label("pollok")
    A(f"s_mov_b32 s{cnt}, {12000000 // (64*(CFG['slp'] if slp is None else slp) + 600)}")
    if preissued:
        A(f"v_cmp_ne_u32 vcc, s{S_TAG}, v{vt}\ns_cbranch_vccz {done}")
    A(f"""{lab}:
    buffer_load_dword v{vt}, v{va}, s[{sfl}:{sfl+3}], 0 offen{SC}
    s_waitcnt vmcnt(0)
    v_cmp_ne_u32 vcc, s{S_TAG}, v{vt}
    s_cbranch_vccz {done}
    """)
    spin_tail(A, lab, done, cnt, slp)

def publish(A, sfl, soff, vt, vz):
    lab = A.label("pub")
    A(f"""
    s_cmp_lg_u32 s{S_WAVE}, 0
    s_cbranch_scc1 {lab}
    v_mov_b32 v{vt}, s{S_TAG}
    s_mov_b64 exec, 1
    buffer_store_dword v{vt}, v{vz}, s[{sfl}:{sfl+3}], s{soff} offen{SC}
    s_mov_b64 exec, -1
    {lab}:
    """)

IMG = 2688
HALF = "s_mov_b32 exec_lo, 0xffff\ns_mov_b32 exec_hi, 0xffff"
def p8_addr(A):
    A(f"""
    v_mul_u32_u24 v57, 1296, v61
    v_add_u32 v57, v57, v62
    s_mul_i32 s70, s{S_WAVE}, 20480
    v_add_u32 v57, s70, v57
    v_bfe_u32 v58, v0, 3, 1                 ; r>>1
    v_mul_u32_u24 v58, 20480, v58
    v_bfe_u32 v59, v0, 2, 1                 ; r&1
    v_mul_u32_u24 v59, 1296, v59
    v_add_u32 v58, v58, v59
    v_lshrrev_b32 v60, 4, v0                ; g
    v_lshl_add_u32 v58, v60, 5, v58
    v_and_b32 v59, 3, v0
    v_lshl_add_u32 v58, v59, 3, v58
    s_lshl_b32 s70, s{S_WAVE}, 7
    v_add_u32 v58, s70, v58
    v_mul_u32_u24 v60, 49152, v60
    v_and_b32 v59, 15, v0
    v_lshl_add_u32 v60, v59, 4, v60
    v_mov_b32 v61, 0
    """)
def p8_load(A, dst, sr, soff, mod, va=56):
    A(f"buffer_load_dwordx4 {v(dst,4)}, v{va}, s[{sr}:{sr+3}], {soff} offen{mod}")
    A(f"buffer_load_dwordx4 {v(dst+4,4)}, v{va}, s[{sr}:{sr+3}], {soff} offen offset:512{mod}")
    A(HALF)
    A(f"buffer_load_dwordx4 {v(dst+8,4)}, v{va}, s[{sr}:{sr+3}], {soff} offen offset:1024{mod}")
    A("s_mov_b64 exec, -1")
def p8_write(A, src, slot):
    A(f"ds_write_b128 v57, {v(src,4)} offset:{slot*IMG}\nds_write_b128 v57, {v(src+4,4)} offset:{slot*IMG+512}")
    A(HALF)
    A(f"ds_write_b128 v57, {v(src+8,4)} offset:{slot*IMG+1024}\ns_mov_b64 exec, -1")
def p8_out(A, dst, slot, sr, soff, va, step):
    for q in range(3):
        A(f"ds_read_b64_tr_b16 {v(dst+4*q,2)}, v58 offset:{slot*IMG+q*512}\nds_read_b64_tr_b16 {v(dst+4*q+2,2)}, v58 offset:{slot*IMG+q*512+40960}")
    sk = A.label("p8s")
    for q in range(3):
        if q == 2: A(f"s_cmp_ge_u32 s{S_WAVE}, 2\ns_cbranch_scc1 {sk}")
        A(f"s_waitcnt lgkmcnt({4-2*q})")
        if "pstore" not in CFG["skip"]: A(f"buffer_store_dwordx4 {v(dst+4*q,4)}, v{va}, s[{sr}:{sr+3}], s{soff} offen{CFG['psc']}")
        if q < 2: A(f"s_add_u32 s{soff}, s{soff}, {step}")
    A(f"{sk}:\ns_waitcnt lgkmcnt(0)")
def gate_dot(A, X, W):
    A("v_mov_b32 v52, 0")
    for j in range(12): A(f"v_dot2_f32_bf16 v52, v{X+j}, v{W+j}, v52")
    for sh in (8, 4, 2, 1):
        A(f"v_add_f32_dpp v52, v52, v52 row_ror:{sh} row_mask:0xf bank_mask:0xf")
    A("v_add_f32_dpp v52, v52, v52 row_bcast:15 row_mask:0xa bank_mask:0xf")
def gate_out(A, sr, soff):
    A(f"""
    v_cvt_pk_bf16_f32 v53, v53, v53
    v_lshlrev_b32 v53, 16, v53
    v_mul_f32 v53, {fbits(-LOG2E)}, v53
    v_exp_f32 v53, v53
    v_add_f32 v53, 1.0, v53
    v_rcp_f32 v53, v53
    v_cvt_pk_bf16_f32 v53, v53, v53
    v_lshlrev_b32 v54, 16, v53
    v_sub_f32 v53, 1.0, v54
    v_cvt_pk_bf16_f32 v53, v53, v53
    v_lshlrev_b32 v55, 16, v53
    s_mov_b32 exec_lo, 0xffff0000
    s_mov_b32 exec_hi, 0xffff0000
    buffer_store_dwordx2 v[54:55], v63, s[{sr}:{sr+3}], s{soff} offen{SC}
    s_mov_b64 exec, -1
    """)
NWDF = 16
def role_prep_w(A):
    NB = CFG["gnb"]
    GX, GW = 64, 16
    A(f"""
    s_lshl_b32 s79, s69, 7
    s_add_u32 s79, s79, {F_G}
    s_lshl_b32 s69, s69, 2
    s_add_u32 s69, s69, s{S_WAVE}
    s_mul_i32 s88, s69, {32*1280}
    s_lshl_b32 s89, s69, 8
    v_lshrrev_b32 v63, 5, v0                ; row&1
    v_and_b32 v62, 31, v0
    v_lshlrev_b32 v62, 4, v62
    v_mul_u32_u24 v56, 1280, v63
    v_add_u32 v56, v56, v62
    v_lshlrev_b32 v63, 3, v63
    v_and_b32 v61, 15, v0
    v_lshl_add_u32 v63, v61, 4, v63
    v_mov_b32 v8, 0
    s_mov_b32 s71, 0
    s_mov_b32 s82, {X_BYTES}
    s_mov_b32 s83, 0x20000
    s_mov_b32 s86, 1280
    s_mov_b32 s87, 0x20000
    """)
    for j in range(8, 12):
        for q in range(NB): A(f"v_mov_b32 v{GX+12*q+j}, 0")
        A(f"v_mov_b32 v{GW+j}, 0")
    kwait(A)
    if CFG["dlyC"]: A(f"s_sleep {CFG['dlyC']}")
    A(f"s_mov_b64 s[80:81], s[{P_U}:{P_U+1}]\ns_mov_b64 s[84:85], s[{P_GW}:{P_GW+1}]")
    p8_load(A, GW, 84, "0", "", va=62)
    for q in range(NB):
        p8_load(A, GX+12*q, 80, "s88", "")
        A("s_add_u32 s88, s88, 2560")
    srd(A, 16, P_WS, WS_G, G_BYTES)
    srd(A, 24, P_WS, 0, FL_BYTES)
    top = A.label("gl")
    A(f"s_mov_b32 s70, {16//NB - 1}\n{top}:\ns_cmp_eq_u32 s70, 0\ns_cselect_b32 s88, 0x8000000, s88")
    for q in range(NB):
        A(f"s_waitcnt vmcnt({3*(NB-1)})")
        gate_dot(A, GX+12*q, GW)
        p8_load(A, GX+12*q, 80, "s88", "")
        A("s_add_u32 s88, s88, 2560\nv_cmp_eq_u32 vcc, s71, v61\nv_cndmask_b32 v53, v53, v52, vcc\ns_add_u32 s71, s71, 1")
    A(f"s_sub_u32 s70, s70, 1\ns_cbranch_scc0 {top}\ns_waitcnt lgkmcnt(0)")
    gate_out(A, 16, 89)
    ts(A, 2)
    mk_tag(A)
    A(f"s_waitcnt vmcnt(0)\ns_barrier")
    publish(A, 24, 79, 9, 8)
    ts(A, 3)
    if not CFG["skip"]:
        ne = A.label("noep")
        A(f"""
        s_sub_u32 s70, s79, {F_G}
        s_or_b32 s70, s70, s{S_WAVE}
        s_cmp_lg_u32 s70, 0
        s_cbranch_scc1 {ne}
        s_setprio 0
        v_lshlrev_b32 v2, 7, v0
        v_add_u32 v2, {F_H}, v2
        s_mov_b32 s71, 7
        """)
        top = A.label("ep")
        A(f"{top}:\nv_min_u32 v3, {F_H + 399*128}, v2")
        poll(A, 24, 9, 3, 72, slp=32)
        A(f"""
        v_add_u32 v2, {64*128}, v2
        s_sub_u32 s71, s71, 1
        s_cmp_lg_u32 s71, 0
        s_cbranch_scc1 {top}
        v_min_u32 v3, 15, v0
        v_lshlrev_b32 v3, 7, v3
        v_add_u32 v3, {F_G}, v3
        """)
        poll(A, 24, 9, 3, 72, slp=32)
        A(f"""
        v_mov_b32 v2, s{S_TAG}
        s_mov_b64 exec, 1
        buffer_store_dword v2, v8, s[24:27], 0 offen{SC}
        s_mov_b64 exec, -1
        {ne}:
        """)

def touch(A, k, dst, va, idle):
    base = (48*k) if idle else (48*CFG["nTA"] + 80*k - 48)
    A(f"""
    s_lshl_b32 s88, s{S_J}, 2
    s_add_u32 s88, s88, s{S_WAVE}
    s_add_u32 s88, s88, {base & 0xffffffff}
    s_lshl_b32 s88, s88, 13
    buffer_load_dword v{dst}, v{va}, s[8:11], s88 offen{SC}
    """)

def polln(A, n, va, r, cnt, preissued=False, slp=None):
    lab, done = A.label("poll"), A.label("pollok")
    def chk():
        o = "".join(f"v_xor_b32 v{r+q}, s{S_TAG}, v{r+q}\n" for q in range(n))
        o += f"v_or_b32 v{r}, v{r}, v{r+1}\n" + (f"v_or3_b32 v{r}, v{r}, v{r+2}, v{r+3}\n" if n == 4 else "")
        return o + f"v_cmp_ne_u32 vcc, 0, v{r}\ns_cbranch_vccz {done}"
    A(f"s_mov_b32 s{cnt}, {SPIN}")
    if preissued: A(chk())
    A(f"{lab}:\nbuffer_load_dwordx{n} {v(r,n)}, v{va}, s[24:27], 0 offen{SC}\ns_waitcnt vmcnt(0)")
    A(chk())
    spin_tail(A, lab, done, cnt, slp)
def poll4(A, va, r, cnt, preissued=False): polln(A, 4, va, r, cnt, preissued)
def poll2w(A, va, r, cnt): polln(A, 2, va, r, cnt)

def role_idle(A):
    if CFG["prio"]: A(f"s_setprio {CFG['iprio']}")
    QX, QO = 64, 128
    A(f"""
    s_mul_i32 s68, s{S_X}, 12
    s_add_u32 s68, s68, s{S_J}
    s_mul_i32 s90, s68, 20480
    s_mul_i32 s89, s{S_WAVE}, 2560
    s_add_u32 s90, s90, s89
    s_mov_b32 s6, {WD_BYTES}
    s_mov_b32 s7, 0x20000
    v_lshrrev_b32 v61, 5, v0                ; row&1
    v_and_b32 v62, 31, v0
    v_lshlrev_b32 v62, 4, v62               ; piece*16
    v_mul_u32_u24 v56, 1280, v61
    v_add_u32 v56, v56, v62
    """)
    kwait(A)
    if CFG["dlyI"]: A(f"s_sleep {CFG['dlyI']}")
    A(f"s_mov_b64 s[4:5], s[{P_WD}:{P_WD+1}]")
    for q in range(2):
        p8_load(A, QX+12*q, 4, "s90", CFG["wdmod"])
        if q == 0: A("s_add_u32 s90, s90, 10240")
    p8_addr(A)
    srd(A, 8, P_WS, WS_WD, WD_BYTES)
    srd(A, 24, P_WS, 0, FL_BYTES)
    A(f"""
    v_lshlrev_b32 v40, 7, v0
    v_min_u32 v41, 19, v0
    s_mul_i32 s70, s{S_X}, {20*128}
    s_add_u32 s70, s70, {F_A}
    v_lshl_add_u32 v41, v41, 7, s70
    s_mul_i32 s70, s{S_WAVE}, {24*128}
    s_add_u32 s70, s70, {F_WD}
    v_min_u32 v42, 23, v0
    v_lshl_add_u32 v42, v42, 7, s70
    s_lshl_b32 s78, s68, 7
    s_add_u32 s78, s78, {F_WD}
    s_lshr_b32 s90, s68, 1
    s_lshl_b32 s90, s90, 10
    s_and_b32 s70, s68, 1
    s_lshl_b32 s70, s70, 9
    s_add_u32 s90, s90, s70
    s_mul_i32 s70, s{S_WAVE}, {4*49152}
    s_add_u32 s90, s90, s70
    """)
    for q in range(2):
        A(f"s_waitcnt vmcnt({3*(1-q)})")
        p8_write(A, QX+12*q, q)
    tsn(A, 'p')
    A("s_waitcnt lgkmcnt(0)\ns_barrier")
    for q in range(2):
        A(f"s_add_u32 s91, s90, {q*256}")
        p8_out(A, QO+12*q, q, 8, 91, 60, 16*49152)
    tsn(A, 'y')
    mk_tag(A)
    A("s_waitcnt vmcnt(0)\ns_barrier")
    publish(A, 24, 78, 16, 61)
    if CFG["prio"]: A("s_setprio 0")
    tsn(A, 's')
    if "idle" in CFG["skip"]: A("s_branch L_done")
    if CFG["nTA"] or not CFG["waitT"]:
        if CFG["dlyW"]: A(f"s_sleep {CFG['dlyW']}")
        poll(A, 24, 16, 42, 72, slp=CFG["slpI"])
        A("s_barrier")
        tsn(A, 'k')
        for k in range(CFG["nTA"]):
            touch(A, k, 237, 40, True)
            A("s_waitcnt vmcnt(0)")
    if CFG["waitT"]:
        nw = A.label("nw")
        A(f"s_cmp_lg_u32 s{S_WAVE}, 0\ns_cbranch_scc1 {nw}")
        poll(A, 24, 16, 41, 72, slp=CFG["slpI"])
        A(f"{nw}:\ns_barrier")
    A("s_mov_b32 s0, 0")
    tsn(A, 'u')

C1 = -2.0 * LOG2E * 0.7978845608028654
C2 = C1 * 0.044715
def role_g1(A0):
    def A(x):
        for l in x.split("\n"):
            t = l.strip()
            if "g1m" in CFG["skip"] and t.startswith("v_mfma"): l = "s_nop 7\ns_nop 7\ns_nop 7\ns_nop 5"
            if "g1r" in CFG["skip"] and t.startswith("ds_read"): l = "s_nop 0"
            A0(l)
    A.label = A0.label
    split = CFG["split"]
    st = [sum(split[:i]) for i in range(5)]
    assert sum(split) == 32 and min(split) >= 4 and max(split) <= 8
    pack_c0 = sum(st[i] << (6*i) for i in range(5)); pack_nc = sum(split[i] << (6*i) for i in range(5))
    sline, sc0, snc, srot, sflag = 69, 68, 79, 72, 91
    AR, ACC0, BR = 96, 64, 32
    RS, RA, KBAR = 8, 6, 16
    SB = 80
    VW, VX0, VX1, VT0, VT1 = 28, 29, 30, 14, 15
    VTOUCH, VHINT, VZ = 31, 13, 1
    if CFG["prio"]: A("s_setprio 2")
    A(f"""
    s_mul_i32 s68, s{S_J}, 43
    s_lshr_b32 s68, s68, 8               ; slot = j/6
    s_mul_i32 s69, s68, 6
    s_sub_u32 s69, s{S_J}, s69           ; j%6
    s_and_b32 s70, s{S_X}, 1             ; half
    s_add_u32 s72, s68, s69
    s_lshl_b32 s72, s72, 1
    s_add_u32 s72, s72, s70
    s_cmp_eq_u32 s69, 5
    s_cselect_b32 s12, 0x8000000, 0
    s_addc_u32 s72, s72, 0
    s_mul_i32 s73, s70, 5
    s_add_u32 s73, s73, s68
    s_mul_i32 s{sflag}, s73, {24*128}
    s_lshr_b32 s71, s{S_X}, 1            ; q
    s_mul_i32 s73, s71, 6
    s_add_u32 s69, s69, s73              ; line
    s_lshl_b32 s73, s69, 7
    s_add_u32 s{sflag}, s{sflag}, s73
    s_add_u32 s20, s{sflag}, {F_T}
    s_add_u32 s{sflag}, s{sflag}, {F_H}
    s_mul_i32 s73, s68, 6
    s_lshr_b32 s79, {pack_nc}, s73
    s_and_b32 s79, s79, 63               ; nc
    s_lshr_b32 s68, {pack_c0}, s73
    s_and_b32 s68, s68, 63
    s_lshl_b32 s70, s70, 5
    s_add_u32 s68, s68, s70              ; c0
    s_mul_i32 s70, s72, 205
    s_lshr_b32 s70, s70, 11
    s_mul_i32 s70, s70, 10
    s_sub_u32 s72, s72, s70              ; rot
    s_lshl_b32 s71, s71, 1
    s_cmp_ge_u32 s71, s79
    s_cselect_b32 s13, 0x8000000, s12
    s_cselect_b32 s70, s79, 0
    s_sub_u32 s14, s71, s70              ; o0
    s_add_u32 s71, s71, 1
    s_cmp_ge_u32 s71, s79
    s_cselect_b32 s12, 0x8000000, s12
    s_add_u32 s15, s14, 1
    s_cmp_eq_u32 s15, s79
    s_cselect_b32 s15, 0, s15            ; o1
    s_add_u32 s21, s15, 1
    s_cmp_eq_u32 s21, s79
    s_cselect_b32 s21, 0, s21            ; o2
    s_mul_i32 s21, s21, 40960
    s_mul_i32 s22, s79, 40960
    v_lshrrev_b32 v1, 3, v0                 ; lane>>3
    v_and_b32 v13, 7, v0                    ; chunk
    s_lshr_b32 s70, s{S_WAVE}, 1
    s_lshl_b32 s70, s70, 3
    v_add_u32 v16, s70, v1
    v_mul_u32_u24 v{VW}, 3072, v16
    v_bfe_u32 v17, v0, 4, 1
    s_and_b32 s70, s{S_WAVE}, 1
    s_lshl_b32 s70, s70, 2
    v_lshl_or_b32 v17, v17, 1, s70          ; swz
    v_xor_b32 v17, v17, v13
    v_lshl_add_u32 v{VW}, v17, 4, v{VW}
    s_lshl_b32 s71, s{sline}, 7
    v_add_u32 v{VW}, s71, v{VW}             ; W voffset
    s_lshl_b32 s70, s{S_WAVE}, 3
    v_add_u32 v{VX0}, s70, v1
    v_bfe_u32 v17, v{VX0}, 1, 3             ; swz
    v_xor_b32 v17, v17, v13
    v_mul_u32_u24 v{VX0}, 1280, v{VX0}
    v_lshl_add_u32 v{VX0}, v17, 4, v{VX0}
    s_mul_i32 s73, s{sc0}, 40960
    v_add_u32 v13, s73, v{VX0}
    s_mul_i32 s70, s14, 40960
    v_add_u32 v{VX0}, s70, v13
    s_mul_i32 s70, s15, 40960
    v_add_u32 v{VX1}, s70, v13
    s_lshl_b32 s74, s{S_WAVE}, 10           ; m0 base
    """)
    for b in range(10):
        A(f"s_lshl_b32 s{SB+b}, s72, 7\ns_add_u32 s72, s72, 1\ns_cmp_ge_u32 s72, 10\ns_cselect_b32 s72, 0, s72")
    A(f"""
    s_mov_b32 s90, 40960
    s_sub_u32 s75, s{snc}, 2
    v_add_u32 v10, s21, v13
    v_bfe_u32 v16, v0, 4, 1                 ; mat
    v_lshrrev_b32 v17, 5, v0                ; h
    v_bfe_u32 v18, v0, 2, 2                 ; r
    v_and_b32 v19, 1, v0                    ; c&1
    v_bfe_u32 v20, v0, 1, 1                 ; c>>1
    s_lshl_b32 s70, s{S_WAVE}, 1
    v_or_b32 v19, s70, v19                  ; chunk
    v_and_b32 v21, 2, v18
    v_lshl_or_b32 v21, v16, 2, v21          ; swz
    v_xor_b32 v19, v19, v21
    v_lshl_add_u32 v22, v17, 1, v16         ; mat + 2h
    v_lshlrev_b32 v{VT0}, 10, v22
    v_lshl_add_u32 v{VT0}, v18, 7, v{VT0}
    v_lshl_add_u32 v{VT0}, v19, 4, v{VT0}
    v_lshl_add_u32 v{VT0}, v20, 3, v{VT0}
    v_add_u32 v{VT1}, s90, v{VT0}
    v_and_b32 v16, 31, v0                   ; n
    v_bfe_u32 v18, v0, 1, 3                 ; (n>>1)&7
    v_xor_b32 v18, v18, v17
    v_lshlrev_b32 v2, 7, v16
    v_lshl_add_u32 v2, v18, 4, v2
    v_xor_b32 v3, 32, v2
    v_xor_b32 v4, 64, v2
    v_xor_b32 v5, 96, v2
    v_add_u32 v6, s90, v2
    v_add_u32 v7, s90, v3
    v_add_u32 v8, s90, v4
    v_add_u32 v9, s90, v5
    v_bfe_u32 v18, v0, 4, 1                 ; n>>4
    v_mul_u32_u24 v11, 49152, v18
    s_and_b32 s70, s{S_WAVE}, 1
    s_lshl_b32 s70, s70, 1
    v_add_u32 v18, s70, v17                 ; 2(w&1)+h
    v_lshlrev_b32 v18, 4, v18
    v_and_or_b32 v18, v0, 15, v18
    v_lshl_add_u32 v11, v18, 4, v11
    s_lshl_b32 s78, s{sline}, 1
    s_lshr_b32 s70, s{S_WAVE}, 1
    s_add_u32 s78, s78, s70
    s_lshl_b32 s78, s78, 10
    s_mul_i32 s70, s{sc0}, 98304
    s_add_u32 s28, s78, s70
    s_mul_i32 s70, s{snc}, 98304
    s_add_u32 s29, s28, s70
    s_mul_i32 s70, s14, 98304
    s_add_u32 s78, s28, s70
    v_mov_b32 v12, {fbits(C2)}
    v_mov_b32 v{VZ}, 0
    s_mov_b32 s10, {640*3072}
    s_mov_b32 s11, 0x20000
    s_mov_b32 s6, {X_BYTES}
    s_mov_b32 s7, 0x20000
    s_mul_i32 s73, s{SB}, 1536
    s_mov_b32 m0, s74
    """)
    kwait(A)
    A(f"""
    s_bitcmp1_b32 s{S_WAVE}, 0
    s_cselect_b32 s8, s{P_WU}, s{P_WG}
    s_cselect_b32 s9, s{P_WU+1}, s{P_WG+1}
    """)
    XL = CFG["xl"]
    steps = []
    for b in range(10):
        stp = [("W", b, ks) for ks in range(4)] + [("X0", b, 0)]
        if b in (XL, XL+1): stp.append(("X1", b-XL, 0))
        if b >= 6: stp.append(("X1", b-4, 0))
        steps.append(stp)
    steps.append([("X1", b, 0) for b in range(6, 10)])
    seq = [p for stp in steps for p in stp]
    assert len(seq) == 60
    page = {p: i % 20 for i, p in enumerate(seq)}
    for g in range(4):
        for kb in range(5): seq.append(("M", g, kb))
    adv_ops = ["s_add_u32 s21, s21, s90", "s_cmp_eq_u32 s21, s22", "s_cselect_b32 s21, 0, s21",
               "s_sub_u32 s75, s75, 1", "s_cmp_gt_i32 s75, 0", "s_cselect_b32 s76, s21, 0x8000000", "v_add_u32 v10, s76, v13"]
    def piece(i):
        p = seq[i]; pg = i % 20
        pre = []
        if p[0] == "W":
            if p[2] == 0: pre.append(f"s_mul_i32 s73, s{SB+p[1]}, 1536")
            else: pre.append(f"s_add_u32 s73, s73, 49152")
            iss = [f"buffer_load_dwordx4 v{VW}, s[8:11], s73 offen{CFG['wmod']} lds"]
        elif p[0] in ("X0", "X1"):
            iss = [f"buffer_load_dwordx4 v{VX0 if p[0] == 'X0' else VX1}, s[4:7], s{SB+p[1]} offen lds"]
        else:
            iss = [f"buffer_load_dwordx4 v10, s[4:7], s{SB+5*(p[1]&1)+p[2]} offen lds"]
            if (p[1] & 1) and p[2] == 4: iss += adv_ops
        pre.append(f"s_add_u32 m0, s74, {pg*4096}")
        return pre, iss
    vm = []
    def wait_for(npieces):
        pos = vm.index(npieces - 1)
        return len(vm) - 1 - pos
    for i in range(20):
        pre, iss = piece(i)
        if i == 0: pre = []
        for o in pre + iss: A(o)
        vm.append(i)
        if i == 0:
            A(f"s_mov_b32 s4, s{P_U}\ns_mov_b32 s5, s{P_U+1}")
        if i == 5:
            srd(A, 16, P_WS, WS_H, H_BYTES); srd(A, 24, P_WS, 0, FL_BYTES)
    UH, USO = AR + 144, (23, 30, 31, 77)
    srd(A, 32, P_WS, WS_UT, UT_BYTES)
    A(f"""
    v_bfe_u32 v16, v0, 2, 2                 ; r
    s_lshl_b32 s70, s{S_WAVE}, 3
    v_add_u32 v17, s70, v16                 ; row
    v_bfe_u32 v18, v17, 1, 3                ; swizzle
    v_lshrrev_b32 v19, 4, v0
    v_bfe_u32 v20, v0, 1, 1
    v_lshl_or_b32 v19, v19, 1, v20          ; chunk
    v_xor_b32 v18, v18, v19
    v_lshlrev_b32 v17, 7, v17
    v_lshl_add_u32 v17, v18, 4, v17
    v_and_b32 v20, 1, v0
    v_lshl_add_u32 v18, v20, 3, v17         ; tokens 0..3
    v_xor_b32 v19, 32, v18
    v_add_u32 v19, 512, v19                 ; tokens 4..7
    v_lshlrev_b32 v17, 4, v0
    """)
    for c in range(2):
        A(f"""
        s_add_u32 s70, s{sc0}, s{14+c}
        s_lshl_b32 s70, s70, 2
        s_add_u32 s70, s70, s{S_WAVE}
        s_mul_i32 s70, s70, {UT_CH}
        s_add_u32 s70, s70, s{13-c}
        """)
        for b in range(2): A(f"s_lshl_b32 s71, s{SB+b}, 3\ns_add_u32 s{USO[2*c+b]}, s70, s71")
    duty = {0: ("X0", 0, 0), 1: ("X0", 1, 1), XL: ("X1", 0, 2), XL+1: ("X1", 1, 3)}
    ust = [f"buffer_store_dwordx4 {v(UH+4*k,4)}, v17, s[32:35], s{USO[k]} offen{SC}" for k in range(4)]
    upos = None; upub = False
    def epi_ops(acc):
        ops = []
        T = 16
        for g0 in (0, 4):
            E = range(g0, g0+4)
            ops += [f"v_mul_f32 v{T+e-g0}, v{acc+e}, v{acc+e}" for e in E]
            ops += [f"v_mul_f32 v{acc+8+e}, v{acc+e}, v{acc+8+e}" for e in E]
            ops += [f"v_fmaak_f32 v{T+e-g0}, v12, v{T+e-g0}, {fbits(C1)}" for e in E]
            ops += [f"v_mul_f32 v{T+e-g0}, v{T+e-g0}, v{acc+e}" for e in E]
            ops += [f"v_exp_f32 v{T+e-g0}, v{T+e-g0}" for e in E]
            ops += [f"v_add_f32 v{T+e-g0}, 1.0, v{T+e-g0}" for e in E]
            ops += [f"v_rcp_f32 v{T+e-g0}, v{T+e-g0}" for e in E]
            ops += [f"v_mul_f32 v{acc+8+e}, v{acc+8+e}, v{T+e-g0}" for e in E]
            ops += [f"v_cvt_pk_bf16_f32 v{24+(g0>>1)+p}, v{acc+8+g0+2*p}, v{acc+8+g0+2*p+1}" for p in range(2)]
        ops.append(f"buffer_store_dwordx4 v[24:27], v11, s[16:19], s78 offen{CFG['hsc']}")
        ops.append("s_add_u32 s78, s78, 98304\ns_cmp_eq_u32 s78, s29\ns_cselect_b32 s78, s28, s78")
        return ops
    def wgt(o): return 2.0 if ("v_exp" in o or "v_rcp" in o) else (0.0 if o.startswith("s_") else 1.0)
    def bread_at(pg, ks, slot):
        return f"ds_read_b128 {v(BR+4*(slot%RS),4)}, v{2+4*(pg>=10)+ks} offset:{(pg%10)*4096}"
    mf = []
    for s_, stp in enumerate(steps):
        L0 = [(0, 4*b+ks, page[(n, b, 0)], ks) for (n, b, _) in stp if n == "X0" for ks in range(4)]
        L1 = [(1, 4*b+ks, page[(n, b, 0)], ks) for (n, b, _) in stp if n == "X1" for ks in range(4)]
        if L0 and L1: L = [x for pr in zip(L0, L1) for x in pr]
        else: L = L0 + L1
        mf.append(L)
    allm = [m for L in mf for m in L]
    def frag_read(j):
        if j < 80: return bread_at(allm[j][2], allm[j][3], j)
        jj = j - 80
        return bread_at(jj >> 2, jj & 3, j)
    nissued = 20; rd = 0; mi = 0
    E = 0
    started = [False, False]
    def emit(o):
        A(o)
        if o.startswith("buffer_store"): vm.append(None)
    def issue(i):
        pre, iss = piece(i); return pre, iss
    for s_ in range(12):
        if s_ <= 10:
            E += len(steps[s_])
            A(f"s_waitcnt vmcnt({wait_for(E)}) lgkmcnt(0)\ns_barrier")
            if s_ == 0: ts(A, 1)
            if upos is not None and not upub and len(vm) - wait_for(E) > upos:
                mk_tag(A); publish(A, 24, 20, 31, VZ); upub = True
                ts(A, 4)
            trs = []
            if s_ in duty:
                n, b, k = duty[s_]; pg = page[(n, b, 0)]
                assert pg <= 15
                trs += [f"ds_read_b64_tr_b16 {v(UH+4*k+2*t,2)}, v{18+t} offset:{pg*4096}" for t in range(2)]
            for (n, b, ks) in steps[s_]:
                if n == "W":
                    pg = page[(n, b, ks)]
                    for hh in range(2):
                        trs.append(f"ds_read_b64_tr_b16 {v(AR+16*b+4*ks+2*hh,2)}, v{VT1 if pg >= 10 else VT0} offset:{(pg%10)*4096 + hh*512}")
            ndma = len(steps[s_-1]) if s_ else 0
            rlim = sum(len(mf[i]) for i in range(s_+1))
        else:
            trs = []; ndma = 0
        ms = mf[s_-1] if s_ else []
        dm = list(range(nissued, nissued + ndma)); nissued += ndma
        last = (s_ == 11)
        ops = epi_ops(ACC0) if last else []
        tot = sum(wgt(o) for o in ops); oi = 0; done = 0.0
        def rd_more(limit, maxn):
            nonlocal rd
            n = 0
            while rd < limit and rd < mi + RS and n < maxn:
                A(frag_read(rd)); rd += 1; n += 1
        if not ms:
            rd_more(rlim, 99)
            for o in trs: A(o)
            continue
        if not last: rd_more(rlim, 99)
        for k, (ac, kidx, pg, ks) in enumerate(ms):
            acc = ACC0 + 16*ac
            pi = dm.pop(0) if dm else None
            pre, iss = piece(pi) if pi is not None else ([], [])
            for o in pre: A(o)
            if last: A(f"s_waitcnt lgkmcnt({min(15, rd - mi - 1)})")
            A(f"v_mfma_f32_32x32x16_bf16 {v(acc,16)}, {v(AR+4*kidx,4)}, {v(BR+4*(mi%RS),4)}, {v(acc,16) if started[ac] else 0}")
            started[ac] = True; mi += 1
            if last:
                if k == 12:
                    A(f"s_waitcnt vmcnt({wait_for(65)}) lgkmcnt(0)\ns_barrier")
                lim = 80 if k < 12 else 80 + RA
                rd_more(min(lim, mi + (RS if k < 12 else RA)), 3)
                if k >= 1:
                    tgt = tot * k / 14.0
                    while oi < len(ops) and done < tgt:
                        emit(ops[oi]); done += wgt(ops[oi]); oi += 1
            else:
                rd_more(rlim, 1)
                ntr = -(-len(trs) // (len(ms) - k))
                for _ in range(ntr): A(trs.pop(0))
            for o in iss: A(o)
            if pi is not None: vm.append(pi)
            if s_ == XL + 2 and ust:
                A(ust.pop(0)); vm.append(None)
                if not ust: upos = len(vm) - 1
        while dm:
            pi = dm.pop(0)
            pre, iss = piece(pi)
            for o in pre + iss: A(o)
            vm.append(pi)
        while oi < len(ops):
            emit(ops[oi]); oi += 1
    assert rd == 80 + RA and mi == 80 and nissued == 76 and upub, (rd, mi, nissued)
    ts(A, 2)
    tails = [A.label("g1tail"), A.label("g1tail")]
    A(f"s_sub_u32 s{snc}, s{snc}, 2\ns_cmp_eq_u32 s{snc}, 0\ns_cbranch_scc1 {tails[1]}")
    top = A.label("g1top")
    A(f"{top}:")
    cnt = RA
    for P in range(2):
        acc = ACC0 + 16*P
        ops = epi_ops(ACC0 + 16*(P ^ 1))
        tot = sum(wgt(o) for o in ops); oi = 0; done = 0.0
        issued = RA
        for k in range(40):
            kk = k % 20; stg = k // 20
            gs = 2*P + stg
            pi = None
            if kk == KBAR: pi = 60 + 5*gs
            elif kk in (0, 4, 8, 12): pi = 60 + 5*((gs - 1) & 3) + 1 + kk // 4
            pre, iss = piece(pi) if pi is not None else ([], [])
            for o in pre: A(o)
            A(f"s_waitcnt lgkmcnt({issued - k - 1})")
            A(f"v_mfma_f32_32x32x16_bf16 {v(acc,16)}, {v(AR+4*k,4)}, {v(BR+4*((40*P+k)%RS),4)}, {v(acc,16) if k else 0}")
            if kk == KBAR:
                A("s_waitcnt vmcnt(10) lgkmcnt(0)\ns_barrier")
            lim = 20*(stg+1) if kk < KBAR else 99
            n = 0
            while issued < min(k + 1 + RA, lim) and n < 3:
                j = (40*P + issued) % 80
                A(bread_at(j >> 2, j & 3, cnt)); cnt += 1; issued += 1; n += 1
            for o in iss: A(o)
            if k >= 1:
                tgt = tot * k / 38.0
                while oi < len(ops) and done < tgt:
                    A(ops[oi]); done += wgt(ops[oi]); oi += 1
        while oi < len(ops):
            A(ops[oi]); oi += 1
        A(f"s_sub_u32 s{snc}, s{snc}, 1\ns_cmp_eq_u32 s{snc}, 0\ns_cbranch_scc1 {tails[P]}" if P == 0 else
          f"s_sub_u32 s{snc}, s{snc}, 1\ns_cmp_lg_u32 s{snc}, 0\ns_cbranch_scc1 {top}")
    end = A.label("g1end")
    for P in (1, 0):
        A(f"{tails[P]}:\ns_nop 8")
        for o in epi_ops(ACC0 + 16*P): A(o)
        if P == 1: A(f"s_branch {end}")
    A(f"{end}:\ns_waitcnt vmcnt(0) lgkmcnt(0)\ns_barrier")
    publish(A, 24, sflag, 31, VZ)
    if CFG["prio"]: A("s_setprio 0")
    ts(A, 3)

def cmul(r, x, y, t, conj_out=False, pk=True):
    if pk:
        i1 = f"v_pk_mul_f32 {v(t,2)}, {v(x,2)}, {v(y,2)} op_sel_hi:[0,1]"
        i2 = f"v_pk_fma_f32 {v(r,2)}, {v(x,2)}, {v(y,2)}, {v(t,2)} op_sel:[1,1,0] op_sel_hi:[1,0,1] neg_lo:[0,1,0]"
        if conj_out: i2 += " neg_hi:[0,1,1]"
        return [i1, i2]
    o = [f"v_mul_f32 v{t}, v{x+1}, v{y+1}", f"v_mul_f32 v{t+1}, v{x+1}, v{y}"]
    if r == x or r == y:
        assert r == x and r != y
        o += [f"v_fma_f32 v{r+1}, v{x}, v{y+1}, v{t+1}" if not conj_out else f"v_fma_f32 v{r+1}, -v{x}, v{y+1}, -v{t+1}",
              f"v_fma_f32 v{r}, v{x}, v{y}, -v{t}"]
    else:
        o += [f"v_fma_f32 v{r+1}, v{x}, v{y+1}, v{t+1}" if not conj_out else f"v_fma_f32 v{r+1}, -v{x}, v{y+1}, -v{t+1}",
              f"v_fma_f32 v{r}, v{x}, v{y}, -v{t}"]
    return o

def interleave(*streams):
    out = []; idx = [0]*len(streams); tot = sum(len(x) for x in streams)
    while len(out) < tot:
        best = min((idx[i]/len(x), i) for i, x in enumerate(streams) if idx[i] < len(x))[1]
        out.append(streams[best][idx[best]]); idx[best] += 1
    return out

def role_ssm(A):
    sq = 68
    TB = 5760
    VKW, VKL, VKH = 241, 158, 159
    TBL, CS, MB = 5760, 1984, 9856
    C1_ = CS + 2
    WM = 216
    VF0, VF1, VG, VWA, VWB, VMW, VMR, VOUT = 243, 244, 245, 246, 249, 248, 250, 247
    PK = CFG["pk"]
    st_ = [sum(CFG["split"][:i]) for i in range(5)]
    sl_ = [max(q for q in range(5) if st_[q] <= c) for c in range(32)]
    LS = [sum(sl_[16*h+c] << (4*c) for c in range(16)) for h in range(2)]
    LQ = [sum(((16*h + c - st_[sl_[16*h+c]]) >> 1) << (2*c) for c in range(16)) for h in range(2)]
    KA = 48
    FA, FB = 64, 96
    if CFG["prio"]: A(f"s_setprio 3")
    A(f"""
    s_lshl_b32 s70, s{sq}, 2
    s_add_u32 s70, s70, s{S_WAVE}           ; channel d
    s_mul_i32 s71, s70, 384
    s_lshl_b32 s72, s70, 1
    v_lshlrev_b32 v1, 2, v0
    v_lshlrev_b32 v2, 1, v0
    v_mov_b32 v3, 0
    s_mul_i32 s76, s{S_WAVE}, 20480
    s_mov_b32 m0, s76
    s_add_u32 s78, s76, {TBL}
    """)
    for d in (8, 12, 16, 20): A(f"s_mov_b32 s{d+2}, {640*384}\ns_mov_b32 s{d+3}, 0x20000")
    for d in (4, 32): A(f"s_mov_b32 s{d+2}, 1280\ns_mov_b32 s{d+3}, 0x20000")
    A("""
    v_and_b32 v45, 15, v0                   ; lane & 15
    v_lshrrev_b32 v40, 4, v0                ; g
    v_lshlrev_b32 v41, 3, v40               ; 8g
    v_sub_u32 v42, v41, v45
    v_add_u32 v42, 16, v42
    v_min_u32 v42, 31, v42
    """)
    BANDS = [(11, 13), (3, 5), (6, 10), (5, 11), (4, 12), (12, 13)]
    def band(q):
        lo, hi = BANDS[q]
        A(f"s_mov_b32 s79, {(((1 << (hi-lo+1)) - 1) << lo) << 16}\nv_lshrrev_b32 v43, v42, s79")
        for r in range(4):
            A(f"v_bfe_u32 v44, v43, {2*r}, 1\nv_bfe_u32 v46, v43, {2*r+1}, 1\nv_lshl_or_b32 v44, v46, 16, v44\nv_mul_u32_u24 v{WM+4*q+r}, 0x3f80, v44")
    for q in range(3): band(q)
    def params():
        pm = CFG.get("pmod", " nt")
        for d, p in ((4, P_DT), (8, P_LA)): A(f"s_mov_b64 s[{d}:{d+1}], s[{p}:{p+1}]")
        A(f"""
        buffer_load_ushort v16, v3, s[4:7], s72 offen
        buffer_load_dword v4, v1, s[8:11], s71 offen{pm}
        buffer_load_ushort v5, v2, s[8:11], s71 offen offset:256{pm}
        """)
        for d, p in ((12, P_AI), (16, P_CR), (20, P_CI), (32, P_DS)): A(f"s_mov_b64 s[{d}:{d+1}], s[{p}:{p+1}]")
        A(f"""
        buffer_load_dword v6, v1, s[12:15], s71 offen{pm}
        buffer_load_ushort v7, v2, s[12:15], s71 offen offset:256{pm}
        buffer_load_dword v8, v1, s[16:19], s71 offen{pm}
        buffer_load_ushort v9, v2, s[16:19], s71 offen offset:256{pm}
        buffer_load_dword v10, v1, s[20:23], s71 offen{pm}
        buffer_load_ushort v11, v2, s[20:23], s71 offen offset:256{pm}
        buffer_load_ushort v17, v3, s[32:35], s72 offen
        """)
    kwait(A)
    params()
    for q in range(3, 6): band(q)
    A(f"""
    s_add_u32 s79, s76, {TB}
    v_mul_u32_u24 v14, 208, v0
    v_add_u32 v{VKW}, s79, v14
    v_bfe_u32 v14, v0, 3, 1                 ; q>>1
    v_lshrrev_b32 v15, 5, v0                ; h
    v_lshlrev_b32 v14, 3, v14
    v_lshl_add_u32 v14, v15, 1, v14
    v_mul_u32_u24 v14, 208, v14
    v_add_u32 v14, s79, v14
    v_bfe_u32 v15, v0, 2, 1                 ; comp
    v_and_b32 v43, 3, v0
    v_bfe_u32 v44, v0, 4, 1
    v_lshl_add_u32 v{VKL}, v15, 6, v14
    v_lshl_add_u32 v{VKL}, v44, 5, v{VKL}
    v_lshl_add_u32 v{VKL}, v43, 3, v{VKL}
    v_lshlrev_b32 v46, 5, v15
    v_lshl_add_u32 v46, v43, 3, v46
    v_add_u32 v46, 128, v46
    v_lshlrev_b32 v15, 3, v15
    v_add_u32 v15, 192, v15
    v_cmp_eq_u32 vcc, 1, v44
    v_cndmask_b32 v46, v46, v15, vcc
    v_add_u32 v{VKH}, v14, v46
    ; conv addresses
    v_and_b32 v43, 1, v0
    v_mul_u32_u24 v43, {C1_}, v43
    v_add_u32 v43, v43, v41
    v_lshlrev_b32 v44, 1, v45
    v_sub_u32 v43, v43, v44
    v_add_u32 v{VF0}, s78, v43
    v_add_u32 v{VF1}, 1024, v{VF0}
    v_mul_u32_u24 v43, 272, v45
    v_add3_u32 v{VG}, v43, v41, s76
    v_lshl_add_u32 v43, v45, 4, v41         ; 16k + 8g
    v_add_u32 v44, 624, v43
    v_lshrrev_b32 v46, 7, v44
    v_lshlrev_b32 v46, 4, v46
    v_lshl_add_u32 v44, v44, 1, v46
    v_add_u32 v{VWA}, s76, v44
    v_add_u32 v44, 616, v43
    v_lshrrev_b32 v46, 7, v44
    v_lshlrev_b32 v46, 4, v46
    v_lshl_add_u32 v44, v44, 1, v46
    v_add_u32 v{VWB}, s76, v44
    s_add_u32 s79, s76, {MB}
    v_mul_u32_u24 v43, 528, v45
    v_lshl_add_u32 v43, v40, 4, v43
    v_add_u32 v{VMW}, s79, v43
    v_lshrrev_b32 v43, 3, v45
    v_add_u32 v43, v43, v40
    v_lshlrev_b32 v43, 4, v43
    v_lshl_add_u32 v43, v45, 6, v43
    v_add_u32 v{VMR}, s79, v43
    v_and_b32 v41, 1, v40                   ; g&1
    v_lshrrev_b32 v42, 1, v40               ; g>>1
    v_lshlrev_b32 v{VOUT}, 5, v45
    v_lshl_add_u32 v{VOUT}, v41, 9, v{VOUT}
    v_lshl_add_u32 v{VOUT}, v42, 4, v{VOUT}
    s_bitcmp1_b32 s{S_WAVE}, 0
    s_mov_b32 s80, {LS[0] & 0xffffffff}
    s_mov_b32 s81, {LS[0] >> 32}
    s_cmov_b32 s80, {LS[1] & 0xffffffff}
    s_cmov_b32 s81, {LS[1] >> 32}
    s_mov_b32 s82, {LQ[0]}
    s_cmov_b32 s82, {LQ[1]}
    v_lshlrev_b32 v43, 2, v45
    v_lshrrev_b64 v[46:47], v43, s[80:81]
    v_and_b32 v46, 7, v46                   ; slot
    v_lshlrev_b32 v43, 1, v45
    v_lshrrev_b32 v43, v43, s82
    v_and_b32 v43, 3, v43                   ; q
    s_lshr_b32 s79, s{S_WAVE}, 1            ; half
    s_lshr_b32 s80, s{sq}, 4
    s_add_u32 s80, s80, 10
    s_sub_u32 s80, s80, s79
    v_lshlrev_b32 v44, 1, v46
    v_sub_u32 v44, s80, v44
    v_subrev_u32 v47, 10, v44
    v_min_u32 v44, v44, v47
    v_lshrrev_b32 v44, 1, v44
    v_mad_u32_u24 v44, v43, 6, v44
    v_mad_u32_u24 v44, v46, 24, v44
    s_mul_i32 s79, s79, {120*128}
    s_add_u32 s79, s79, {F_T}
    v_lshl_add_u32 v44, v44, 7, s79
    s_mul_i32 s79, s{S_WAVE}, {24*128}
    s_add_u32 s79, s79, {F_WD - 16*128}
    v_min_u32 v252, 39, v0
    v_lshl_add_u32 v252, v252, 7, s79
    v_cmp_gt_u32 vcc, 16, v0
    v_cndmask_b32 v252, v252, v44, vcc
    v_lshlrev_b32 v255, 7, v0
    v_lshrrev_b32 v43, 2, v0
    v_mul_u32_u24 v253, {UT_CH}, v43
    v_and_b32 v44, 3, v0
    v_lshl_add_u32 v253, v44, 4, v253
    v_mul_u32_u24 v240, 20480, v44
    v_lshl_add_u32 v240, v43, 4, v240
    s_mul_i32 s79, s{S_WAVE}, 1088
    s_add_u32 s79, s79, 1360
    v_add_u32 v240, s79, v240
    v_mov_b32 v254, 0
    """)
    for q in range(64): A(f"v_mov_b32 v{FA+q}, 0")
    srd(A, 24, P_WS, 0, FL_BYTES)
    for q in range(16): A(f"v_mov_b32 v{KA+q}, 0")
    A("s_waitcnt vmcnt(0) lgkmcnt(0)")
    tsn(A, 'q')
    Z, C = 20, 26
    A(f"""
    v_lshlrev_b32 v16, 16, v16
    v_mul_f32 v16, {fbits(LOG2E)}, v16
    v_exp_f32 v16, v16
    v_lshlrev_b32 v{Z}, 16, v4
    v_and_b32 v{Z+2}, 0xffff0000, v4
    v_lshlrev_b32 v{Z+4}, 16, v5
    v_cvt_pk_bf16_f32 v16, v16, v16
    v_lshlrev_b32 v16, 16, v16              ; dt
    """)
    for t in range(3): A(f"v_mul_f32 v{Z+2*t}, {fbits(LOG2E)}, v{Z+2*t}")
    for t in range(3): A(f"v_exp_f32 v{Z+2*t}, v{Z+2*t}")
    A(f"""
    v_lshlrev_b32 v{Z+1}, 16, v6
    v_and_b32 v{Z+3}, 0xffff0000, v6
    v_lshlrev_b32 v{Z+5}, 16, v7
    v_cvt_pk_bf16_f32 v4, v{Z}, v{Z+2}
    v_cvt_pk_bf16_f32 v5, v{Z+4}, v{Z+4}
    v_lshlrev_b32 v{Z}, 16, v4
    v_and_b32 v{Z+2}, 0xffff0000, v4
    v_lshlrev_b32 v{Z+4}, 16, v5
    v_lshlrev_b32 v{C}, 16, v8
    v_and_b32 v{C+2}, 0xffff0000, v8
    v_lshlrev_b32 v{C+4}, 16, v9
    v_lshlrev_b32 v{C+1}, 16, v10
    v_and_b32 v{C+3}, 0xffff0000, v10
    v_lshlrev_b32 v{C+5}, 16, v11
    v_add_f32 v18, v16, v16                 ; 2 dt
    v_lshlrev_b32 v242, 16, v17             ; D skip (persist)
    """)
    for q in range(6): A(f"v_mul_f32 v{Z+q}, v16, v{Z+q}")
    for q in range(6): A(f"v_mul_f32 v{C+q}, v18, v{C+q}")
    for t in range(3):
        A(f"v_mul_f32 v{Z+2*t}, {fbits(-LOG2E)}, v{Z+2*t}\nv_mul_f32 v{Z+2*t+1}, {fbits(0.15915494309189535)}, v{Z+2*t+1}")
    E1, E256, E2, E4, E8 = 32, 34, 36, 38, 40
    def exps():
        return [
            f"v_exp_f32 v4, v{Z}", f"v_fract_f32 v5, v{Z+1}", f"v_mul_f32 v6, 0x43800000, v{Z}", f"v_mul_f32 v7, 0x43800000, v{Z+1}",
            f"v_cos_f32 v8, v5", f"v_sin_f32 v9, v5", f"v_fract_f32 v7, v7", f"v_exp_f32 v6, v6", f"v_cos_f32 v10, v7", f"v_sin_f32 v11, v7",
            f"v_mul_f32 v{E1}, v4, v8", f"v_mul_f32 v{E1+1}, v4, v9", f"v_mul_f32 v{E256}, v6, v10", f"v_mul_f32 v{E256+1}, v6, v11"]
    for o in exps(): A(o)
    mk_tag(A)
    tsn(A, 'p')
    if "kgen" in CFG["skip"]: A("s_branch L_done")
    srd(A, 4, P_WS, WS_UT, UT_BYTES)
    srd(A, 32, P_WS, WS_AT, AT_BYTES)
    srd(A, 8, P_WS, WS_WD, WD_BYTES)
    A(f"""
    s_mul_i32 s72, s{S_WAVE}, {64*UT_CH}
    s_lshl_b32 s73, s{sq}, 6
    s_add_u32 s72, s72, s73
    """)
    if CFG["prio"]: A(f"s_setprio {CFG['kprio']}")
    A("v_mov_b32 v19, 0\ns_mov_b32 s77, 3")
    def utload():
        for j in range(4):
            A(f"buffer_load_dwordx4 {v(160+4*j,4)}, v253, s[4:7], s72 offen{SC}")
            if j < 3: A(f"s_add_u32 s72, s72, {16*UT_CH}")
    top = A.label("kgen")
    A(f"{top}:")
    tsn(A, 'a')
    cm = lambda r, x, y, t, conj_out=False: cmul(r, x, y, t, conj_out, PK)
    def pair(dre, dim, x, y):
        xr, xi = (f"v{x}", f"v{x+1}") if x is not None else ("1.0", "0")
        return [f"v_cvt_pk_bf16_f32 v{dre}, {xr}, v{y}", f"v_cvt_pk_bf16_f32 v{dim}, {xi}, v{y+1}"]
    wr = lambda r, off: [f"ds_write_b128 v{VKW}, {v(r,4)} offset:{off}"]
    pre = cm(E2, E1, E1, 42) + cm(E4, E2, E2, 42) + cm(E8, E4, E4, 42, True)
    LA, LB, LT, SL = 128, 130, 132, 200
    lo = pair(SL, SL+4, None, E8)
    for i in range(2, 32, 2):
        b = SL + 8*((i//8) & 1); o = (i % 8)//2
        lo += cm(LA, LB if i > 2 else E8, E8, LT) + cm(LB, LA, E8, LT) + pair(b+o, b+4+o, LA, LB)
        if o == 3: lo += wr(b, 16*(i//8)) + wr(b+4, 64 + 16*(i//8))
    HA, HB_, HT, GA, GB, GT, S1, S3 = 134, 136, 138, 140, 142, 144, 146, 154
    hi = cm(HA, C, E1, HT) + pair(S1, S1+4, C, HA)
    for o in range(1, 4): hi += cm(HB_, HA, E1, HT) + cm(HA, HB_, E1, HT) + pair(S1+o, S1+4+o, HB_, HA)
    hi += wr(S1, 128) + wr(S1+4, 160)
    hi += cm(GA, C, E256, GT) + cm(HA, GA, E2, HT) + pair(S3, S3+2, GA, HA)
    hi += cm(HB_, HA, E2, HT) + cm(HA, HB_, E2, HT) + pair(S3+1, S3+3, HB_, HA) + wr(S3, 192)
    hi += cm(GB, GA, E256, GT) + cm(HA, GB, E4, HT) + pair(S1, S1+4, GB, HA)
    hi += cm(GA, GB, E256, GT) + cm(HA, GA, E4, HT) + pair(S1+2, S1+6, GA, HA)
    hi += cm(GB, GA, E256, GT) + cm(GA, GB, E256, GT) + pair(S1+1, S1+5, GB, GA)
    hi += cm(GB, GA, E256, GT) + cm(GA, GB, E256, GT) + pair(S1+3, S1+7, GB, GA)
    hi += wr(S1, 144) + wr(S1+4, 176)
    hi += [f"v_fma_f32 v19, v{GA}, v{E256}, v19", f"v_fma_f32 v19, -v{GA+1}, v{E256+1}, v19"]
    hi0 = hi[:CFG["hi0"]]
    st = interleave(pre, hi0) + interleave(lo, hi[len(hi0):])
    if "kw" in CFG["skip"]: st = [o for o in st if not o.startswith("ds_write")]
    if "kv" in CFG["skip"]: st = [o for o in st if o.startswith("ds_write")]
    DL = CFG["wdelay"]
    out = []; pend = []; gap = 99
    for o in st:
        if o.startswith("ds_write"): pend.append([o, DL])
        else:
            out.append(o); gap += 1
            for x in pend: x[1] -= 1
            if pend and pend[0][1] <= 0 and gap >= CFG["wsp"]: out.append(pend.pop(0)[0]); gap = 0
    out += [x[0] for x in pend]
    kmf = lambda k: f"v_mfma_f32_32x32x16_bf16 {v(KA,16)}, {v(FA+4*k,4)}, {v(FB+4*k,4)}, {v(KA,16)}"
    nw = 0; k = 0
    for n, o in enumerate(out):
        if k < 8 and n >= CFG["kmf0"] + 14*k:
            A((f"s_waitcnt lgkmcnt({min(15, nw)})\n" if k == 0 else "") + kmf(k)); k += 1
        if n == int(len(out)*CFG["fpos"]) and "poll" not in CFG["skip"]:
            nf = A.label("nf")
            A(f"s_cmp_lg_u32 s77, 1\ns_cbranch_scc1 {nf}\nbuffer_load_dword v196, v252, s[24:27], 0 offen{SC}\n{nf}:")
        A(o)
        if o.startswith("ds_write"): nw += 1
    tsn(A, 'b')
    for q in range(4): A(f"v_mov_b32 v{Z+q}, v{Z+2+q}\nv_mov_b32 v{C+q}, v{C+2+q}")
    ex = exps()
    for k in range(8):
        for t in range(2):
            off = (16*(k >> 1) + 4*(k & 1) + t)*208
            A(f"ds_read_b64_tr_b16 {v(FA+4*k+2*t,2)}, v{VKH} offset:{off}\nds_read_b64_tr_b16 {v(FB+4*k+2*t,2)}, v{VKL} offset:{off}")
            for o in ex[2*k+t:2*k+t+1]: A(o)
    tsn(A, 'd')
    for nm, val in (('1', 3), ('2', 2), ('3', 1)):
        if nm in CFG['marks'] and CFG['dbg']:
            lb = A.label("cm"); A(f"s_cmp_lg_u32 s77, {val}\ns_cbranch_scc1 {lb}"); tsn(A, nm); A(f"{lb}:")
    A(f"s_sub_u32 s77, s77, 1\ns_cmp_lg_u32 s77, 0\ns_cbranch_scc1 {top}")
    if "poll" in CFG["skip"]: A("s_branch L_done")
    A("s_waitcnt vmcnt(0)")
    poll(A, 24, 196, 252, 73, preissued=True, slp=CFG["slpU"])
    utload()
    tsn(A, 'f')
    side = f"""
    v_add_f32_dpp v19, v19, v19 row_ror:8 row_mask:0xf bank_mask:0xf
    v_lshlrev_b32 v4, 4, v0
    v_add_u32 v5, s78, v4
    v_add_f32_dpp v19, v19, v19 row_ror:4 row_mask:0xf bank_mask:0xf
    v_add_u32 v4, s76, v4
    v_mov_b32 v8, 0
    v_add_f32_dpp v19, v19, v19 row_ror:2 row_mask:0xf bank_mask:0xf
    v_mov_b32 v9, 0
    v_mov_b32 v10, 0
    v_add_f32_dpp v19, v19, v19 row_ror:1 row_mask:0xf bank_mask:0xf
    v_mov_b32 v11, 0
    ds_write_b128 v5, v[8:11]
    v_add_f32_dpp v19, v19, v19 row_bcast:15 row_mask:0xa bank_mask:0xf
    ds_write_b128 v5, v[8:11] offset:1024
    v_add_f32_dpp v19, v19, v19 row_bcast:31 row_mask:0xc bank_mask:0xf
    ds_write_b128 v5, v[8:11] offset:2048
    ds_write_b128 v5, v[8:11] offset:3072
    ds_write_b128 v4, v[8:11]
    s_mov_b64 exec, 0x1fffff
    ds_write_b128 v4, v[8:11] offset:1024
    s_mov_b64 exec, -1
    v_readlane_b32 s75, v19, 63
    v_and_b32 v4, 31, v0                    ; i
    v_lshrrev_b32 v5, 5, v0                 ; h
    v_lshlrev_b32 v6, 4, v4
    v_sub_u32 v6, s78, v6                   ; base - 16 i   (seg1)
    v_lshlrev_b32 v7, 3, v5
    v_sub_u32 v7, v6, v7                    ; seg0
    v_add_u32 v12, {CS + 1084}, v7
    v_add_u32 v13, {C1_ + 566}, v6
    v_and_b32 v14, 30, v0                   ; 2 i2
    v_sub_u32 v14, s78, v14
    v_lshlrev_b32 v15, 5, v5
    v_sub_u32 v14, v14, v15                 ; base - 32h - 2 i2
    v_sub_u32 v15, v14, v15                 ; base - 64h - 2 i2
    v_and_b32 v18, 1, v0
    v_cmp_eq_u32 vcc, 1, v18
    v_mov_b32 v18, 1474
    v_mov_b32 v19, 1184
    v_mov_b32 v20, {1794 - 32}
    v_mov_b32 v24, 1280
    v_mov_b32 v25, 1376
    v_mov_b32 v26, {1632 - 32}
    v_cndmask_b32 v18, v18, v24, vcc
    v_cndmask_b32 v19, v19, v25, vcc
    v_cndmask_b32 v20, v20, v26, vcc
    v_add_u32 v18, v14, v18                 ; VA
    v_add_u32 v19, v14, v19                 ; VB
    v_add_u32 v20, v15, v20                 ; VC7
    v_add_u32 v21, 32, v20                  ; VC6
    s_add_u32 s72, s78, 1410
    s_add_u32 s73, s78, 1824
    v_mov_b32 v24, s72
    v_mov_b32 v25, s73
    v_cmp_eq_u32 vcc, 0, v0
    v_cndmask_b32 v18, v18, v24, vcc
    v_cndmask_b32 v21, v21, v25, vcc
    v_cndmask_b32 v22, v254, v242, vcc      ; skip term on lag 0
    v_cvt_pk_bf16_f32 v27, s75, s75
    """.strip().split("\n")
    side = [x.strip() for x in side]
    nw = 0; per = -(-len(side) // 8)
    for k in range(8):
        A(f"s_waitcnt lgkmcnt({min(15, 28 - 4*k + nw)})\n" + kmf(k))
        for o in side[per*k:per*(k+1)]:
            A(o)
            if o.startswith("ds_write"): nw += 1
    if CFG["prio"]: A(f"s_setprio {CFG['cprio']}")
    tsn(A, 'k')
    if "conv" in CFG["skip"]: A("s_branch L_done")
    A(f"s_mul_i32 s78, s70, {AT_ROW}")
    a0, a1, a2, a3 = KA, KA+1, KA+2, KA+3
    b0, b1, b2, b3 = KA+8, KA+9, KA+10, KA+11
    A(f"""
    v_cmp_eq_u32 vcc, 0, v0
    v_add_f32 v{a0}, v{a0}, v22
    v_cndmask_b32 v24, v{KA+4}, v{KA+6}, vcc
    v_cvt_pk_bf16_f32 v64, v{b3}, v{b2}
    v_cvt_pk_bf16_f32 v65, v{b2}, v{b2}
    v_cvt_pk_bf16_f32 v66, v{b1}, v{b0}
    v_cvt_pk_bf16_f32 v67, v{b0}, v{b0}
    v_cvt_pk_bf16_f32 v68, v{b2}, v{b1}
    v_cvt_pk_bf16_f32 v69, v{KA+4}, v{KA+4}
    v_cvt_pk_bf16_f32 v70, v24, v{KA+5}
    v_cvt_pk_bf16_f32 v71, v{KA+6}, v{KA+7}
    v_cvt_pk_bf16_f32 v72, v{a3}, v{a2}
    v_cvt_pk_bf16_f32 v73, v{a1}, v{a0}
    v_cvt_pk_bf16_f32 v74, v{a2}, v{a1}
    s_mov_b32 exec_hi, 0
    ds_write2_b32 v6, v64, v65 offset0:141 offset1:142
    ds_write2_b32 v6, v66, v67 offset0:143 offset1:144
    ds_write_b16 v6, v64 offset:{C1_ + 564}
    ds_write2_b32 v13, v65, v68 offset0:0 offset1:1
    ds_write_b32 v6, v67 offset:{C1_ + 574}
    ds_write_b16 v6, v67 offset:{C1_ + 578}
    s_mov_b32 exec_lo, 1
    ds_write2_b32 v6, v69, v69 offset0:15 offset1:16
    ds_write_b16 v6, v69 offset:{C1_ + 60}
    ds_write_b32 v6, v69 offset:{C1_ + 62}
    ds_write_b16 v6, v69 offset:{C1_ + 66}
    s_mov_b32 exec_lo, 0
    s_mov_b32 exec_hi, 1
    ds_write_b16 v6, v27 offset:1666
    ds_write_b16 v6, v27 offset:{1666 + C1_}
    s_mov_b64 exec, -1
    ds_write_b16 v7, v72 offset:1082
    ds_write_b32 v7, v74 offset:1084
    ds_write_b16_d16_hi v7, v73 offset:1088
    ds_write2_b32 v12, v72, v73 offset0:0 offset1:1
    """)
    for c in (0, C1_):
        A(f"ds_write_b16 v18, v70 offset:{c}\nds_write_b16_d16_hi v19, v70 offset:{c}\nds_write_b16 v21, v71 offset:{c}\nds_write_b16_d16_hi v20, v71 offset:{c}")
    tsn(A, 'c')
    ACC, GR, FR, WIN, F2, FX = 16, 48, 130, 142, 190, 120
    XA, XB, XU, XF = 48, 72, 96, 112
    lds = []
    def lop(txt, tag=None):
        A(txt); lds.append(tag)
    def lwait(*tags):
        pos = max(max(i for i, t in enumerate(lds) if t == tg) for tg in tags)
        A(f"s_waitcnt lgkmcnt({min(15, len(lds) - 1 - pos)})")
    def fread(dst, Y, h, tag):
        off = 2*Y - 32*h; va = VF0
        if off > 1016: off -= 1024; va = VF1
        lop(f"ds_read2_b32 {v(dst,2)}, v{va} offset0:{off//4} offset1:{off//4+1}", tag)
    def gread(j):
        z = 640 + 16*j
        lop(f"ds_read_b64 {v(GR+2*(j+33),2)}, v{VG} offset:{2*z + 16*(z >> 7)}", ("G", j))
    def aread(s_):
        r = FR + 4*(s_ % 3)
        fread(r, 544, 2*s_+1, ("A", s_)); fread(r+2, 544, 2*s_, ("A", s_))
    aread(0); aread(1)
    for j in range(4):
        if j == 0: A("s_waitcnt vmcnt(0)")
        lop(f"ds_write_b128 v240, {v(160+4*j,4)} offset:{j*272}")
    A(f"s_lshl_b32 s79, s{sq}, 7\ns_add_u32 s0, s79, {F_A}")
    A("s_waitcnt lgkmcnt(0)\ns_barrier")
    tsn(A, 'u')
    for j in range(-1, 8): gread(j)
    nTS = -(-(240 - 48*CFG["nTA"]) // 80) if CFG["nTS"] is None else CFG["nTS"]
    TD = [214, 215, 15]
    extra = []
    for d in (2, 3, 4):
        r = F2 + 8*(d-2)
        extra += [("F", r, 624, d, "F2"), ("F", r+2, 720, d, "F2"), ("F", r+4, 672, d, "F2"), ("F", r+6, 768, d, "F2")]
    for kt in range(6):
        extra += [("W", WIN+8*kt, VWA, kt), ("W", WIN+8*kt+4, VWB, kt)]
    m16 = lambda d, a, b, c: f"v_mfma_f32_16x16x32_bf16 {v(d,4)}, {v(a,4)}, {v(b,4)}, {c}"
    def warm():
        for k in range(nTS): touch(A, k, TD[k], 255, False)
    for s_ in range(17):
        side = []
        if s_ + 2 <= 16: side.append(lambda s_=s_: aread(s_+2))
        if s_ + 1 <= 16: side += [lambda j=-2*s_-2: gread(j), lambda j=-2*s_-3: gread(j)]
        if s_ >= 3:
            for _ in range(2):
                if extra:
                    x = extra.pop(0)
                    if x[0] == "F": side.append(lambda x=x: fread(x[1], x[2], x[3], x[4]))
                    else: side.append(lambda x=x: lop(f"ds_read_b128 {v(x[1],4)}, v{x[2]} offset:{544*x[3]}", ("W", x[3])))
        for n, T in enumerate(range(8) if s_ == 0 else range(7, -1, -1)):
            j = T - 2*s_ - 1
            if s_ == 0: lwait(("A", 0), ("G", j+1))
            elif n == 0: lwait(("A", s_))
            elif T == 1: lwait(("G", -2*s_))
            elif T == 0: lwait(("G", -2*s_-1))
            A(m16(ACC+4*T, FR+4*(s_%3), GR+2*(j+33), v(ACC+4*T,4) if s_ else 0))
            if n >= 1 and side: side.pop(0)()
        assert not side
        if s_ == CFG["warmat"]: warm()
    assert not extra
    tsn(A, 'g')
    gen = []
    for kt in range(6):
        wa, wb = WIN+8*kt, WIN+8*kt+4
        gen += [(XA+4*kt, wa, 0, kt), (XA+4*kt+2, wa, 1, kt), (XB+4*kt, wa, 2, kt), (XB+4*kt+2, wb, 2, kt)]
        if kt < 4: gen += [(XU+4*kt, wa, 3, kt), (XU+4*kt+2, wb, 4, kt), (XF+2*kt, wa, 5, kt)]
    TMP = [FR, FR+4, FR+8, 124]
    side = [lambda T=T: lop(f"ds_write_b128 v{VMW}, {v(ACC+4*T,4)} offset:{64*T}") for T in range(7, -1, -1)]
    side += [lambda T=T: lop(f"ds_read_b128 {v(ACC+4*T,4)}, v{VMR} offset:{1056*T}", ("C", T)) for T in range(8)]
    side += [lambda: fread(FX, 976, 4, "FX")]
    F3 = WIN
    for d in (4, 5, 6, 7):
        side += [lambda d=d: fread(F3+4*(d-4), 880, d, ("F3", d)), lambda d=d: fread(F3+4*(d-4)+2, 960, d, ("F3", d))]
    LAG = 3
    def cv(q):
        t = TMP[q % 4]; dst = gen[q][0]
        A(f"v_cvt_pk_bf16_f32 v{dst}, v{t}, v{t+1}\nv_cvt_pk_bf16_f32 v{dst+1}, v{t+2}, v{t+3}")
    lwait(("W", 5))
    for q, (dst, w, b, kt) in enumerate(gen):
        A(m16(TMP[q % 4], w, WM+4*b, 0))
        if q >= LAG: cv(q - LAG)
        if q >= 2 and side and (q % 4 != 3 or len(side) > 34 - q): side.pop(0)()
    A(f"v_mov_b32 v{FX+2}, 0\nv_mov_b32 v{FX+3}, 0")
    for q in range(len(gen) - LAG, len(gen)): cv(q)
    assert not side
    main = []
    for T in range(2, 8):
        for d in (2, 3, 4):
            if T - d >= 0: main += [(T, XA+4*(T-d), F2+8*(d-2), None), (T, XB+4*(T-d), F2+8*(d-2)+4, None)]
        for d in (4, 5, 6, 7):
            if T - d >= 0: main.append((T, XU+4*(T-d), F3+4*(d-4), ("F3", d)))
        if T >= 4: main.append((T, XF+2*(T-4), FX, "FX"))
    def fin(p):
        o = WM + 4*p
        r = []
        for T in (2*p, 2*p+1):
            for h in range(2): r.append(f"v_cvt_pk_bf16_f32 v{o+2*(T&1)+h}, v{ACC+4*T+2*h}, v{ACC+4*T+2*h+1}")
        r += [f"v_permlane16_swap_b32 v{o}, v{o+2}", f"v_permlane16_swap_b32 v{o+1}, v{o+3}",
              f"buffer_store_dwordx4 {v(o,4)}, v{VOUT}, s[32:35], s78 offen offset:{1024*p}{SC}"]
        return r
    seen = set(); pend = []; hold = 0
    for q, (T, a, b, tag) in enumerate(main):
        tags = []
        if ("C", T) not in seen: tags.append(("C", T)); seen.add(("C", T))
        if tag and tag not in seen: tags.append(tag); seen.add(tag)
        if tags: lwait(*tags)
        if q == 0: pend += fin(0)
        if q and main[q-1][0] != T and T in (4, 6): pend += fin(T//2 - 1); hold = 4
        A(m16(ACC+4*T, a, b, v(ACC+4*T,4)))
        if hold: hold -= 1
        elif pend: A(pend.pop(0))
    for o in pend: A(o)
    for o in fin(3): A(o)
    tsn(A, 'e')
    if CFG["prio"]: A("s_setprio 0")

def role_g2(A):
    split = CFG["split"]
    st = [sum(split[:i]) for i in range(5)] + [32]
    slot_of = [max(s for s in range(5) if st[s] <= c) for c in range(32)]
    pk0 = [sum(slot_of[2*t] << (4*(t % 8)) for t in range(8*h, 8*h+8)) for h in range(2)]
    pk1 = [sum(slot_of[2*t+1] << (4*(t % 8)) for t in range(8*h, 8*h+8)) for h in range(2)]
    ACC, WR, HB, AT = 16, 96, 196, 244
    KO = 80
    STG, SDT = 68, 69
    VL, VK0, VK1, VF, VT, VAL, VAG, VTOK, VLW, VZ, VG = 1, 2, 3, 4, 5, 6, 7, 8, 9, 10, 14
    srd(A, 4, P_WS, WS_H, H_BYTES)
    srd(A, 8, P_WS, WS_WD, WD_BYTES)
    srd(A, 12, P_WS, WS_AT, AT_BYTES)
    srd(A, 16, P_WS, WS_G, G_BYTES)
    srd(A, 20, P_OUT, 0, X_BYTES)
    A(f"""
    s_lshr_b32 s70, s{S_J}, 3               ; r
    s_lshl_b32 s{STG}, s{S_X}, 2
    s_add_u32 s{STG}, s{STG}, s70           ; tg
    s_and_b32 s{SDT}, s{S_J}, 7             ; dt
    v_mov_b32 v{VZ}, 0
    v_lshlrev_b32 v{VL}, 4, v0
    s_mul_i32 s72, s70, 3
    s_mul_i32 s73, s{SDT}, 3
    s_lshr_b32 s73, s73, 1
    s_add_u32 s72, s72, s73
    s_cmp_ge_u32 s72, 12
    s_cselect_b32 s73, 12, 0
    s_sub_u32 s72, s72, s73                 ; rot
    """)
    for p in range(12):
        A(f"s_lshl_b32 s{KO+p}, s72, 10")
        if p < 11: A("s_add_u32 s72, s72, 1\ns_cmp_ge_u32 s72, 12\ns_cselect_b32 s72, 0, s72")
    A(f"""
    s_mul_i32 s70, s{S_WAVE}, 12288
    s_mul_i32 s71, s{STG}, {4*49152}
    s_add_u32 s71, s71, s70                 ; h base
    s_mul_i32 s72, s{SDT}, {5*49152}
    s_add_u32 s72, s72, s70
    """)
    for i in range(4):
        A(f"s_add_u32 s73, s{S_WAVE}, {1+i}\ns_and_b32 s73, s73, 3\ns_mul_i32 s73, s73, 49152\ns_add_u32 s{74+i}, s71, s73")
    WS_ = [32, 33, 34, 35, 78]
    for m in range(5): A(f"s_add_u32 s{WS_[m]}, s72, {m*49152}")
    A(f"""
    s_mul_i32 s79, s{S_WAVE}, 20480
    v_add_u32 v{VLW}, s79, v{VL}
    v_and_b32 v{VTOK}, 15, v0
    s_lshl_b32 s70, s{STG}, 6
    s_lshl_b32 s71, s{S_WAVE}, 4
    s_add_u32 s70, s70, s71
    v_add_u32 v{VTOK}, s70, v{VTOK}         ; token
    v_lshlrev_b32 v{VG}, 3, v{VTOK}
    """)
    kv = [0]
    def kaddr(p):
        r = (VK0, VK1)[kv[0] & 1]; kv[0] += 1
        A(f"v_add_u32 v{r}, s{KO+p}, v{VL}")
        return r
    def wload(dst, m, va): return f"buffer_load_dwordx4 {v(dst+4*m,4)}, v{va}, s[8:11], s{WS_[m]} offen{SC}"
    def prefetch(nb):
        plan = [(6, ACC), (7, ACC+20), (8, ACC+40), (9, HB), (0, ACC+60)] + [(1+q, WR+20*q) for q in range(5)]
        n = 0; wr = 0
        for (p, dst) in plan:
            va = kaddr(p)
            for m in range(5):
                if n >= nb: A(f"s_waitcnt vmcnt({nb-1})")
                if n == nb:
                    np_ = A.label("nopub")
                    A(f"s_barrier\ns_cmp_eq_u32 s0, 0\ns_cbranch_scc1 {np_}")
                    publish(A, 24, 0, VT, VZ)
                    A(f"{np_}:")
                while wr < 20 and wr <= n - nb:
                    q, mm = divmod(wr, 5)
                    A(f"ds_write_b128 v{VLW}, {v(plan[q][1]+4*mm,4)} offset:{wr*1024}"); wr += 1
                A(wload(dst, m, va)); n += 1
        assert wr == 20
    slow, jn = A.label("g2slow"), A.label("g2pj")
    A(f"s_cmp_lt_u32 s{S_J}, 12\ns_cbranch_scc1 {slow}")
    prefetch(CFG["nbB"])
    A(f"s_branch {jn}\n{slow}:")
    prefetch(CFG["nbA"])
    A(f"""{jn}:
    s_and_b32 s70, s{STG}, 7
    s_lshl_b32 s70, s70, 2
    s_bitcmp1_b32 s{STG}, 3
    s_mov_b32 s71, {pk0[0]}
    s_cmov_b32 s71, {pk0[1]}
    s_mov_b32 s72, {pk1[0]}
    s_cmov_b32 s72, {pk1[1]}
    s_lshr_b32 s71, s71, s70
    s_lshr_b32 s72, s72, s70
    s_and_b32 s71, s71, 15
    s_and_b32 s72, s72, 15
    s_lshr_b32 s70, s{STG}, 4
    s_mul_i32 s70, s70, 5
    s_add_u32 s71, s71, s70
    s_add_u32 s72, s72, s70
    s_mul_i32 s71, s71, {24*128}
    s_mul_i32 s72, s72, {24*128}
    v_mov_b32 v11, s71
    v_mov_b32 v12, s72
    v_cmp_gt_u32 vcc, 32, v0
    v_cndmask_b32 v11, v12, v11, vcc
    v_and_b32 v12, 31, v0
    v_min_u32 v12, 23, v12
    v_lshl_add_u32 v{VF}, v12, 7, v11
    v_add_u32 v{VF}, {F_H}, v{VF}
    v_lshrrev_b32 v11, 3, v0
    v_and_b32 v12, 7, v0
    v_mul_u32_u24 v{VAL}, 160, v11
    v_lshl_add_u32 v{VAL}, v12, 4, v{VAL}
    s_add_u32 s70, s79, 15360
    v_add_u32 v{VAL}, s70, v{VAL}
    s_lshl_b32 s70, s{S_WAVE}, 3
    v_add_u32 v11, s70, v11
    v_mul_u32_u24 v{VAG}, {AT_ROW}, v11
    v_lshl_add_u32 v{VAG}, v12, 4, v{VAG}
    v_min_u32 v13, 19, v0
    s_mul_i32 s70, s{SDT}, {20*128}
    s_add_u32 s70, s70, {F_A}
    v_lshl_add_u32 v13, v13, 7, s70         ; a flags
    s_lshr_b32 s70, s{STG}, 1
    s_lshl_b32 s70, s70, 7
    s_add_u32 s70, s70, {F_G}
    v_mov_b32 v12, s70
    v_cmp_gt_u32 vcc, 20, v0
    v_cndmask_b32 v13, v12, v13, vcc
    s_mul_i32 s70, s{SDT}, {80*AT_ROW}
    s_lshl_b32 s71, s{STG}, 7
    s_add_u32 s70, s70, s71
    s_add_u32 s71, s70, {32*AT_ROW}
    s_add_u32 s72, s70, {64*AT_ROW}
    s_cmp_ge_u32 s{S_WAVE}, 2
    s_cselect_b32 s72, 0x8000000, s72
    s_waitcnt vmcnt(0) lgkmcnt(0)
    """)
    tsn(A, 'P')
    nw = A.label("g2nw")
    A(f"s_cmp_lg_u32 s{S_WAVE}, 0\ns_cbranch_scc1 {nw}")
    A(f"buffer_load_dword v12, v13, s[24:27], 0 offen{SC}")
    poll(A, 24, VT, VF, 73, slp=CFG['slpH'])
    poll(A, 24, 12, 13, 73, slp=CFG['slpH'], preissued=True)
    A(f"{nw}:\ns_barrier")
    tsn(A, 'H')
    vm = []
    def vmw(tag):
        pos = max(i for i, t in enumerate(vm) if t == tag)
        return len(vm) - 1 - pos
    def hloads(p):
        va = kaddr(p)
        return [(f"buffer_load_dwordx4 {v(HB+16*(p%3)+4*i,4)}, v{va}, s[4:7], s{74+i} offen{SC}", ("h", p)) for i in range(4)]
    def iss(x):
        A(x[0]); vm.append(x[1])
    for p in range(3):
        for x in hloads(p): iss(x)
    iss((f"buffer_load_dwordx2 v[{VG}:{VG+1}], v{VG}, s[16:19], 0 offen{SC}", "g"))
    for r in range(3):
        iss((f"buffer_load_dwordx4 {v(AT+4*r,4)}, v{VAG}, s[12:15], s{70+r} offen{SC}", "at"))
    aslot = {0: ACC+60, 1: WR, 2: WR+20, 3: WR+40, 4: WR+60, 5: WR+80, 6: WR+40, 7: WR+60, 8: WR+80, 9: WR+40, 10: WR, 11: WR+20}
    def mfma(p, i, m):
        acc = v(ACC + (i*5+m)*4, 4)
        return f"v_mfma_f32_16x16x32_bf16 {acc}, {v(aslot[p]+4*m,4)}, {v(HB+16*(p%3)+4*i,4)}, {acc if p else 0}"
    lds = []
    for p in range(9):
        w = f"s_waitcnt vmcnt({vmw(('h', p))})"
        if p >= 6:
            pos = max(i for i, t in enumerate(lds) if t == p)
            w += f" lgkmcnt({len(lds) - 1 - pos})"
        A(w)
        side = {}
        def add(k, x): side.setdefault(k, []).append(x)
        va = None
        hl = None
        if p in (2, 3):
            q = p + 8
            add(0, ("K", q))
            for m in range(5): add(1 + 3*m, ("WL", q, m))
        if 4 <= p <= 7:
            q = p + 2
            for m in range(5): add(1 + 3*m, ("SR", q, m))
        wva = None
        hq = []
        for i in range(4):
            for m in range(5):
                k = 5*i + m
                A(mfma(p, i, m))
                for x in side.get(k, []):
                    if x[0] == "K": wva = kaddr(x[1])
                    elif x[0] == "WL": iss((wload(aslot[x[1]], x[2], wva), ("w", x[1])))
                    elif x[0] == "SR":
                        A(f"ds_read_b128 {v(aslot[x[1]]+4*x[2],4)}, v{VLW} offset:{((x[1]-6)*5+x[2])*1024}"); lds.append(x[1])
                if k == 3:
                    A(f"v_add_u32 v{VF}, s{KO+p+3}, v{VL}")
                if m == 4:
                    iss((f"buffer_load_dwordx4 {v(HB+16*(p%3)+4*i,4)}, v{VF}, s[4:7], s{74+i} offen{SC}", ("h", p+3)))
    pend = []
    A("s_waitcnt lgkmcnt(0)")
    for i in range(4):
        for p in (9, 10, 11):
            if i == 0:
                n = vmw(("h", p))
                if p >= 10: n = min(n, vmw(("w", p)))
                A(f"s_waitcnt vmcnt({n})")
            for m in range(5):
                A(mfma(p, i, m))
                k = 5*(p-9) + m
                if pend and k >= 2 and k % 2 == 0: A(pend.pop(0))
        assert not pend, pend
        if i < 3:
            pend = [f"ds_write_b128 v{VLW}, {v(ACC+(i*5+m)*4,4)} offset:{(i*5+m)*1024}" for m in range(5)]
            if i == 0: pend.append(f"ds_write_b128 v{VAL}, {v(AT,4)}")
            if i == 1: pend.append(f"ds_write_b128 v{VAL}, {v(AT+4,4)} offset:1280")
            if i == 2: pend.append(f"ds_write_b128 v{VAL}, {v(AT+8,4)} offset:2560")
    tsn(A, 'M')
    for d in range(1, 4):
        A(f"s_add_u32 s73, s{S_WAVE}, {d}\ns_and_b32 s73, s73, 3\ns_mul_i32 s73, s73, 20480\nv_add_u32 v{1+d}, s73, v{VL}")
    A(f"""
    v_lshrrev_b32 v11, 5, v0                ; g>>1
    v_mul_u32_u24 v11, 20480, v11
    v_bfe_u32 v12, v0, 2, 3                 ; 4(g&1)+r
    v_mul_u32_u24 v12, 160, v12
    v_add_u32 v11, v11, v12
    v_and_b32 v12, 3, v0
    v_lshl_add_u32 v11, v12, 3, v11
    s_lshl_b32 s73, s{S_WAVE}, 5
    s_add_u32 s73, s73, 15360
    v_add_u32 v11, s73, v11
    s_waitcnt lgkmcnt(0)
    s_barrier
    """)
    RD = WR
    for d in range(1, 4):
        for m in range(5):
            A(f"ds_read_b128 {v(RD+((d-1)*5+m)*4,4)}, v{1+d} offset:{((3-d)*5+m)*1024}")
    AF = HB
    for m in range(5):
        A(f"ds_read_b64_tr_b16 {v(AF+2*m,2)}, v11 offset:{(m&1)*40960 + (m>>1)*1280}")
    A(f"""
    v_mul_u32_u24 v5, 1280, v{VTOK}
    v_lshrrev_b32 v6, 4, v0                 ; g
    v_and_b32 v7, 1, v6
    v_lshrrev_b32 v9, 1, v6
    v_lshlrev_b32 v7, 5, v7
    v_lshl_add_u32 v7, v9, 4, v7
    v_add_u32 v7, v5, v7
    v_lshl_add_u32 v6, v6, 3, v5
    s_mul_i32 s73, s{SDT}, 160
    """)
    F = ACC + 60
    for d in range(3):
        A(f"s_waitcnt lgkmcnt({min(15, 15 - 5*d)})")
        for q in range(20): A(f"v_add_f32 v{F+q}, v{F+q}, v{RD+d*20+q}")
    A("s_waitcnt lgkmcnt(0)")
    G, OM = VG, VG+1
    O = HB + 16
    for m in range(5):
        for h in range(2):
            A(f"""
            v_lshlrev_b32 v12, 16, v{AF+2*m+h}
            v_and_b32 v13, 0xffff0000, v{AF+2*m+h}
            v_mul_f32 v{F+4*m+2*h}, v{OM}, v{F+4*m+2*h}
            v_mul_f32 v{F+4*m+2*h+1}, v{OM}, v{F+4*m+2*h+1}
            v_fmac_f32 v{F+4*m+2*h}, v{G}, v12
            v_fmac_f32 v{F+4*m+2*h+1}, v{G}, v13
            v_cvt_pk_bf16_f32 v{O+2*m+h}, v{F+4*m+2*h}, v{F+4*m+2*h+1}
            """)
        if m & 1:
            b = O + 2*(m-1); p = m >> 1
            A(f"v_permlane16_swap_b32 v{b}, v{b+2}\nv_permlane16_swap_b32 v{b+1}, v{b+3}")
            A(f"buffer_store_dwordx4 {v(b,4)}, v7, s[20:23], s73 offen offset:{64*p}{CFG['omod']}")
    A(f"buffer_store_dwordx2 {v(O+8,2)}, v6, s[20:23], s73 offen offset:128{CFG['omod']}")

def body(A):
    prologue(A, 512)
    skip = CFG["skip"]
    A(f"""
    s_cmp_{'lt' if CFG['swap'] else 'ge'}_u32 s2, 256
    s_cbranch_scc1 L_half1
    s_cmp_ge_u32 s{S_J}, 30
    s_cbranch_scc1 L_prepC
    """)
    if "g1" in skip: A("s_waitcnt lgkmcnt(0)\ns_branch L_done")
    role_g1(A)
    A(f"""
    s_branch L_done
    L_prepC:
    s_lshl_b32 s69, s{S_X}, 1
    s_add_u32 s69, s69, s{S_J}
    s_sub_u32 s69, s69, 30
    """)
    if "C" in skip: A("s_waitcnt lgkmcnt(0)\ns_branch L_done")
    role_prep_w(A)
    A(f"""
    s_branch L_done
    L_half1:
    {"s_waitcnt lgkmcnt(0)" if "half1" in skip else ""}
    {"s_branch L_done" if "half1" in skip else ""}
    s_cmp_ge_u32 s{S_J}, 12
    s_cbranch_scc1 L_ssm
    """)
    role_idle(A)
    A(f"""
    s_branch L_g2
    L_ssm:
    s_mul_i32 s68, s{S_X}, 20
    s_add_u32 s68, s68, s{S_J}
    s_sub_u32 s68, s68, 12
    """)
    role_ssm(A)
    A("L_g2:")
    if "g2" in skip: A("s_branch L_done")
    role_g2(A)
    A("L_done:")
    if CFG["dbg"]: ts_end(A)
    if CFG.get("span"):
        A("s_waitcnt vmcnt(0)\ns_memrealtime vcc\ns_waitcnt lgkmcnt(0)")
        srd(A, 4, P_DBG, 0, 256)
        A(f"""
        s_cmp_lg_u32 s{S_WAVE}, 0
        s_cbranch_scc1 L_exit
        v_mov_b32 v1, 0
        v_mov_b32 v2, s{TSR}
        v_mov_b32 v3, vcc_lo
        s_mov_b64 exec, 1
        s_cmp_lt_u32 s2, 6
        s_cbranch_scc0 L_sp1
        s_lshl_b32 s9, s2, 2
        buffer_store_dword v3, v1, s[4:7], s9 offen offset:16
        s_cmp_lg_u32 s2, 0
        s_cbranch_scc1 L_exit
        buffer_store_dword v2, v1, s[4:7], 0 offen
        s_branch L_exit
        L_sp1:
        s_cmp_eq_u32 s2, 256
        s_cbranch_scc0 L_sp2
        buffer_store_dwordx2 v[2:3], v1, s[4:7], 0 offen offset:4
        s_branch L_exit
        L_sp2:
        s_cmp_eq_u32 s2, 487
        s_cbranch_scc0 L_sp3
        buffer_store_dwordx2 v[2:3], v1, s[4:7], 0 offen offset:56
        s_branch L_exit
        L_sp3:
        s_sub_u32 s9, s2, 200
        s_cmp_lt_u32 s9, 4
        s_cbranch_scc0 L_exit
        s_lshl_b32 s9, s9, 2
        buffer_store_dword v3, v1, s[4:7], s9 offen offset:40
        """)
    if CFG.get("pad"):
        A(f"""
        s_cmp_lg_u32 s2, 0
        s_cbranch_scc1 L_exit
        s_mov_b32 s9, 200000
        L_pad:
        s_memrealtime vcc
        s_waitcnt lgkmcnt(0)
        s_sub_u32 s8, vcc_lo, s{TSR}
        s_cmp_ge_u32 s8, {CFG['pad']}
        s_cbranch_scc1 L_exit
        s_sub_u32 s9, s9, 1
        s_cbranch_scc0 L_pad
        """)
    A("L_exit:\ns_endpgm\nL_end:")

def build(verbose=False):
    kname = NAME + "_kernel"
    A = Asm(); A.kname = kname
    A(f".globl {kname}\n.p2align 8\n.type {kname},@function\n{kname}:")
    body(A)
    lines, nn = fix_hazards(A.lines, verbose)
    head = "; @launch grid=(512,1,1) block=(256,1,1) lds=81920\n.amdgcn_target \"amdgcn-amd-amdhsa--gfx950\"\n.text\n"
    desc = f""".section .rodata,"a"
.p2align 6
.amdhsa_kernel {kname}
  .amdhsa_next_free_vgpr 256
  .amdhsa_next_free_sgpr 102
  .amdhsa_accum_offset 256
  .amdhsa_group_segment_fixed_size 0
  .amdhsa_kernarg_size 120
  .amdhsa_user_sgpr_count 2
  .amdhsa_user_sgpr_kernarg_segment_ptr 1
  .amdhsa_system_sgpr_workgroup_id_x 1
.end_amdhsa_kernel
"""
    return head + "\n".join(lines) + "\n" + desc

if __name__ == "__main__":
    out = sys.argv[1] if len(sys.argv) > 1 else "f.s"
    src = build()
    open(out, "w").write(src)
    print("written", out, len(src))
```

```python
import sys, struct
sys.path.insert(0, "work")
from asmlib import *

NAME = "gated_mix__ssm_conv_s4d__geglu_ffn__prompt"
WS_H    = 0x100000
WS_AT   = 0x800000
WS_WD   = 0xC00000
WS_G    = 0xF00000
WS_UT   = 0x1000000
WS_TS   = 0x1400000
AT_ROW = 4224
UT_CH = 10368
H_BYTES, AT_BYTES, WD_BYTES, G_BYTES, UT_BYTES = 2048*1536*2, 640*AT_ROW, 1536*640*2, 2048*8, 256*UT_CH
X_BYTES = 2048*1280
FL_BYTES = 0x1c000
F_EP, F_G, F_WD, F_H, F_A, F_T = 0x0, 0x1000, 0x2000, 0x6000, 0x6000 + 240*128, 0x14000
P_U, P_LA, P_AI, P_CR, P_CI, P_DT, P_DS, P_BX = 36, 38, 40, 42, 44, 46, 48, 50
P_WG, P_WU, P_WD, P_GW, P_OUT, P_DBG, P_WS = 52, 54, 56, 58, 60, 62, 64
S_WAVE, S_J, S_X, S_TAG = 66, 67, 3, 1
LOG2E = 1.4426950408889634
SC = " sc1"
SPIN = 20000
CFG = dict(split=(8, 8, 6, 5, 5), wmod=" nt", wdmod=" nt", rot=(0,2,4,6,8), rotx=1, rotl=7, gostep=10, slp=6, slpH=8, nbU=3, kprio=3, nbA=3, nbB=12,
           umod="", wdelay=2, kmf0=40, warmat=2, nTA=0, nT0=1, waitT=True, tpub=2, slpI=16, marks='kuePHM', swap=True, cwarm=(4,0), nTS=None, dlyW=0, gnb=2, xl=2, fpos=0.6, dlyI=0, dlyC=0, iprio=3, hi0=12, wsp=8, slpU=8, cprio=3, xtouch=True, prio=True, skip=(), dbg=False, pk=False, hsc=SC, psc=SC, omod='', ra=6, kbar=16)
def fbits(x): return "0x%08x" % struct.unpack("<I", struct.pack("<f", x))[0]

def srd(A, dst, ptr, off, nbytes):
    if off:
        A(f"s_add_u32 s{dst}, s{ptr}, {off}\ns_addc_u32 s{dst+1}, s{ptr+1}, 0")
    else:
        A(f"s_mov_b32 s{dst}, s{ptr}\ns_mov_b32 s{dst+1}, s{ptr+1}")
    A(f"s_mov_b32 s{dst+2}, {nbytes}\ns_mov_b32 s{dst+3}, 0x20000")

TSR = 92
def prb(A, n):
    p = CFG.get("probe")
    if p and p[1] == n:
        A(f"s_waitcnt lgkmcnt(0)\ns_memrealtime vcc\ns_waitcnt lgkmcnt(0)\ns_mov_b32 s{TSR+2}, vcc_lo")
def ts(A, i, named=False):
    if not named: prb(A, f"G{i}")
    if CFG["dbg"]:
        A(f"s_waitcnt lgkmcnt(0)\ns_memtime vcc\ns_waitcnt lgkmcnt(0)\ns_mov_b32 s{TSR+2+i}, vcc_lo")
def tsn(A, n):
    prb(A, n)
    if n in CFG['marks']: ts(A, 1 + CFG['marks'].index(n), True)
def kwait(A):
    A(f"s_waitcnt lgkmcnt(0)\ns_load_dword s{S_TAG}, s[{P_WS}:{P_WS+1}], {F_EP}")
    if CFG["dbg"]:
        for i in range(1, 8): A(f"s_mov_b32 s{TSR+2+i}, 0")
def ts_end(A):
    A("s_waitcnt vmcnt(0)")
    ts(A, 7)
    A(f"s_memrealtime vcc\ns_waitcnt lgkmcnt(0)\ns_mov_b32 s{TSR+1}, vcc_lo")
    srd(A, 4, P_WS, WS_TS, 0x100000)
    A(f"s_lshl_b32 s8, s2, 2\ns_add_u32 s8, s8, s{S_WAVE}\ns_lshl_b32 s8, s8, 6\nv_mov_b32 v1, 0")
    for i in range(10): A(f"v_mov_b32 v{2+i}, s{TSR+i}")
    A("s_getreg_b32 s9, hwreg(HW_REG_HW_ID)\ns_getreg_b32 s10, hwreg(HW_REG_XCC_ID)\nv_mov_b32 v12, s9\nv_mov_b32 v13, s10")
    A("s_mov_b64 exec, 1")
    for i in range(3): A(f"buffer_store_dwordx4 {v(2+4*i,4)}, v1, s[4:7], s8 offen offset:{16*i}")

def prologue(A, nwg):
    if CFG["dbg"]: A(f"s_memrealtime s[{TSR}:{TSR+1}]\ns_memtime s[{TSR+2}:{TSR+3}]")
    if CFG.get("span") or CFG.get("pad") or CFG.get("probe"): A(f"s_memrealtime s[{TSR}:{TSR+1}]")
    A(f"""
    s_load_dwordx16 s[36:51], s[0:1], 0
    s_load_dwordx8 s[52:59], s[0:1], 64
    s_load_dwordx4 s[60:63], s[0:1], 96
    s_load_dwordx2 s[64:65], s[0:1], 112
    s_cmp_ge_u32 s2, {nwg}
    s_cbranch_scc1 L_exit
    v_lshrrev_b32 v1, 6, v0
    v_and_b32 v0, 63, v0
    v_readfirstlane_b32 s{S_WAVE}, v1
    s_and_b32 s{S_X}, s2, 7
    s_bfe_u32 s{S_J}, s2, 0x50003
    """)
    if CFG["cwarm"]:
        n, w0 = CFG["cwarm"]
        A(f"""
        s_lshr_b32 s70, s2, 3
        s_lshl_b32 s70, s70, 2
        s_add_u32 s70, s70, s{S_WAVE}
        s_sub_u32 s70, s70, {w0}
        s_cmp_ge_u32 s70, {n}
        s_cbranch_scc1 L_nocw
        s_getpc_b64 s[72:73]
        s_and_b32 s72, s72, 0xffffff00
        s_lshl_b32 s70, s70, 13
        v_lshl_add_u32 v1, v0, 7, s70
        v_min_u32 v1, L_end-{A.kname}-4, v1
        global_load_dword v255, v1, s[72:73]
        L_nocw:
        """)

def spin_tail(A, lab, done, cnt, slp=None):
    slp = CFG["slp"] if slp is None else slp
    if slp: A(f"s_sleep {slp}")
    A(f"s_sub_u32 s{cnt}, s{cnt}, 1\ns_cbranch_scc0 {lab}\n{done}:")

def mk_tag(A):
    A(f"s_mul_i32 s{S_TAG}, s{S_TAG}, 0x9e3779b1\ns_add_u32 s{S_TAG}, s{S_TAG}, 0x7f4a7c15\ns_or_b32 s{S_TAG}, s{S_TAG}, 1")

def poll(A, sfl, vt, va, cnt, preissued=False, slp=None):
    lab, done = A.label("poll"), A.label("pollok")
    A(f"s_mov_b32 s{cnt}, {12000000 // (64*(CFG['slp'] if slp is None else slp) + 600)}")
    if preissued:
        A(f"v_cmp_ne_u32 vcc, s{S_TAG}, v{vt}\ns_cbranch_vccz {done}")
    A(f"""{lab}:
    buffer_load_dword v{vt}, v{va}, s[{sfl}:{sfl+3}], 0 offen{SC}
    s_waitcnt vmcnt(0)
    v_cmp_ne_u32 vcc, s{S_TAG}, v{vt}
    s_cbranch_vccz {done}
    """)
    spin_tail(A, lab, done, cnt, slp)

def publish(A, sfl, soff, vt, vz):
    lab = A.label("pub")
    A(f"""
    s_cmp_lg_u32 s{S_WAVE}, 0
    s_cbranch_scc1 {lab}
    v_mov_b32 v{vt}, s{S_TAG}
    s_mov_b64 exec, 1
    buffer_store_dword v{vt}, v{vz}, s[{sfl}:{sfl+3}], s{soff} offen{SC}
    s_mov_b64 exec, -1
    {lab}:
    """)

IMG = 2688
HALF = "s_mov_b32 exec_lo, 0xffff\ns_mov_b32 exec_hi, 0xffff"
def p8_addr(A):
    A(f"""
    v_mul_u32_u24 v57, 1296, v61
    v_add_u32 v57, v57, v62
    s_mul_i32 s70, s{S_WAVE}, 20480
    v_add_u32 v57, s70, v57
    v_bfe_u32 v58, v0, 3, 1                 ; r>>1
    v_mul_u32_u24 v58, 20480, v58
    v_bfe_u32 v59, v0, 2, 1                 ; r&1
    v_mul_u32_u24 v59, 1296, v59
    v_add_u32 v58, v58, v59
    v_lshrrev_b32 v60, 4, v0                ; g
    v_lshl_add_u32 v58, v60, 5, v58
    v_and_b32 v59, 3, v0
    v_lshl_add_u32 v58, v59, 3, v58
    s_lshl_b32 s70, s{S_WAVE}, 7
    v_add_u32 v58, s70, v58
    v_mul_u32_u24 v60, 49152, v60
    v_and_b32 v59, 15, v0
    v_lshl_add_u32 v60, v59, 4, v60
    v_mov_b32 v61, 0
    """)
def p8_load(A, dst, sr, soff, mod, va=56):
    A(f"buffer_load_dwordx4 {v(dst,4)}, v{va}, s[{sr}:{sr+3}], {soff} offen{mod}")
    A(f"buffer_load_dwordx4 {v(dst+4,4)}, v{va}, s[{sr}:{sr+3}], {soff} offen offset:512{mod}")
    A(HALF)
    A(f"buffer_load_dwordx4 {v(dst+8,4)}, v{va}, s[{sr}:{sr+3}], {soff} offen offset:1024{mod}")
    A("s_mov_b64 exec, -1")
def p8_write(A, src, slot):
    A(f"ds_write_b128 v57, {v(src,4)} offset:{slot*IMG}\nds_write_b128 v57, {v(src+4,4)} offset:{slot*IMG+512}")
    A(HALF)
    A(f"ds_write_b128 v57, {v(src+8,4)} offset:{slot*IMG+1024}\ns_mov_b64 exec, -1")
def p8_out(A, dst, slot, sr, soff, va, step):
    for q in range(3):
        A(f"ds_read_b64_tr_b16 {v(dst+4*q,2)}, v58 offset:{slot*IMG+q*512}\nds_read_b64_tr_b16 {v(dst+4*q+2,2)}, v58 offset:{slot*IMG+q*512+40960}")
    sk = A.label("p8s")
    for q in range(3):
        if q == 2: A(f"s_cmp_ge_u32 s{S_WAVE}, 2\ns_cbranch_scc1 {sk}")
        A(f"s_waitcnt lgkmcnt({4-2*q})")
        if "pstore" not in CFG["skip"]: A(f"buffer_store_dwordx4 {v(dst+4*q,4)}, v{va}, s[{sr}:{sr+3}], s{soff} offen{CFG['psc']}")
        if q < 2: A(f"s_add_u32 s{soff}, s{soff}, {step}")
    A(f"{sk}:\ns_waitcnt lgkmcnt(0)")
def gate_dot(A, X, W):
    A("v_mov_b32 v52, 0")
    for j in range(12): A(f"v_dot2_f32_bf16 v52, v{X+j}, v{W+j}, v52")
    for sh in (8, 4, 2, 1):
        A(f"v_add_f32_dpp v52, v52, v52 row_ror:{sh} row_mask:0xf bank_mask:0xf")
    A("v_add_f32_dpp v52, v52, v52 row_bcast:15 row_mask:0xa bank_mask:0xf")
def gate_out(A, sr, soff):
    A(f"""
    v_cvt_pk_bf16_f32 v53, v53, v53
    v_lshlrev_b32 v53, 16, v53
    v_mul_f32 v53, {fbits(-LOG2E)}, v53
    v_exp_f32 v53, v53
    v_add_f32 v53, 1.0, v53
    v_rcp_f32 v53, v53
    v_cvt_pk_bf16_f32 v53, v53, v53
    v_lshlrev_b32 v54, 16, v53
    v_sub_f32 v53, 1.0, v54
    v_cvt_pk_bf16_f32 v53, v53, v53
    v_lshlrev_b32 v55, 16, v53
    s_mov_b32 exec_lo, 0xffff0000
    s_mov_b32 exec_hi, 0xffff0000
    buffer_store_dwordx2 v[54:55], v63, s[{sr}:{sr+3}], s{soff} offen{SC}
    s_mov_b64 exec, -1
    """)
NWDF = 16
def role_prep_w(A):
    NB = CFG["gnb"]
    GX, GW = 64, 16
    A(f"""
    s_lshl_b32 s79, s69, 7
    s_add_u32 s79, s79, {F_G}
    s_lshl_b32 s69, s69, 2
    s_add_u32 s69, s69, s{S_WAVE}
    s_mul_i32 s88, s69, {32*1280}
    s_lshl_b32 s89, s69, 8
    v_lshrrev_b32 v63, 5, v0                ; row&1
    v_and_b32 v62, 31, v0
    v_lshlrev_b32 v62, 4, v62
    v_mul_u32_u24 v56, 1280, v63
    v_add_u32 v56, v56, v62
    v_lshlrev_b32 v63, 3, v63
    v_and_b32 v61, 15, v0
    v_lshl_add_u32 v63, v61, 4, v63
    v_mov_b32 v8, 0
    s_mov_b32 s71, 0
    s_mov_b32 s82, {X_BYTES}
    s_mov_b32 s83, 0x20000
    s_mov_b32 s86, 1280
    s_mov_b32 s87, 0x20000
    """)
    for j in range(8, 12):
        for q in range(NB): A(f"v_mov_b32 v{GX+12*q+j}, 0")
        A(f"v_mov_b32 v{GW+j}, 0")
    kwait(A)
    if CFG["dlyC"]: A(f"s_sleep {CFG['dlyC']}")
    A(f"s_mov_b64 s[80:81], s[{P_U}:{P_U+1}]\ns_mov_b64 s[84:85], s[{P_GW}:{P_GW+1}]")
    p8_load(A, GW, 84, "0", "", va=62)
    for q in range(NB):
        p8_load(A, GX+12*q, 80, "s88", "")
        A("s_add_u32 s88, s88, 2560")
    srd(A, 16, P_WS, WS_G, G_BYTES)
    srd(A, 24, P_WS, 0, FL_BYTES)
    top = A.label("gl")
    A(f"s_mov_b32 s70, {16//NB - 1}\n{top}:\ns_cmp_eq_u32 s70, 0\ns_cselect_b32 s88, 0x8000000, s88")
    for q in range(NB):
        A(f"s_waitcnt vmcnt({3*(NB-1)})")
        gate_dot(A, GX+12*q, GW)
        p8_load(A, GX+12*q, 80, "s88", "")
        A("s_add_u32 s88, s88, 2560\nv_cmp_eq_u32 vcc, s71, v61\nv_cndmask_b32 v53, v53, v52, vcc\ns_add_u32 s71, s71, 1")
    A(f"s_sub_u32 s70, s70, 1\ns_cbranch_scc0 {top}\ns_waitcnt lgkmcnt(0)")
    gate_out(A, 16, 89)
    ts(A, 2)
    mk_tag(A)
    A(f"s_waitcnt vmcnt(0)\ns_barrier")
    publish(A, 24, 79, 9, 8)
    ts(A, 3)
    if not CFG["skip"]:
        ne = A.label("noep")
        A(f"""
        s_sub_u32 s70, s79, {F_G}
        s_or_b32 s70, s70, s{S_WAVE}
        s_cmp_lg_u32 s70, 0
        s_cbranch_scc1 {ne}
        s_setprio 0
        v_lshlrev_b32 v2, 7, v0
        v_add_u32 v2, {F_H}, v2
        s_mov_b32 s71, 7
        """)
        top = A.label("ep")
        A(f"{top}:\nv_min_u32 v3, {F_H + 399*128}, v2")
        poll(A, 24, 9, 3, 72, slp=32)
        A(f"""
        v_add_u32 v2, {64*128}, v2
        s_sub_u32 s71, s71, 1
        s_cmp_lg_u32 s71, 0
        s_cbranch_scc1 {top}
        v_min_u32 v3, 15, v0
        v_lshlrev_b32 v3, 7, v3
        v_add_u32 v3, {F_G}, v3
        """)
        poll(A, 24, 9, 3, 72, slp=32)
        A(f"""
        v_mov_b32 v2, s{S_TAG}
        s_mov_b64 exec, 1
        buffer_store_dword v2, v8, s[24:27], 0 offen{SC}
        s_mov_b64 exec, -1
        {ne}:
        """)

def touch(A, k, dst, va, idle):
    base = (48*k) if idle else (48*CFG["nTA"] + 80*k - 48)
    A(f"""
    s_lshl_b32 s88, s{S_J}, 2
    s_add_u32 s88, s88, s{S_WAVE}
    s_add_u32 s88, s88, {base & 0xffffffff}
    s_lshl_b32 s88, s88, 13
    buffer_load_dword v{dst}, v{va}, s[8:11], s88 offen{SC}
    """)

def polln(A, n, va, r, cnt, preissued=False, slp=None):
    lab, done = A.label("poll"), A.label("pollok")
    def chk():
        o = "".join(f"v_xor_b32 v{r+q}, s{S_TAG}, v{r+q}\n" for q in range(n))
        o += f"v_or_b32 v{r}, v{r}, v{r+1}\n" + (f"v_or3_b32 v{r}, v{r}, v{r+2}, v{r+3}\n" if n == 4 else "")
        return o + f"v_cmp_ne_u32 vcc, 0, v{r}\ns_cbranch_vccz {done}"
    A(f"s_mov_b32 s{cnt}, {SPIN}")
    if preissued: A(chk())
    A(f"{lab}:\nbuffer_load_dwordx{n} {v(r,n)}, v{va}, s[24:27], 0 offen{SC}\ns_waitcnt vmcnt(0)")
    A(chk())
    spin_tail(A, lab, done, cnt, slp)
def poll4(A, va, r, cnt, preissued=False): polln(A, 4, va, r, cnt, preissued)
def poll2w(A, va, r, cnt): polln(A, 2, va, r, cnt)

def role_idle(A):
    if CFG["prio"]: A(f"s_setprio {CFG['iprio']}")
    QX, QO = 64, 128
    A(f"""
    s_mul_i32 s68, s{S_X}, 12
    s_add_u32 s68, s68, s{S_J}
    s_mul_i32 s90, s68, 20480
    s_mul_i32 s89, s{S_WAVE}, 2560
    s_add_u32 s90, s90, s89
    s_mov_b32 s6, {WD_BYTES}
    s_mov_b32 s7, 0x20000
    v_lshrrev_b32 v61, 5, v0                ; row&1
    v_and_b32 v62, 31, v0
    v_lshlrev_b32 v62, 4, v62               ; piece*16
    v_mul_u32_u24 v56, 1280, v61
    v_add_u32 v56, v56, v62
    """)
    kwait(A)
    if CFG["dlyI"]: A(f"s_sleep {CFG['dlyI']}")
    A(f"s_mov_b64 s[4:5], s[{P_WD}:{P_WD+1}]")
    for q in range(2):
        p8_load(A, QX+12*q, 4, "s90", CFG["wdmod"])
        if q == 0: A("s_add_u32 s90, s90, 10240")
    p8_addr(A)
    srd(A, 8, P_WS, WS_WD, WD_BYTES)
    srd(A, 24, P_WS, 0, FL_BYTES)
    A(f"""
    v_lshlrev_b32 v40, 7, v0
    v_min_u32 v41, 19, v0
    s_mul_i32 s70, s{S_X}, {20*128}
    s_add_u32 s70, s70, {F_A}
    v_lshl_add_u32 v41, v41, 7, s70
    s_mul_i32 s70, s{S_WAVE}, {24*128}
    s_add_u32 s70, s70, {F_WD}
    v_min_u32 v42, 23, v0
    v_lshl_add_u32 v42, v42, 7, s70
    s_lshl_b32 s78, s68, 7
    s_add_u32 s78, s78, {F_WD}
    s_lshr_b32 s90, s68, 1
    s_lshl_b32 s90, s90, 10
    s_and_b32 s70, s68, 1
    s_lshl_b32 s70, s70, 9
    s_add_u32 s90, s90, s70
    s_mul_i32 s70, s{S_WAVE}, {4*49152}
    s_add_u32 s90, s90, s70
    """)
    for q in range(2):
        A(f"s_waitcnt vmcnt({3*(1-q)})")
        p8_write(A, QX+12*q, q)
    tsn(A, 'p')
    A("s_waitcnt lgkmcnt(0)\ns_barrier")
    for q in range(2):
        A(f"s_add_u32 s91, s90, {q*256}")
        p8_out(A, QO+12*q, q, 8, 91, 60, 16*49152)
    tsn(A, 'y')
    mk_tag(A)
    A("s_waitcnt vmcnt(0)\ns_barrier")
    publish(A, 24, 78, 16, 61)
    if CFG["prio"]: A("s_setprio 0")
    tsn(A, 's')
    if "idle" in CFG["skip"]: A("s_branch L_done")
    if CFG["nTA"] or not CFG["waitT"]:
        if CFG["dlyW"]: A(f"s_sleep {CFG['dlyW']}")
        poll(A, 24, 16, 42, 72, slp=CFG["slpI"])
        A("s_barrier")
        tsn(A, 'k')
        for k in range(CFG["nTA"]):
            touch(A, k, 237, 40, True)
            A("s_waitcnt vmcnt(0)")
    if CFG["waitT"]:
        nw = A.label("nw")
        A(f"s_cmp_lg_u32 s{S_WAVE}, 0\ns_cbranch_scc1 {nw}")
        poll(A, 24, 16, 41, 72, slp=CFG["slpI"])
        A(f"{nw}:\ns_barrier")
    A("s_mov_b32 s0, 0")
    tsn(A, 'u')

C1 = -2.0 * LOG2E * 0.7978845608028654
C2 = C1 * 0.044715
def role_g1(A0):
    def A(x):
        for l in x.split("\n"):
            t = l.strip()
            if "g1m" in CFG["skip"] and t.startswith("v_mfma"): l = "s_nop 7\ns_nop 7\ns_nop 7\ns_nop 5"
            if "g1r" in CFG["skip"] and t.startswith("ds_read"): l = "s_nop 0"
            A0(l)
    A.label = A0.label
    split = CFG["split"]
    st = [sum(split[:i]) for i in range(5)]
    assert sum(split) == 32 and min(split) >= 4 and max(split) <= 8
    pack_c0 = sum(st[i] << (6*i) for i in range(5)); pack_nc = sum(split[i] << (6*i) for i in range(5))
    sline, sc0, snc, srot, sflag = 69, 68, 79, 72, 91
    AR, ACC0, BR = 96, 64, 32
    RS, RA, KBAR = 8, CFG['ra'], CFG['kbar']
    SB = 80
    VW, VX0, VX1, VT0, VT1 = 28, 29, 30, 14, 15
    VTOUCH, VHINT, VZ = 31, 13, 1
    if CFG["prio"]: A("s_setprio 2")
    A(f"""
    s_mul_i32 s68, s{S_J}, 43
    s_lshr_b32 s68, s68, 8               ; slot = j/6
    s_mul_i32 s69, s68, 6
    s_sub_u32 s69, s{S_J}, s69           ; j%6
    s_and_b32 s70, s{S_X}, 1             ; half
    s_add_u32 s72, s68, s69
    s_lshl_b32 s72, s72, 1
    s_add_u32 s72, s72, s70
    s_cmp_eq_u32 s69, 5
    s_cselect_b32 s12, 0x8000000, 0
    s_addc_u32 s72, s72, 0
    s_mul_i32 s73, s70, 5
    s_add_u32 s73, s73, s68
    s_mul_i32 s{sflag}, s73, {24*128}
    s_lshr_b32 s71, s{S_X}, 1            ; q
    s_mul_i32 s73, s71, 6
    s_add_u32 s69, s69, s73              ; line
    s_lshl_b32 s73, s69, 7
    s_add_u32 s{sflag}, s{sflag}, s73
    s_add_u32 s20, s{sflag}, {F_T}
    s_add_u32 s{sflag}, s{sflag}, {F_H}
    s_mul_i32 s73, s68, 6
    s_lshr_b32 s79, {pack_nc}, s73
    s_and_b32 s79, s79, 63               ; nc
    s_lshr_b32 s68, {pack_c0}, s73
    s_and_b32 s68, s68, 63
    s_lshl_b32 s70, s70, 5
    s_add_u32 s68, s68, s70              ; c0
    s_mul_i32 s70, s72, 205
    s_lshr_b32 s70, s70, 11
    s_mul_i32 s70, s70, 10
    s_sub_u32 s72, s72, s70              ; rot
    s_lshl_b32 s71, s71, 1
    s_cmp_ge_u32 s71, s79
    s_cselect_b32 s13, 0x8000000, s12
    s_cselect_b32 s70, s79, 0
    s_sub_u32 s14, s71, s70              ; o0
    s_add_u32 s71, s71, 1
    s_cmp_ge_u32 s71, s79
    s_cselect_b32 s12, 0x8000000, s12
    s_add_u32 s15, s14, 1
    s_cmp_eq_u32 s15, s79
    s_cselect_b32 s15, 0, s15            ; o1
    s_add_u32 s21, s15, 1
    s_cmp_eq_u32 s21, s79
    s_cselect_b32 s21, 0, s21            ; o2
    s_mul_i32 s21, s21, 40960
    s_mul_i32 s22, s79, 40960
    v_lshrrev_b32 v1, 3, v0                 ; lane>>3
    v_and_b32 v13, 7, v0                    ; chunk
    s_lshr_b32 s70, s{S_WAVE}, 1
    s_lshl_b32 s70, s70, 3
    v_add_u32 v16, s70, v1
    v_mul_u32_u24 v{VW}, 3072, v16
    v_bfe_u32 v17, v0, 4, 1
    s_and_b32 s70, s{S_WAVE}, 1
    s_lshl_b32 s70, s70, 2
    v_lshl_or_b32 v17, v17, 1, s70          ; swz
    v_xor_b32 v17, v17, v13
    v_lshl_add_u32 v{VW}, v17, 4, v{VW}
    s_lshl_b32 s71, s{sline}, 7
    v_add_u32 v{VW}, s71, v{VW}             ; W voffset
    s_lshl_b32 s70, s{S_WAVE}, 3
    v_add_u32 v{VX0}, s70, v1
    v_bfe_u32 v17, v{VX0}, 1, 3             ; swz
    v_xor_b32 v17, v17, v13
    v_mul_u32_u24 v{VX0}, 1280, v{VX0}
    v_lshl_add_u32 v{VX0}, v17, 4, v{VX0}
    s_mul_i32 s73, s{sc0}, 40960
    v_add_u32 v13, s73, v{VX0}
    s_mul_i32 s70, s14, 40960
    v_add_u32 v{VX0}, s70, v13
    s_mul_i32 s70, s15, 40960
    v_add_u32 v{VX1}, s70, v13
    s_lshl_b32 s74, s{S_WAVE}, 10           ; m0 base
    """)
    for b in range(10):
        A(f"s_lshl_b32 s{SB+b}, s72, 7\ns_add_u32 s72, s72, 1\ns_cmp_ge_u32 s72, 10\ns_cselect_b32 s72, 0, s72")
    A(f"""
    s_mov_b32 s90, 40960
    s_sub_u32 s75, s{snc}, 2
    v_add_u32 v10, s21, v13
    v_bfe_u32 v16, v0, 4, 1                 ; mat
    v_lshrrev_b32 v17, 5, v0                ; h
    v_bfe_u32 v18, v0, 2, 2                 ; r
    v_and_b32 v19, 1, v0                    ; c&1
    v_bfe_u32 v20, v0, 1, 1                 ; c>>1
    s_lshl_b32 s70, s{S_WAVE}, 1
    v_or_b32 v19, s70, v19                  ; chunk
    v_and_b32 v21, 2, v18
    v_lshl_or_b32 v21, v16, 2, v21          ; swz
    v_xor_b32 v19, v19, v21
    v_lshl_add_u32 v22, v17, 1, v16         ; mat + 2h
    v_lshlrev_b32 v{VT0}, 10, v22
    v_lshl_add_u32 v{VT0}, v18, 7, v{VT0}
    v_lshl_add_u32 v{VT0}, v19, 4, v{VT0}
    v_lshl_add_u32 v{VT0}, v20, 3, v{VT0}
    v_add_u32 v{VT1}, s90, v{VT0}
    v_and_b32 v16, 31, v0                   ; n
    v_bfe_u32 v18, v0, 1, 3                 ; (n>>1)&7
    v_xor_b32 v18, v18, v17
    v_lshlrev_b32 v2, 7, v16
    v_lshl_add_u32 v2, v18, 4, v2
    v_xor_b32 v3, 32, v2
    v_xor_b32 v4, 64, v2
    v_xor_b32 v5, 96, v2
    v_add_u32 v6, s90, v2
    v_add_u32 v7, s90, v3
    v_add_u32 v8, s90, v4
    v_add_u32 v9, s90, v5
    v_bfe_u32 v18, v0, 4, 1                 ; n>>4
    v_mul_u32_u24 v11, 49152, v18
    s_and_b32 s70, s{S_WAVE}, 1
    s_lshl_b32 s70, s70, 1
    v_add_u32 v18, s70, v17                 ; 2(w&1)+h
    v_lshlrev_b32 v18, 4, v18
    v_and_or_b32 v18, v0, 15, v18
    v_lshl_add_u32 v11, v18, 4, v11
    s_lshl_b32 s78, s{sline}, 1
    s_lshr_b32 s70, s{S_WAVE}, 1
    s_add_u32 s78, s78, s70
    s_lshl_b32 s78, s78, 10
    s_mul_i32 s70, s{sc0}, 98304
    s_add_u32 s28, s78, s70
    s_mul_i32 s70, s{snc}, 98304
    s_add_u32 s29, s28, s70
    s_mul_i32 s70, s14, 98304
    s_add_u32 s78, s28, s70
    v_mov_b32 v12, {fbits(C2)}
    v_mov_b32 v{VZ}, 0
    s_mov_b32 s10, {640*3072}
    s_mov_b32 s11, 0x20000
    s_mov_b32 s6, {X_BYTES}
    s_mov_b32 s7, 0x20000
    s_mul_i32 s73, s{SB}, 1536
    s_mov_b32 m0, s74
    """)
    kwait(A)
    A(f"""
    s_bitcmp1_b32 s{S_WAVE}, 0
    s_cselect_b32 s8, s{P_WU}, s{P_WG}
    s_cselect_b32 s9, s{P_WU+1}, s{P_WG+1}
    """)
    XL = CFG["xl"]
    steps = []
    for b in range(10):
        stp = [("W", b, ks) for ks in range(4)] + [("X0", b, 0)]
        if b in (XL, XL+1): stp.append(("X1", b-XL, 0))
        if b >= 6: stp.append(("X1", b-4, 0))
        steps.append(stp)
    steps.append([("X1", b, 0) for b in range(6, 10)])
    seq = [p for stp in steps for p in stp]
    assert len(seq) == 60
    page = {p: i % 20 for i, p in enumerate(seq)}
    for g in range(4):
        for kb in range(5): seq.append(("M", g, kb))
    adv_ops = ["s_add_u32 s21, s21, s90", "s_cmp_eq_u32 s21, s22", "s_cselect_b32 s21, 0, s21",
               "s_sub_u32 s75, s75, 1", "s_cmp_gt_i32 s75, 0", "s_cselect_b32 s76, s21, 0x8000000", "v_add_u32 v10, s76, v13"]
    def piece(i):
        p = seq[i]; pg = i % 20
        pre = []
        if p[0] == "W":
            if p[2] == 0: pre.append(f"s_mul_i32 s73, s{SB+p[1]}, 1536")
            else: pre.append(f"s_add_u32 s73, s73, 49152")
            iss = [f"buffer_load_dwordx4 v{VW}, s[8:11], s73 offen{CFG['wmod']} lds"]
        elif p[0] in ("X0", "X1"):
            iss = [f"buffer_load_dwordx4 v{VX0 if p[0] == 'X0' else VX1}, s[4:7], s{SB+p[1]} offen lds"]
        else:
            iss = [f"buffer_load_dwordx4 v10, s[4:7], s{SB+5*(p[1]&1)+p[2]} offen lds"]
            if (p[1] & 1) and p[2] == 4: iss += adv_ops
        pre.append(f"s_add_u32 m0, s74, {pg*4096}")
        return pre, iss
    vm = []
    def wait_for(npieces):
        pos = vm.index(npieces - 1)
        return len(vm) - 1 - pos
    for i in range(20):
        pre, iss = piece(i)
        if i == 0: pre = []
        for o in pre + iss: A(o)
        vm.append(i)
        if i == 0:
            A(f"s_mov_b32 s4, s{P_U}\ns_mov_b32 s5, s{P_U+1}")
        if i == 5:
            srd(A, 16, P_WS, WS_H, H_BYTES); srd(A, 24, P_WS, 0, FL_BYTES)
    UH, USO = AR + 144, (23, 30, 31, 77)
    srd(A, 32, P_WS, WS_UT, UT_BYTES)
    A(f"""
    v_bfe_u32 v16, v0, 2, 2                 ; r
    s_lshl_b32 s70, s{S_WAVE}, 3
    v_add_u32 v17, s70, v16                 ; row
    v_bfe_u32 v18, v17, 1, 3                ; swizzle
    v_lshrrev_b32 v19, 4, v0
    v_bfe_u32 v20, v0, 1, 1
    v_lshl_or_b32 v19, v19, 1, v20          ; chunk
    v_xor_b32 v18, v18, v19
    v_lshlrev_b32 v17, 7, v17
    v_lshl_add_u32 v17, v18, 4, v17
    v_and_b32 v20, 1, v0
    v_lshl_add_u32 v18, v20, 3, v17         ; tokens 0..3
    v_xor_b32 v19, 32, v18
    v_add_u32 v19, 512, v19                 ; tokens 4..7
    v_lshlrev_b32 v17, 4, v0
    """)
    for c in range(2):
        A(f"""
        s_add_u32 s70, s{sc0}, s{14+c}
        s_lshl_b32 s70, s70, 2
        s_add_u32 s70, s70, s{S_WAVE}
        s_mul_i32 s70, s70, {UT_CH}
        s_add_u32 s70, s70, s{13-c}
        """)
        for b in range(2): A(f"s_lshl_b32 s71, s{SB+b}, 3\ns_add_u32 s{USO[2*c+b]}, s70, s71")
    duty = {0: ("X0", 0, 0), 1: ("X0", 1, 1), XL: ("X1", 0, 2), XL+1: ("X1", 1, 3)}
    ust = [f"buffer_store_dwordx4 {v(UH+4*k,4)}, v17, s[32:35], s{USO[k]} offen{SC}" for k in range(4)]
    upos = None; upub = False
    def epi_ops(acc):
        ops = []
        T = 16
        for g0 in (0, 4):
            E = range(g0, g0+4)
            ops += [f"v_mul_f32 v{T+e-g0}, v{acc+e}, v{acc+e}" for e in E]
            ops += [f"v_mul_f32 v{acc+8+e}, v{acc+e}, v{acc+8+e}" for e in E]
            ops += [f"v_fmaak_f32 v{T+e-g0}, v12, v{T+e-g0}, {fbits(C1)}" for e in E]
            ops += [f"v_mul_f32 v{T+e-g0}, v{T+e-g0}, v{acc+e}" for e in E]
            ops += [f"v_exp_f32 v{T+e-g0}, v{T+e-g0}" for e in E]
            ops += [f"v_add_f32 v{T+e-g0}, 1.0, v{T+e-g0}" for e in E]
            ops += [f"v_rcp_f32 v{T+e-g0}, v{T+e-g0}" for e in E]
            ops += [f"v_mul_f32 v{acc+8+e}, v{acc+8+e}, v{T+e-g0}" for e in E]
            ops += [f"v_cvt_pk_bf16_f32 v{24+(g0>>1)+p}, v{acc+8+g0+2*p}, v{acc+8+g0+2*p+1}" for p in range(2)]
        ops.append(f"buffer_store_dwordx4 v[24:27], v11, s[16:19], s78 offen{CFG['hsc']}")
        ops.append("s_add_u32 s78, s78, 98304\ns_cmp_eq_u32 s78, s29\ns_cselect_b32 s78, s28, s78")
        return ops
    def wgt(o): return 2.0 if ("v_exp" in o or "v_rcp" in o) else (0.0 if o.startswith("s_") else 1.0)
    def bread_at(pg, ks, slot):
        return f"ds_read_b128 {v(BR+4*(slot%RS),4)}, v{2+4*(pg>=10)+ks} offset:{(pg%10)*4096}"
    mf = []
    for s_, stp in enumerate(steps):
        L0 = [(0, 4*b+ks, page[(n, b, 0)], ks) for (n, b, _) in stp if n == "X0" for ks in range(4)]
        L1 = [(1, 4*b+ks, page[(n, b, 0)], ks) for (n, b, _) in stp if n == "X1" for ks in range(4)]
        if L0 and L1: L = [x for pr in zip(L0, L1) for x in pr]
        else: L = L0 + L1
        mf.append(L)
    allm = [m for L in mf for m in L]
    def frag_read(j):
        if j < 80: return bread_at(allm[j][2], allm[j][3], j)
        jj = j - 80
        return bread_at(jj >> 2, jj & 3, j)
    nissued = 20; rd = 0; mi = 0
    E = 0
    started = [False, False]
    def emit(o):
        A(o)
        if o.startswith("buffer_store"): vm.append(None)
    def issue(i):
        pre, iss = piece(i); return pre, iss
    for s_ in range(12):
        if s_ <= 10:
            E += len(steps[s_])
            A(f"s_waitcnt vmcnt({wait_for(E)}) lgkmcnt(0)\ns_barrier")
            if s_ == 0: ts(A, 1)
            if upos is not None and not upub and len(vm) - wait_for(E) > upos:
                mk_tag(A); publish(A, 24, 20, 31, VZ); upub = True
                ts(A, 4)
            trs = []
            if s_ in duty:
                n, b, k = duty[s_]; pg = page[(n, b, 0)]
                assert pg <= 15
                trs += [f"ds_read_b64_tr_b16 {v(UH+4*k+2*t,2)}, v{18+t} offset:{pg*4096}" for t in range(2)]
            for (n, b, ks) in steps[s_]:
                if n == "W":
                    pg = page[(n, b, ks)]
                    for hh in range(2):
                        trs.append(f"ds_read_b64_tr_b16 {v(AR+16*b+4*ks+2*hh,2)}, v{VT1 if pg >= 10 else VT0} offset:{(pg%10)*4096 + hh*512}")
            ndma = len(steps[s_-1]) if s_ else 0
            rlim = sum(len(mf[i]) for i in range(s_+1))
        else:
            trs = []; ndma = 0
        ms = mf[s_-1] if s_ else []
        dm = list(range(nissued, nissued + ndma)); nissued += ndma
        last = (s_ == 11)
        ops = epi_ops(ACC0) if last else []
        tot = sum(wgt(o) for o in ops); oi = 0; done = 0.0
        def rd_more(limit, maxn):
            nonlocal rd
            n = 0
            while rd < limit and rd < mi + RS and n < maxn:
                A(frag_read(rd)); rd += 1; n += 1
        if not ms:
            rd_more(rlim, 99)
            for o in trs: A(o)
            continue
        if not last: rd_more(rlim, 99)
        for k, (ac, kidx, pg, ks) in enumerate(ms):
            acc = ACC0 + 16*ac
            pi = dm.pop(0) if dm else None
            pre, iss = piece(pi) if pi is not None else ([], [])
            for o in pre: A(o)
            if last: A(f"s_waitcnt lgkmcnt({min(15, rd - mi - 1)})")
            A(f"v_mfma_f32_32x32x16_bf16 {v(acc,16)}, {v(AR+4*kidx,4)}, {v(BR+4*(mi%RS),4)}, {v(acc,16) if started[ac] else 0}")
            started[ac] = True; mi += 1
            if last:
                if k == 12:
                    A(f"s_waitcnt vmcnt({wait_for(65)}) lgkmcnt(0)\ns_barrier")
                lim = 80 if k < 12 else 80 + RA
                rd_more(min(lim, mi + (RS if k < 12 else RA)), 3)
                if k >= 1:
                    tgt = tot * k / 14.0
                    while oi < len(ops) and done < tgt:
                        emit(ops[oi]); done += wgt(ops[oi]); oi += 1
            else:
                rd_more(rlim, 1)
                ntr = -(-len(trs) // (len(ms) - k))
                for _ in range(ntr): A(trs.pop(0))
            for o in iss: A(o)
            if pi is not None: vm.append(pi)
            if s_ == XL + 2 and ust:
                A(ust.pop(0)); vm.append(None)
                if not ust: upos = len(vm) - 1
        while dm:
            pi = dm.pop(0)
            pre, iss = piece(pi)
            for o in pre + iss: A(o)
            vm.append(pi)
        while oi < len(ops):
            emit(ops[oi]); oi += 1
    assert rd == 80 + RA and mi == 80 and nissued == 76 and upub, (rd, mi, nissued)
    ts(A, 2)
    tails = [A.label("g1tail"), A.label("g1tail")]
    A(f"s_sub_u32 s{snc}, s{snc}, 2\ns_cmp_eq_u32 s{snc}, 0\ns_cbranch_scc1 {tails[1]}")
    top = A.label("g1top")
    A(f"{top}:")
    cnt = RA
    for P in range(2):
        acc = ACC0 + 16*P
        ops = epi_ops(ACC0 + 16*(P ^ 1))
        tot = sum(wgt(o) for o in ops); oi = 0; done = 0.0
        issued = RA
        for k in range(40):
            kk = k % 20; stg = k // 20
            gs = 2*P + stg
            pi = None
            if kk == KBAR: pi = 60 + 5*gs
            elif kk in (0, 4, 8, 12): pi = 60 + 5*((gs - 1) & 3) + 1 + kk // 4
            pre, iss = piece(pi) if pi is not None else ([], [])
            for o in pre: A(o)
            A(f"s_waitcnt lgkmcnt({issued - k - 1})")
            A(f"v_mfma_f32_32x32x16_bf16 {v(acc,16)}, {v(AR+4*k,4)}, {v(BR+4*((40*P+k)%RS),4)}, {v(acc,16) if k else 0}")
            if kk == KBAR:
                A("s_waitcnt vmcnt(10) lgkmcnt(0)\ns_barrier")
            lim = 20*(stg+1) if kk < KBAR else 99
            n = 0
            while issued < min(k + 1 + RA, lim) and n < 3:
                j = (40*P + issued) % 80
                A(bread_at(j >> 2, j & 3, cnt)); cnt += 1; issued += 1; n += 1
            for o in iss: A(o)
            if k >= 1:
                tgt = tot * k / 38.0
                while oi < len(ops) and done < tgt:
                    A(ops[oi]); done += wgt(ops[oi]); oi += 1
        while oi < len(ops):
            A(ops[oi]); oi += 1
        A(f"s_sub_u32 s{snc}, s{snc}, 1\ns_cmp_eq_u32 s{snc}, 0\ns_cbranch_scc1 {tails[P]}" if P == 0 else
          f"s_sub_u32 s{snc}, s{snc}, 1\ns_cmp_lg_u32 s{snc}, 0\ns_cbranch_scc1 {top}")
    end = A.label("g1end")
    for P in (1, 0):
        A(f"{tails[P]}:\ns_nop 8")
        for o in epi_ops(ACC0 + 16*P): A(o)
        if P == 1: A(f"s_branch {end}")
    A(f"{end}:\ns_waitcnt vmcnt(0) lgkmcnt(0)\ns_barrier")
    publish(A, 24, sflag, 31, VZ)
    if CFG["prio"]: A("s_setprio 0")
    ts(A, 3)

def cmul(r, x, y, t, conj_out=False, pk=True):
    if pk:
        i1 = f"v_pk_mul_f32 {v(t,2)}, {v(x,2)}, {v(y,2)} op_sel_hi:[0,1]"
        i2 = f"v_pk_fma_f32 {v(r,2)}, {v(x,2)}, {v(y,2)}, {v(t,2)} op_sel:[1,1,0] op_sel_hi:[1,0,1] neg_lo:[0,1,0]"
        if conj_out: i2 += " neg_hi:[0,1,1]"
        return [i1, i2]
    o = [f"v_mul_f32 v{t}, v{x+1}, v{y+1}", f"v_mul_f32 v{t+1}, v{x+1}, v{y}"]
    if r == x or r == y:
        assert r == x and r != y
        o += [f"v_fma_f32 v{r+1}, v{x}, v{y+1}, v{t+1}" if not conj_out else f"v_fma_f32 v{r+1}, -v{x}, v{y+1}, -v{t+1}",
              f"v_fma_f32 v{r}, v{x}, v{y}, -v{t}"]
    else:
        o += [f"v_fma_f32 v{r+1}, v{x}, v{y+1}, v{t+1}" if not conj_out else f"v_fma_f32 v{r+1}, -v{x}, v{y+1}, -v{t+1}",
              f"v_fma_f32 v{r}, v{x}, v{y}, -v{t}"]
    return o

def interleave(*streams):
    out = []; idx = [0]*len(streams); tot = sum(len(x) for x in streams)
    while len(out) < tot:
        best = min((idx[i]/len(x), i) for i, x in enumerate(streams) if idx[i] < len(x))[1]
        out.append(streams[best][idx[best]]); idx[best] += 1
    return out

def role_ssm(A):
    sq = 68
    TB = 5760
    VKW, VKL, VKH = 241, 158, 159
    TBL, CS, MB = 5760, 1984, 9856
    C1_ = CS + 2
    WM = 216
    VF0, VF1, VG, VWA, VWB, VMW, VMR, VOUT = 243, 244, 245, 246, 249, 248, 250, 247
    PK = CFG["pk"]
    st_ = [sum(CFG["split"][:i]) for i in range(5)]
    sl_ = [max(q for q in range(5) if st_[q] <= c) for c in range(32)]
    LS = [sum(sl_[16*h+c] << (4*c) for c in range(16)) for h in range(2)]
    LQ = [sum(((16*h + c - st_[sl_[16*h+c]]) >> 1) << (2*c) for c in range(16)) for h in range(2)]
    KA = 48
    FA, FB = 64, 96
    if CFG["prio"]: A(f"s_setprio 3")
    A(f"""
    s_lshl_b32 s70, s{sq}, 2
    s_add_u32 s70, s70, s{S_WAVE}           ; channel d
    s_mul_i32 s71, s70, 384
    s_lshl_b32 s72, s70, 1
    v_lshlrev_b32 v1, 2, v0
    v_lshlrev_b32 v2, 1, v0
    v_mov_b32 v3, 0
    s_mul_i32 s76, s{S_WAVE}, 20480
    s_mov_b32 m0, s76
    s_add_u32 s78, s76, {TBL}
    """)
    for d in (8, 12, 16, 20): A(f"s_mov_b32 s{d+2}, {640*384}\ns_mov_b32 s{d+3}, 0x20000")
    for d in (4, 32): A(f"s_mov_b32 s{d+2}, 1280\ns_mov_b32 s{d+3}, 0x20000")
    A("""
    v_and_b32 v45, 15, v0                   ; lane & 15
    v_lshrrev_b32 v40, 4, v0                ; g
    v_lshlrev_b32 v41, 3, v40               ; 8g
    v_sub_u32 v42, v41, v45
    v_add_u32 v42, 16, v42
    v_min_u32 v42, 31, v42
    """)
    BANDS = [(11, 13), (3, 5), (6, 10), (5, 11), (4, 12), (12, 13)]
    def band(q):
        lo, hi = BANDS[q]
        A(f"s_mov_b32 s79, {(((1 << (hi-lo+1)) - 1) << lo) << 16}\nv_lshrrev_b32 v43, v42, s79")
        for r in range(4):
            A(f"v_bfe_u32 v44, v43, {2*r}, 1\nv_bfe_u32 v46, v43, {2*r+1}, 1\nv_lshl_or_b32 v44, v46, 16, v44\nv_mul_u32_u24 v{WM+4*q+r}, 0x3f80, v44")
    for q in range(3): band(q)
    def params():
        pm = CFG.get("pmod", " nt")
        for d, p in ((4, P_DT), (8, P_LA)): A(f"s_mov_b64 s[{d}:{d+1}], s[{p}:{p+1}]")
        A(f"""
        buffer_load_ushort v16, v3, s[4:7], s72 offen
        buffer_load_dword v4, v1, s[8:11], s71 offen{pm}
        buffer_load_ushort v5, v2, s[8:11], s71 offen offset:256{pm}
        """)
        for d, p in ((12, P_AI), (16, P_CR), (20, P_CI), (32, P_DS)): A(f"s_mov_b64 s[{d}:{d+1}], s[{p}:{p+1}]")
        A(f"""
        buffer_load_dword v6, v1, s[12:15], s71 offen{pm}
        buffer_load_ushort v7, v2, s[12:15], s71 offen offset:256{pm}
        buffer_load_dword v8, v1, s[16:19], s71 offen{pm}
        buffer_load_ushort v9, v2, s[16:19], s71 offen offset:256{pm}
        buffer_load_dword v10, v1, s[20:23], s71 offen{pm}
        buffer_load_ushort v11, v2, s[20:23], s71 offen offset:256{pm}
        buffer_load_ushort v17, v3, s[32:35], s72 offen
        """)
    kwait(A)
    params()
    for q in range(3, 6): band(q)
    A(f"""
    s_add_u32 s79, s76, {TB}
    v_mul_u32_u24 v14, 208, v0
    v_add_u32 v{VKW}, s79, v14
    v_bfe_u32 v14, v0, 3, 1                 ; q>>1
    v_lshrrev_b32 v15, 5, v0                ; h
    v_lshlrev_b32 v14, 3, v14
    v_lshl_add_u32 v14, v15, 1, v14
    v_mul_u32_u24 v14, 208, v14
    v_add_u32 v14, s79, v14
    v_bfe_u32 v15, v0, 2, 1                 ; comp
    v_and_b32 v43, 3, v0
    v_bfe_u32 v44, v0, 4, 1
    v_lshl_add_u32 v{VKL}, v15, 6, v14
    v_lshl_add_u32 v{VKL}, v44, 5, v{VKL}
    v_lshl_add_u32 v{VKL}, v43, 3, v{VKL}
    v_lshlrev_b32 v46, 5, v15
    v_lshl_add_u32 v46, v43, 3, v46
    v_add_u32 v46, 128, v46
    v_lshlrev_b32 v15, 3, v15
    v_add_u32 v15, 192, v15
    v_cmp_eq_u32 vcc, 1, v44
    v_cndmask_b32 v46, v46, v15, vcc
    v_add_u32 v{VKH}, v14, v46
    ; conv addresses
    v_and_b32 v43, 1, v0
    v_mul_u32_u24 v43, {C1_}, v43
    v_add_u32 v43, v43, v41
    v_lshlrev_b32 v44, 1, v45
    v_sub_u32 v43, v43, v44
    v_add_u32 v{VF0}, s78, v43
    v_add_u32 v{VF1}, 1024, v{VF0}
    v_mul_u32_u24 v43, 272, v45
    v_add3_u32 v{VG}, v43, v41, s76
    v_lshl_add_u32 v43, v45, 4, v41         ; 16k + 8g
    v_add_u32 v44, 624, v43
    v_lshrrev_b32 v46, 7, v44
    v_lshlrev_b32 v46, 4, v46
    v_lshl_add_u32 v44, v44, 1, v46
    v_add_u32 v{VWA}, s76, v44
    v_add_u32 v44, 616, v43
    v_lshrrev_b32 v46, 7, v44
    v_lshlrev_b32 v46, 4, v46
    v_lshl_add_u32 v44, v44, 1, v46
    v_add_u32 v{VWB}, s76, v44
    s_add_u32 s79, s76, {MB}
    v_mul_u32_u24 v43, 528, v45
    v_lshl_add_u32 v43, v40, 4, v43
    v_add_u32 v{VMW}, s79, v43
    v_lshrrev_b32 v43, 3, v45
    v_add_u32 v43, v43, v40
    v_lshlrev_b32 v43, 4, v43
    v_lshl_add_u32 v43, v45, 6, v43
    v_add_u32 v{VMR}, s79, v43
    v_and_b32 v41, 1, v40                   ; g&1
    v_lshrrev_b32 v42, 1, v40               ; g>>1
    v_lshlrev_b32 v{VOUT}, 5, v45
    v_lshl_add_u32 v{VOUT}, v41, 9, v{VOUT}
    v_lshl_add_u32 v{VOUT}, v42, 4, v{VOUT}
    s_bitcmp1_b32 s{S_WAVE}, 0
    s_mov_b32 s80, {LS[0] & 0xffffffff}
    s_mov_b32 s81, {LS[0] >> 32}
    s_cmov_b32 s80, {LS[1] & 0xffffffff}
    s_cmov_b32 s81, {LS[1] >> 32}
    s_mov_b32 s82, {LQ[0]}
    s_cmov_b32 s82, {LQ[1]}
    v_lshlrev_b32 v43, 2, v45
    v_lshrrev_b64 v[46:47], v43, s[80:81]
    v_and_b32 v46, 7, v46                   ; slot
    v_lshlrev_b32 v43, 1, v45
    v_lshrrev_b32 v43, v43, s82
    v_and_b32 v43, 3, v43                   ; q
    s_lshr_b32 s79, s{S_WAVE}, 1            ; half
    s_lshr_b32 s80, s{sq}, 4
    s_add_u32 s80, s80, 10
    s_sub_u32 s80, s80, s79
    v_lshlrev_b32 v44, 1, v46
    v_sub_u32 v44, s80, v44
    v_subrev_u32 v47, 10, v44
    v_min_u32 v44, v44, v47
    v_lshrrev_b32 v44, 1, v44
    v_mad_u32_u24 v44, v43, 6, v44
    v_mad_u32_u24 v44, v46, 24, v44
    s_mul_i32 s79, s79, {120*128}
    s_add_u32 s79, s79, {F_T}
    v_lshl_add_u32 v44, v44, 7, s79
    s_mul_i32 s79, s{S_WAVE}, {24*128}
    s_add_u32 s79, s79, {F_WD - 16*128}
    v_min_u32 v252, 39, v0
    v_lshl_add_u32 v252, v252, 7, s79
    v_cmp_gt_u32 vcc, 16, v0
    v_cndmask_b32 v252, v252, v44, vcc
    v_lshlrev_b32 v255, 7, v0
    v_lshrrev_b32 v43, 2, v0
    v_mul_u32_u24 v253, {UT_CH}, v43
    v_and_b32 v44, 3, v0
    v_lshl_add_u32 v253, v44, 4, v253
    v_mul_u32_u24 v240, 20480, v44
    v_lshl_add_u32 v240, v43, 4, v240
    s_mul_i32 s79, s{S_WAVE}, 1088
    s_add_u32 s79, s79, 1360
    v_add_u32 v240, s79, v240
    v_mov_b32 v254, 0
    """)
    for q in range(64): A(f"v_mov_b32 v{FA+q}, 0")
    srd(A, 24, P_WS, 0, FL_BYTES)
    for q in range(16): A(f"v_mov_b32 v{KA+q}, 0")
    A("s_waitcnt vmcnt(0) lgkmcnt(0)")
    tsn(A, 'q')
    Z, C = 20, 26
    A(f"""
    v_lshlrev_b32 v16, 16, v16
    v_mul_f32 v16, {fbits(LOG2E)}, v16
    v_exp_f32 v16, v16
    v_lshlrev_b32 v{Z}, 16, v4
    v_and_b32 v{Z+2}, 0xffff0000, v4
    v_lshlrev_b32 v{Z+4}, 16, v5
    v_cvt_pk_bf16_f32 v16, v16, v16
    v_lshlrev_b32 v16, 16, v16              ; dt
    """)
    for t in range(3): A(f"v_mul_f32 v{Z+2*t}, {fbits(LOG2E)}, v{Z+2*t}")
    for t in range(3): A(f"v_exp_f32 v{Z+2*t}, v{Z+2*t}")
    A(f"""
    v_lshlrev_b32 v{Z+1}, 16, v6
    v_and_b32 v{Z+3}, 0xffff0000, v6
    v_lshlrev_b32 v{Z+5}, 16, v7
    v_cvt_pk_bf16_f32 v4, v{Z}, v{Z+2}
    v_cvt_pk_bf16_f32 v5, v{Z+4}, v{Z+4}
    v_lshlrev_b32 v{Z}, 16, v4
    v_and_b32 v{Z+2}, 0xffff0000, v4
    v_lshlrev_b32 v{Z+4}, 16, v5
    v_lshlrev_b32 v{C}, 16, v8
    v_and_b32 v{C+2}, 0xffff0000, v8
    v_lshlrev_b32 v{C+4}, 16, v9
    v_lshlrev_b32 v{C+1}, 16, v10
    v_and_b32 v{C+3}, 0xffff0000, v10
    v_lshlrev_b32 v{C+5}, 16, v11
    v_add_f32 v18, v16, v16                 ; 2 dt
    v_lshlrev_b32 v242, 16, v17             ; D skip (persist)
    """)
    for q in range(6): A(f"v_mul_f32 v{Z+q}, v16, v{Z+q}")
    for q in range(6): A(f"v_mul_f32 v{C+q}, v18, v{C+q}")
    for t in range(3):
        A(f"v_mul_f32 v{Z+2*t}, {fbits(-LOG2E)}, v{Z+2*t}\nv_mul_f32 v{Z+2*t+1}, {fbits(0.15915494309189535)}, v{Z+2*t+1}")
    E1, E256, E2, E4, E8 = 32, 34, 36, 38, 40
    def exps():
        return [
            f"v_exp_f32 v4, v{Z}", f"v_fract_f32 v5, v{Z+1}", f"v_mul_f32 v6, 0x43800000, v{Z}", f"v_mul_f32 v7, 0x43800000, v{Z+1}",
            f"v_cos_f32 v8, v5", f"v_sin_f32 v9, v5", f"v_fract_f32 v7, v7", f"v_exp_f32 v6, v6", f"v_cos_f32 v10, v7", f"v_sin_f32 v11, v7",
            f"v_mul_f32 v{E1}, v4, v8", f"v_mul_f32 v{E1+1}, v4, v9", f"v_mul_f32 v{E256}, v6, v10", f"v_mul_f32 v{E256+1}, v6, v11"]
    for o in exps(): A(o)
    mk_tag(A)
    tsn(A, 'p')
    if "kgen" in CFG["skip"]: A("s_branch L_done")
    srd(A, 4, P_WS, WS_UT, UT_BYTES)
    srd(A, 32, P_WS, WS_AT, AT_BYTES)
    srd(A, 8, P_WS, WS_WD, WD_BYTES)
    A(f"""
    s_mul_i32 s72, s{S_WAVE}, {64*UT_CH}
    s_lshl_b32 s73, s{sq}, 6
    s_add_u32 s72, s72, s73
    """)
    if CFG["prio"]: A(f"s_setprio {CFG['kprio']}")
    A("v_mov_b32 v19, 0\ns_mov_b32 s77, 3")
    def utload():
        for j in range(4):
            A(f"buffer_load_dwordx4 {v(160+4*j,4)}, v253, s[4:7], s72 offen{SC}")
            if j < 3: A(f"s_add_u32 s72, s72, {16*UT_CH}")
    top = A.label("kgen")
    A(f"{top}:")
    tsn(A, 'a')
    cm = lambda r, x, y, t, conj_out=False: cmul(r, x, y, t, conj_out, PK)
    def pair(dre, dim, x, y):
        xr, xi = (f"v{x}", f"v{x+1}") if x is not None else ("1.0", "0")
        return [f"v_cvt_pk_bf16_f32 v{dre}, {xr}, v{y}", f"v_cvt_pk_bf16_f32 v{dim}, {xi}, v{y+1}"]
    wr = lambda r, off: [f"ds_write_b128 v{VKW}, {v(r,4)} offset:{off}"]
    pre = cm(E2, E1, E1, 42) + cm(E4, E2, E2, 42) + cm(E8, E4, E4, 42, True)
    LA, LB, LT, SL = 128, 130, 132, 200
    lo = pair(SL, SL+4, None, E8)
    for i in range(2, 32, 2):
        b = SL + 8*((i//8) & 1); o = (i % 8)//2
        lo += cm(LA, LB if i > 2 else E8, E8, LT) + cm(LB, LA, E8, LT) + pair(b+o, b+4+o, LA, LB)
        if o == 3: lo += wr(b, 16*(i//8)) + wr(b+4, 64 + 16*(i//8))
    HA, HB_, HT, GA, GB, GT, S1, S3 = 134, 136, 138, 140, 142, 144, 146, 154
    hi = cm(HA, C, E1, HT) + pair(S1, S1+4, C, HA)
    for o in range(1, 4): hi += cm(HB_, HA, E1, HT) + cm(HA, HB_, E1, HT) + pair(S1+o, S1+4+o, HB_, HA)
    hi += wr(S1, 128) + wr(S1+4, 160)
    hi += cm(GA, C, E256, GT) + cm(HA, GA, E2, HT) + pair(S3, S3+2, GA, HA)
    hi += cm(HB_, HA, E2, HT) + cm(HA, HB_, E2, HT) + pair(S3+1, S3+3, HB_, HA) + wr(S3, 192)
    hi += cm(GB, GA, E256, GT) + cm(HA, GB, E4, HT) + pair(S1, S1+4, GB, HA)
    hi += cm(GA, GB, E256, GT) + cm(HA, GA, E4, HT) + pair(S1+2, S1+6, GA, HA)
    hi += cm(GB, GA, E256, GT) + cm(GA, GB, E256, GT) + pair(S1+1, S1+5, GB, GA)
    hi += cm(GB, GA, E256, GT) + cm(GA, GB, E256, GT) + pair(S1+3, S1+7, GB, GA)
    hi += wr(S1, 144) + wr(S1+4, 176)
    hi += [f"v_fma_f32 v19, v{GA}, v{E256}, v19", f"v_fma_f32 v19, -v{GA+1}, v{E256+1}, v19"]
    hi0 = hi[:CFG["hi0"]]
    st = interleave(pre, hi0) + interleave(lo, hi[len(hi0):])
    if "kw" in CFG["skip"]: st = [o for o in st if not o.startswith("ds_write")]
    if "kv" in CFG["skip"]: st = [o for o in st if o.startswith("ds_write")]
    DL = CFG["wdelay"]
    out = []; pend = []; gap = 99
    for o in st:
        if o.startswith("ds_write"): pend.append([o, DL])
        else:
            out.append(o); gap += 1
            for x in pend: x[1] -= 1
            if pend and pend[0][1] <= 0 and gap >= CFG["wsp"]: out.append(pend.pop(0)[0]); gap = 0
    out += [x[0] for x in pend]
    kmf = lambda k: f"v_mfma_f32_32x32x16_bf16 {v(KA,16)}, {v(FA+4*k,4)}, {v(FB+4*k,4)}, {v(KA,16)}"
    nw = 0; k = 0
    for n, o in enumerate(out):
        if k < 8 and n >= CFG["kmf0"] + 14*k:
            A((f"s_waitcnt lgkmcnt({min(15, nw)})\n" if k == 0 else "") + kmf(k)); k += 1
        if n == int(len(out)*CFG["fpos"]) and "poll" not in CFG["skip"]:
            nf = A.label("nf")
            A(f"s_cmp_lg_u32 s77, 1\ns_cbranch_scc1 {nf}\nbuffer_load_dword v196, v252, s[24:27], 0 offen{SC}\n{nf}:")
        A(o)
        if o.startswith("ds_write"): nw += 1
    tsn(A, 'b')
    for q in range(4): A(f"v_mov_b32 v{Z+q}, v{Z+2+q}\nv_mov_b32 v{C+q}, v{C+2+q}")
    ex = exps()
    for k in range(8):
        for t in range(2):
            off = (16*(k >> 1) + 4*(k & 1) + t)*208
            A(f"ds_read_b64_tr_b16 {v(FA+4*k+2*t,2)}, v{VKH} offset:{off}\nds_read_b64_tr_b16 {v(FB+4*k+2*t,2)}, v{VKL} offset:{off}")
            for o in ex[2*k+t:2*k+t+1]: A(o)
    tsn(A, 'd')
    for nm, val in (('1', 3), ('2', 2), ('3', 1)):
        if (nm in CFG['marks'] and CFG['dbg']) or (CFG.get("probe") and CFG["probe"][1] == nm):
            lb = A.label("cm"); A(f"s_cmp_lg_u32 s77, {val}\ns_cbranch_scc1 {lb}"); tsn(A, nm); A(f"{lb}:")
    A(f"s_sub_u32 s77, s77, 1\ns_cmp_lg_u32 s77, 0\ns_cbranch_scc1 {top}")
    if "poll" in CFG["skip"]: A("s_branch L_done")
    A("s_waitcnt vmcnt(0)")
    poll(A, 24, 196, 252, 73, preissued=True, slp=CFG["slpU"])
    utload()
    tsn(A, 'f')
    side = f"""
    v_add_f32_dpp v19, v19, v19 row_ror:8 row_mask:0xf bank_mask:0xf
    v_lshlrev_b32 v4, 4, v0
    v_add_u32 v5, s78, v4
    v_add_f32_dpp v19, v19, v19 row_ror:4 row_mask:0xf bank_mask:0xf
    v_add_u32 v4, s76, v4
    v_mov_b32 v8, 0
    v_add_f32_dpp v19, v19, v19 row_ror:2 row_mask:0xf bank_mask:0xf
    v_mov_b32 v9, 0
    v_mov_b32 v10, 0
    v_add_f32_dpp v19, v19, v19 row_ror:1 row_mask:0xf bank_mask:0xf
    v_mov_b32 v11, 0
    ds_write_b128 v5, v[8:11]
    v_add_f32_dpp v19, v19, v19 row_bcast:15 row_mask:0xa bank_mask:0xf
    ds_write_b128 v5, v[8:11] offset:1024
    v_add_f32_dpp v19, v19, v19 row_bcast:31 row_mask:0xc bank_mask:0xf
    ds_write_b128 v5, v[8:11] offset:2048
    ds_write_b128 v5, v[8:11] offset:3072
    ds_write_b128 v4, v[8:11]
    s_mov_b64 exec, 0x1fffff
    ds_write_b128 v4, v[8:11] offset:1024
    s_mov_b64 exec, -1
    v_readlane_b32 s75, v19, 63
    v_and_b32 v4, 31, v0                    ; i
    v_lshrrev_b32 v5, 5, v0                 ; h
    v_lshlrev_b32 v6, 4, v4
    v_sub_u32 v6, s78, v6                   ; base - 16 i   (seg1)
    v_lshlrev_b32 v7, 3, v5
    v_sub_u32 v7, v6, v7                    ; seg0
    v_add_u32 v12, {CS + 1084}, v7
    v_add_u32 v13, {C1_ + 566}, v6
    v_and_b32 v14, 30, v0                   ; 2 i2
    v_sub_u32 v14, s78, v14
    v_lshlrev_b32 v15, 5, v5
    v_sub_u32 v14, v14, v15                 ; base - 32h - 2 i2
    v_sub_u32 v15, v14, v15                 ; base - 64h - 2 i2
    v_and_b32 v18, 1, v0
    v_cmp_eq_u32 vcc, 1, v18
    v_mov_b32 v18, 1474
    v_mov_b32 v19, 1184
    v_mov_b32 v20, {1794 - 32}
    v_mov_b32 v24, 1280
    v_mov_b32 v25, 1376
    v_mov_b32 v26, {1632 - 32}
    v_cndmask_b32 v18, v18, v24, vcc
    v_cndmask_b32 v19, v19, v25, vcc
    v_cndmask_b32 v20, v20, v26, vcc
    v_add_u32 v18, v14, v18                 ; VA
    v_add_u32 v19, v14, v19                 ; VB
    v_add_u32 v20, v15, v20                 ; VC7
    v_add_u32 v21, 32, v20                  ; VC6
    s_add_u32 s72, s78, 1410
    s_add_u32 s73, s78, 1824
    v_mov_b32 v24, s72
    v_mov_b32 v25, s73
    v_cmp_eq_u32 vcc, 0, v0
    v_cndmask_b32 v18, v18, v24, vcc
    v_cndmask_b32 v21, v21, v25, vcc
    v_cndmask_b32 v22, v254, v242, vcc      ; skip term on lag 0
    v_cvt_pk_bf16_f32 v27, s75, s75
    """.strip().split("\n")
    side = [x.strip() for x in side]
    nw = 0; per = -(-len(side) // 8)
    for k in range(8):
        A(f"s_waitcnt lgkmcnt({min(15, 28 - 4*k + nw)})\n" + kmf(k))
        for o in side[per*k:per*(k+1)]:
            A(o)
            if o.startswith("ds_write"): nw += 1
    if CFG["prio"]: A(f"s_setprio {CFG['cprio']}")
    tsn(A, 'k')
    if "conv" in CFG["skip"]: A("s_branch L_done")
    A(f"s_mul_i32 s78, s70, {AT_ROW}")
    a0, a1, a2, a3 = KA, KA+1, KA+2, KA+3
    b0, b1, b2, b3 = KA+8, KA+9, KA+10, KA+11
    A(f"""
    v_cmp_eq_u32 vcc, 0, v0
    v_add_f32 v{a0}, v{a0}, v22
    v_cndmask_b32 v24, v{KA+4}, v{KA+6}, vcc
    v_cvt_pk_bf16_f32 v64, v{b3}, v{b2}
    v_cvt_pk_bf16_f32 v65, v{b2}, v{b2}
    v_cvt_pk_bf16_f32 v66, v{b1}, v{b0}
    v_cvt_pk_bf16_f32 v67, v{b0}, v{b0}
    v_cvt_pk_bf16_f32 v68, v{b2}, v{b1}
    v_cvt_pk_bf16_f32 v69, v{KA+4}, v{KA+4}
    v_cvt_pk_bf16_f32 v70, v24, v{KA+5}
    v_cvt_pk_bf16_f32 v71, v{KA+6}, v{KA+7}
    v_cvt_pk_bf16_f32 v72, v{a3}, v{a2}
    v_cvt_pk_bf16_f32 v73, v{a1}, v{a0}
    v_cvt_pk_bf16_f32 v74, v{a2}, v{a1}
    s_mov_b32 exec_hi, 0
    ds_write2_b32 v6, v64, v65 offset0:141 offset1:142
    ds_write2_b32 v6, v66, v67 offset0:143 offset1:144
    ds_write_b16 v6, v64 offset:{C1_ + 564}
    ds_write2_b32 v13, v65, v68 offset0:0 offset1:1
    ds_write_b32 v6, v67 offset:{C1_ + 574}
    ds_write_b16 v6, v67 offset:{C1_ + 578}
    s_mov_b32 exec_lo, 1
    ds_write2_b32 v6, v69, v69 offset0:15 offset1:16
    ds_write_b16 v6, v69 offset:{C1_ + 60}
    ds_write_b32 v6, v69 offset:{C1_ + 62}
    ds_write_b16 v6, v69 offset:{C1_ + 66}
    s_mov_b32 exec_lo, 0
    s_mov_b32 exec_hi, 1
    ds_write_b16 v6, v27 offset:1666
    ds_write_b16 v6, v27 offset:{1666 + C1_}
    s_mov_b64 exec, -1
    ds_write_b16 v7, v72 offset:1082
    ds_write_b32 v7, v74 offset:1084
    ds_write_b16_d16_hi v7, v73 offset:1088
    ds_write2_b32 v12, v72, v73 offset0:0 offset1:1
    """)
    for c in (0, C1_):
        A(f"ds_write_b16 v18, v70 offset:{c}\nds_write_b16_d16_hi v19, v70 offset:{c}\nds_write_b16 v21, v71 offset:{c}\nds_write_b16_d16_hi v20, v71 offset:{c}")
    tsn(A, 'c')
    ACC, GR, FR, WIN, F2, FX = 16, 48, 130, 142, 190, 120
    XA, XB, XU, XF = 48, 72, 96, 112
    lds = []
    def lop(txt, tag=None):
        A(txt); lds.append(tag)
    def lwait(*tags):
        pos = max(max(i for i, t in enumerate(lds) if t == tg) for tg in tags)
        A(f"s_waitcnt lgkmcnt({min(15, len(lds) - 1 - pos)})")
    def fread(dst, Y, h, tag):
        off = 2*Y - 32*h; va = VF0
        if off > 1016: off -= 1024; va = VF1
        lop(f"ds_read2_b32 {v(dst,2)}, v{va} offset0:{off//4} offset1:{off//4+1}", tag)
    def gread(j):
        z = 640 + 16*j
        lop(f"ds_read_b64 {v(GR+2*(j+33),2)}, v{VG} offset:{2*z + 16*(z >> 7)}", ("G", j))
    def aread(s_):
        r = FR + 4*(s_ % 3)
        fread(r, 544, 2*s_+1, ("A", s_)); fread(r+2, 544, 2*s_, ("A", s_))
    aread(0); aread(1)
    for j in range(4):
        if j == 0: A("s_waitcnt vmcnt(0)")
        lop(f"ds_write_b128 v240, {v(160+4*j,4)} offset:{j*272}")
    A(f"s_lshl_b32 s79, s{sq}, 7\ns_add_u32 s0, s79, {F_A}")
    A("s_waitcnt lgkmcnt(0)\ns_barrier")
    tsn(A, 'u')
    for j in range(-1, 8): gread(j)
    nTS = -(-(240 - 48*CFG["nTA"]) // 80) if CFG["nTS"] is None else CFG["nTS"]
    TD = [214, 215, 15]
    extra = []
    for d in (2, 3, 4):
        r = F2 + 8*(d-2)
        extra += [("F", r, 624, d, "F2"), ("F", r+2, 720, d, "F2"), ("F", r+4, 672, d, "F2"), ("F", r+6, 768, d, "F2")]
    for kt in range(6):
        extra += [("W", WIN+8*kt, VWA, kt), ("W", WIN+8*kt+4, VWB, kt)]
    m16 = lambda d, a, b, c: f"v_mfma_f32_16x16x32_bf16 {v(d,4)}, {v(a,4)}, {v(b,4)}, {c}"
    def warm():
        for k in range(nTS): touch(A, k, TD[k], 255, False)
    for s_ in range(17):
        side = []
        if s_ + 2 <= 16: side.append(lambda s_=s_: aread(s_+2))
        if s_ + 1 <= 16: side += [lambda j=-2*s_-2: gread(j), lambda j=-2*s_-3: gread(j)]
        if s_ >= 3:
            for _ in range(2):
                if extra:
                    x = extra.pop(0)
                    if x[0] == "F": side.append(lambda x=x: fread(x[1], x[2], x[3], x[4]))
                    else: side.append(lambda x=x: lop(f"ds_read_b128 {v(x[1],4)}, v{x[2]} offset:{544*x[3]}", ("W", x[3])))
        for n, T in enumerate(range(8) if s_ == 0 else range(7, -1, -1)):
            j = T - 2*s_ - 1
            if s_ == 0: lwait(("A", 0), ("G", j+1))
            elif n == 0: lwait(("A", s_))
            elif T == 1: lwait(("G", -2*s_))
            elif T == 0: lwait(("G", -2*s_-1))
            A(m16(ACC+4*T, FR+4*(s_%3), GR+2*(j+33), v(ACC+4*T,4) if s_ else 0))
            if n >= 1 and side: side.pop(0)()
        assert not side
        if s_ == CFG["warmat"]: warm()
    assert not extra
    tsn(A, 'g')
    gen = []
    for kt in range(6):
        wa, wb = WIN+8*kt, WIN+8*kt+4
        gen += [(XA+4*kt, wa, 0, kt), (XA+4*kt+2, wa, 1, kt), (XB+4*kt, wa, 2, kt), (XB+4*kt+2, wb, 2, kt)]
        if kt < 4: gen += [(XU+4*kt, wa, 3, kt), (XU+4*kt+2, wb, 4, kt), (XF+2*kt, wa, 5, kt)]
    TMP = [FR, FR+4, FR+8, 124]
    side = [lambda T=T: lop(f"ds_write_b128 v{VMW}, {v(ACC+4*T,4)} offset:{64*T}") for T in range(7, -1, -1)]
    side += [lambda T=T: lop(f"ds_read_b128 {v(ACC+4*T,4)}, v{VMR} offset:{1056*T}", ("C", T)) for T in range(8)]
    side += [lambda: fread(FX, 976, 4, "FX")]
    F3 = WIN
    for d in (4, 5, 6, 7):
        side += [lambda d=d: fread(F3+4*(d-4), 880, d, ("F3", d)), lambda d=d: fread(F3+4*(d-4)+2, 960, d, ("F3", d))]
    LAG = 3
    def cv(q):
        t = TMP[q % 4]; dst = gen[q][0]
        A(f"v_cvt_pk_bf16_f32 v{dst}, v{t}, v{t+1}\nv_cvt_pk_bf16_f32 v{dst+1}, v{t+2}, v{t+3}")
    lwait(("W", 5))
    for q, (dst, w, b, kt) in enumerate(gen):
        A(m16(TMP[q % 4], w, WM+4*b, 0))
        if q >= LAG: cv(q - LAG)
        if q >= 2 and side and (q % 4 != 3 or len(side) > 34 - q): side.pop(0)()
    A(f"v_mov_b32 v{FX+2}, 0\nv_mov_b32 v{FX+3}, 0")
    for q in range(len(gen) - LAG, len(gen)): cv(q)
    assert not side
    main = []
    for T in range(2, 8):
        for d in (2, 3, 4):
            if T - d >= 0: main += [(T, XA+4*(T-d), F2+8*(d-2), None), (T, XB+4*(T-d), F2+8*(d-2)+4, None)]
        for d in (4, 5, 6, 7):
            if T - d >= 0: main.append((T, XU+4*(T-d), F3+4*(d-4), ("F3", d)))
        if T >= 4: main.append((T, XF+2*(T-4), FX, "FX"))
    def fin(p):
        o = WM + 4*p
        r = []
        for T in (2*p, 2*p+1):
            for h in range(2): r.append(f"v_cvt_pk_bf16_f32 v{o+2*(T&1)+h}, v{ACC+4*T+2*h}, v{ACC+4*T+2*h+1}")
        r += [f"v_permlane16_swap_b32 v{o}, v{o+2}", f"v_permlane16_swap_b32 v{o+1}, v{o+3}",
              f"buffer_store_dwordx4 {v(o,4)}, v{VOUT}, s[32:35], s78 offen offset:{1024*p}{SC}"]
        return r
    seen = set(); pend = []; hold = 0
    for q, (T, a, b, tag) in enumerate(main):
        tags = []
        if ("C", T) not in seen: tags.append(("C", T)); seen.add(("C", T))
        if tag and tag not in seen: tags.append(tag); seen.add(tag)
        if tags: lwait(*tags)
        if q == 0: pend += fin(0)
        if q and main[q-1][0] != T and T in (4, 6): pend += fin(T//2 - 1); hold = 4
        A(m16(ACC+4*T, a, b, v(ACC+4*T,4)))
        if hold: hold -= 1
        elif pend: A(pend.pop(0))
    for o in pend: A(o)
    for o in fin(3): A(o)
    tsn(A, 'e')
    if CFG["prio"]: A("s_setprio 0")

def role_g2(A):
    split = CFG["split"]
    st = [sum(split[:i]) for i in range(5)] + [32]
    slot_of = [max(s for s in range(5) if st[s] <= c) for c in range(32)]
    pk0 = [sum(slot_of[2*t] << (4*(t % 8)) for t in range(8*h, 8*h+8)) for h in range(2)]
    pk1 = [sum(slot_of[2*t+1] << (4*(t % 8)) for t in range(8*h, 8*h+8)) for h in range(2)]
    ACC, WR, HB, AT = 16, 96, 196, 244
    KO = 80
    STG, SDT = 68, 69
    VL, VK0, VK1, VF, VT, VAL, VAG, VTOK, VLW, VZ, VG = 1, 2, 3, 4, 5, 6, 7, 8, 9, 10, 14
    srd(A, 4, P_WS, WS_H, H_BYTES)
    srd(A, 8, P_WS, WS_WD, WD_BYTES)
    srd(A, 12, P_WS, WS_AT, AT_BYTES)
    srd(A, 16, P_WS, WS_G, G_BYTES)
    srd(A, 20, P_OUT, 0, X_BYTES)
    A(f"""
    s_lshr_b32 s70, s{S_J}, 3               ; r
    s_lshl_b32 s{STG}, s{S_X}, 2
    s_add_u32 s{STG}, s{STG}, s70           ; tg
    s_and_b32 s{SDT}, s{S_J}, 7             ; dt
    v_mov_b32 v{VZ}, 0
    v_lshlrev_b32 v{VL}, 4, v0
    s_mul_i32 s72, s70, 3
    s_mul_i32 s73, s{SDT}, 3
    s_lshr_b32 s73, s73, 1
    s_add_u32 s72, s72, s73
    s_cmp_ge_u32 s72, 12
    s_cselect_b32 s73, 12, 0
    s_sub_u32 s72, s72, s73                 ; rot
    """)
    for p in range(12):
        A(f"s_lshl_b32 s{KO+p}, s72, 10")
        if p < 11: A("s_add_u32 s72, s72, 1\ns_cmp_ge_u32 s72, 12\ns_cselect_b32 s72, 0, s72")
    A(f"""
    s_mul_i32 s70, s{S_WAVE}, 12288
    s_mul_i32 s71, s{STG}, {4*49152}
    s_add_u32 s71, s71, s70                 ; h base
    s_mul_i32 s72, s{SDT}, {5*49152}
    s_add_u32 s72, s72, s70
    """)
    for i in range(4):
        A(f"s_add_u32 s73, s{S_WAVE}, {1+i}\ns_and_b32 s73, s73, 3\ns_mul_i32 s73, s73, 49152\ns_add_u32 s{74+i}, s71, s73")
    WS_ = [32, 33, 34, 35, 78]
    for m in range(5): A(f"s_add_u32 s{WS_[m]}, s72, {m*49152}")
    A(f"""
    s_mul_i32 s79, s{S_WAVE}, 20480
    v_add_u32 v{VLW}, s79, v{VL}
    v_and_b32 v{VTOK}, 15, v0
    s_lshl_b32 s70, s{STG}, 6
    s_lshl_b32 s71, s{S_WAVE}, 4
    s_add_u32 s70, s70, s71
    v_add_u32 v{VTOK}, s70, v{VTOK}         ; token
    v_lshlrev_b32 v{VG}, 3, v{VTOK}
    """)
    kv = [0]
    def kaddr(p):
        r = (VK0, VK1)[kv[0] & 1]; kv[0] += 1
        A(f"v_add_u32 v{r}, s{KO+p}, v{VL}")
        return r
    def wload(dst, m, va): return f"buffer_load_dwordx4 {v(dst+4*m,4)}, v{va}, s[8:11], s{WS_[m]} offen{SC}"
    def prefetch(nb):
        plan = [(6, ACC), (7, ACC+20), (8, ACC+40), (9, HB), (0, ACC+60)] + [(1+q, WR+20*q) for q in range(5)]
        n = 0; wr = 0
        for (p, dst) in plan:
            va = kaddr(p)
            for m in range(5):
                if n >= nb: A(f"s_waitcnt vmcnt({nb-1})")
                if n == nb:
                    np_ = A.label("nopub")
                    A(f"s_barrier\ns_cmp_eq_u32 s0, 0\ns_cbranch_scc1 {np_}")
                    publish(A, 24, 0, VT, VZ)
                    A(f"{np_}:")
                while wr < 20 and wr <= n - nb:
                    q, mm = divmod(wr, 5)
                    A(f"ds_write_b128 v{VLW}, {v(plan[q][1]+4*mm,4)} offset:{wr*1024}"); wr += 1
                A(wload(dst, m, va)); n += 1
        assert wr == 20
    slow, jn = A.label("g2slow"), A.label("g2pj")
    A(f"s_cmp_lt_u32 s{S_J}, 12\ns_cbranch_scc1 {slow}")
    prefetch(CFG["nbB"])
    A(f"s_branch {jn}\n{slow}:")
    prefetch(CFG["nbA"])
    A(f"""{jn}:
    s_and_b32 s70, s{STG}, 7
    s_lshl_b32 s70, s70, 2
    s_bitcmp1_b32 s{STG}, 3
    s_mov_b32 s71, {pk0[0]}
    s_cmov_b32 s71, {pk0[1]}
    s_mov_b32 s72, {pk1[0]}
    s_cmov_b32 s72, {pk1[1]}
    s_lshr_b32 s71, s71, s70
    s_lshr_b32 s72, s72, s70
    s_and_b32 s71, s71, 15
    s_and_b32 s72, s72, 15
    s_lshr_b32 s70, s{STG}, 4
    s_mul_i32 s70, s70, 5
    s_add_u32 s71, s71, s70
    s_add_u32 s72, s72, s70
    s_mul_i32 s71, s71, {24*128}
    s_mul_i32 s72, s72, {24*128}
    v_mov_b32 v11, s71
    v_mov_b32 v12, s72
    v_cmp_gt_u32 vcc, 32, v0
    v_cndmask_b32 v11, v12, v11, vcc
    v_and_b32 v12, 31, v0
    v_min_u32 v12, 23, v12
    v_lshl_add_u32 v{VF}, v12, 7, v11
    v_add_u32 v{VF}, {F_H}, v{VF}
    v_lshrrev_b32 v11, 3, v0
    v_and_b32 v12, 7, v0
    v_mul_u32_u24 v{VAL}, 160, v11
    v_lshl_add_u32 v{VAL}, v12, 4, v{VAL}
    s_add_u32 s70, s79, 15360
    v_add_u32 v{VAL}, s70, v{VAL}
    s_lshl_b32 s70, s{S_WAVE}, 3
    v_add_u32 v11, s70, v11
    v_mul_u32_u24 v{VAG}, {AT_ROW}, v11
    v_lshl_add_u32 v{VAG}, v12, 4, v{VAG}
    v_min_u32 v13, 19, v0
    s_mul_i32 s70, s{SDT}, {20*128}
    s_add_u32 s70, s70, {F_A}
    v_lshl_add_u32 v13, v13, 7, s70         ; a flags
    s_lshr_b32 s70, s{STG}, 1
    s_lshl_b32 s70, s70, 7
    s_add_u32 s70, s70, {F_G}
    v_mov_b32 v12, s70
    v_cmp_gt_u32 vcc, 20, v0
    v_cndmask_b32 v13, v12, v13, vcc
    s_mul_i32 s70, s{SDT}, {80*AT_ROW}
    s_lshl_b32 s71, s{STG}, 7
    s_add_u32 s70, s70, s71
    s_add_u32 s71, s70, {32*AT_ROW}
    s_add_u32 s72, s70, {64*AT_ROW}
    s_cmp_ge_u32 s{S_WAVE}, 2
    s_cselect_b32 s72, 0x8000000, s72
    s_waitcnt vmcnt(0) lgkmcnt(0)
    """)
    tsn(A, 'P')
    nw = A.label("g2nw")
    A(f"s_cmp_lg_u32 s{S_WAVE}, 0\ns_cbranch_scc1 {nw}")
    A(f"buffer_load_dword v12, v13, s[24:27], 0 offen{SC}")
    poll(A, 24, VT, VF, 73, slp=CFG['slpH'])
    poll(A, 24, 12, 13, 73, slp=CFG['slpH'], preissued=True)
    A(f"{nw}:\ns_barrier")
    tsn(A, 'H')
    vm = []
    def vmw(tag):
        pos = max(i for i, t in enumerate(vm) if t == tag)
        return len(vm) - 1 - pos
    def hloads(p):
        va = kaddr(p)
        return [(f"buffer_load_dwordx4 {v(HB+16*(p%3)+4*i,4)}, v{va}, s[4:7], s{74+i} offen{SC}", ("h", p)) for i in range(4)]
    def iss(x):
        A(x[0]); vm.append(x[1])
    for p in range(3):
        for x in hloads(p): iss(x)
    iss((f"buffer_load_dwordx2 v[{VG}:{VG+1}], v{VG}, s[16:19], 0 offen{SC}", "g"))
    for r in range(3):
        iss((f"buffer_load_dwordx4 {v(AT+4*r,4)}, v{VAG}, s[12:15], s{70+r} offen{SC}", "at"))
    aslot = {0: ACC+60, 1: WR, 2: WR+20, 3: WR+40, 4: WR+60, 5: WR+80, 6: WR+40, 7: WR+60, 8: WR+80, 9: WR+40, 10: WR, 11: WR+20}
    def mfma(p, i, m):
        acc = v(ACC + (i*5+m)*4, 4)
        return f"v_mfma_f32_16x16x32_bf16 {acc}, {v(aslot[p]+4*m,4)}, {v(HB+16*(p%3)+4*i,4)}, {acc if p else 0}"
    lds = []
    for p in range(9):
        w = f"s_waitcnt vmcnt({vmw(('h', p))})"
        if p >= 6:
            pos = max(i for i, t in enumerate(lds) if t == p)
            w += f" lgkmcnt({len(lds) - 1 - pos})"
        A(w)
        side = {}
        def add(k, x): side.setdefault(k, []).append(x)
        va = None
        hl = None
        if p in (2, 3):
            q = p + 8
            add(0, ("K", q))
            for m in range(5): add(1 + 3*m, ("WL", q, m))
        if 4 <= p <= 7:
            q = p + 2
            for m in range(5): add(1 + 3*m, ("SR", q, m))
        wva = None
        hq = []
        for i in range(4):
            for m in range(5):
                k = 5*i + m
                A(mfma(p, i, m))
                for x in side.get(k, []):
                    if x[0] == "K": wva = kaddr(x[1])
                    elif x[0] == "WL": iss((wload(aslot[x[1]], x[2], wva), ("w", x[1])))
                    elif x[0] == "SR":
                        A(f"ds_read_b128 {v(aslot[x[1]]+4*x[2],4)}, v{VLW} offset:{((x[1]-6)*5+x[2])*1024}"); lds.append(x[1])
                if k == 3:
                    A(f"v_add_u32 v{VF}, s{KO+p+3}, v{VL}")
                if m == 4:
                    iss((f"buffer_load_dwordx4 {v(HB+16*(p%3)+4*i,4)}, v{VF}, s[4:7], s{74+i} offen{SC}", ("h", p+3)))
    pend = []
    A("s_waitcnt lgkmcnt(0)")
    for i in range(4):
        for p in (9, 10, 11):
            if i == 0:
                n = vmw(("h", p))
                if p >= 10: n = min(n, vmw(("w", p)))
                A(f"s_waitcnt vmcnt({n})")
            for m in range(5):
                A(mfma(p, i, m))
                k = 5*(p-9) + m
                if pend and k >= 2 and k % 2 == 0: A(pend.pop(0))
        assert not pend, pend
        if i < 3:
            pend = [f"ds_write_b128 v{VLW}, {v(ACC+(i*5+m)*4,4)} offset:{(i*5+m)*1024}" for m in range(5)]
            if i == 0: pend.append(f"ds_write_b128 v{VAL}, {v(AT,4)}")
            if i == 1: pend.append(f"ds_write_b128 v{VAL}, {v(AT+4,4)} offset:1280")
            if i == 2: pend.append(f"ds_write_b128 v{VAL}, {v(AT+8,4)} offset:2560")
    tsn(A, 'M')
    for d in range(1, 4):
        A(f"s_add_u32 s73, s{S_WAVE}, {d}\ns_and_b32 s73, s73, 3\ns_mul_i32 s73, s73, 20480\nv_add_u32 v{1+d}, s73, v{VL}")
    A(f"""
    v_lshrrev_b32 v11, 5, v0                ; g>>1
    v_mul_u32_u24 v11, 20480, v11
    v_bfe_u32 v12, v0, 2, 3                 ; 4(g&1)+r
    v_mul_u32_u24 v12, 160, v12
    v_add_u32 v11, v11, v12
    v_and_b32 v12, 3, v0
    v_lshl_add_u32 v11, v12, 3, v11
    s_lshl_b32 s73, s{S_WAVE}, 5
    s_add_u32 s73, s73, 15360
    v_add_u32 v11, s73, v11
    s_waitcnt lgkmcnt(0)
    s_barrier
    """)
    RD = WR
    for d in range(1, 4):
        for m in range(5):
            A(f"ds_read_b128 {v(RD+((d-1)*5+m)*4,4)}, v{1+d} offset:{((3-d)*5+m)*1024}")
    AF = HB
    for m in range(5):
        A(f"ds_read_b64_tr_b16 {v(AF+2*m,2)}, v11 offset:{(m&1)*40960 + (m>>1)*1280}")
    A(f"""
    v_mul_u32_u24 v5, 1280, v{VTOK}
    v_lshrrev_b32 v6, 4, v0                 ; g
    v_and_b32 v7, 1, v6
    v_lshrrev_b32 v9, 1, v6
    v_lshlrev_b32 v7, 5, v7
    v_lshl_add_u32 v7, v9, 4, v7
    v_add_u32 v7, v5, v7
    v_lshl_add_u32 v6, v6, 3, v5
    s_mul_i32 s73, s{SDT}, 160
    """)
    F = ACC + 60
    for d in range(3):
        A(f"s_waitcnt lgkmcnt({min(15, 15 - 5*d)})")
        for q in range(20): A(f"v_add_f32 v{F+q}, v{F+q}, v{RD+d*20+q}")
    A("s_waitcnt lgkmcnt(0)")
    G, OM = VG, VG+1
    O = HB + 16
    for m in range(5):
        for h in range(2):
            A(f"""
            v_lshlrev_b32 v12, 16, v{AF+2*m+h}
            v_and_b32 v13, 0xffff0000, v{AF+2*m+h}
            v_mul_f32 v{F+4*m+2*h}, v{OM}, v{F+4*m+2*h}
            v_mul_f32 v{F+4*m+2*h+1}, v{OM}, v{F+4*m+2*h+1}
            v_fmac_f32 v{F+4*m+2*h}, v{G}, v12
            v_fmac_f32 v{F+4*m+2*h+1}, v{G}, v13
            v_cvt_pk_bf16_f32 v{O+2*m+h}, v{F+4*m+2*h}, v{F+4*m+2*h+1}
            """)
        if m & 1:
            b = O + 2*(m-1); p = m >> 1
            A(f"v_permlane16_swap_b32 v{b}, v{b+2}\nv_permlane16_swap_b32 v{b+1}, v{b+3}")
            A(f"buffer_store_dwordx4 {v(b,4)}, v7, s[20:23], s73 offen offset:{64*p}{CFG['omod']}")
    A(f"buffer_store_dwordx2 {v(O+8,2)}, v6, s[20:23], s73 offen offset:128{CFG['omod']}")

def body(A):
    prologue(A, 512)
    skip = CFG["skip"]
    A(f"""
    s_cmp_{'lt' if CFG['swap'] else 'ge'}_u32 s2, 256
    s_cbranch_scc1 L_half1
    s_cmp_ge_u32 s{S_J}, 30
    s_cbranch_scc1 L_prepC
    """)
    if "g1" in skip: A("s_waitcnt lgkmcnt(0)\ns_branch L_done")
    role_g1(A)
    A(f"""
    s_branch L_done
    L_prepC:
    s_lshl_b32 s69, s{S_X}, 1
    s_add_u32 s69, s69, s{S_J}
    s_sub_u32 s69, s69, 30
    """)
    if "C" in skip: A("s_waitcnt lgkmcnt(0)\ns_branch L_done")
    role_prep_w(A)
    A(f"""
    s_branch L_done
    L_half1:
    {"s_waitcnt lgkmcnt(0)" if "half1" in skip else ""}
    {"s_branch L_done" if "half1" in skip else ""}
    s_cmp_ge_u32 s{S_J}, 12
    s_cbranch_scc1 L_ssm
    """)
    role_idle(A)
    A(f"""
    s_branch L_g2
    L_ssm:
    s_mul_i32 s68, s{S_X}, 20
    s_add_u32 s68, s68, s{S_J}
    s_sub_u32 s68, s68, 12
    """)
    role_ssm(A)
    A("L_g2:")
    if "g2" in skip: A("s_branch L_done")
    role_g2(A)
    A("L_done:")
    if CFG["dbg"]: ts_end(A)
    if CFG.get("span"):
        A("s_waitcnt vmcnt(0)\ns_memrealtime vcc\ns_waitcnt lgkmcnt(0)")
        srd(A, 4, P_DBG, 0, 256)
        A(f"""
        s_cmp_lg_u32 s{S_WAVE}, 0
        s_cbranch_scc1 L_exit
        v_mov_b32 v1, 0
        v_mov_b32 v2, s{TSR}
        v_mov_b32 v3, vcc_lo
        s_mov_b64 exec, 1
        s_cmp_lt_u32 s2, 6
        s_cbranch_scc0 L_sp1
        s_lshl_b32 s9, s2, 2
        buffer_store_dword v3, v1, s[4:7], s9 offen offset:16
        s_cmp_lg_u32 s2, 0
        s_cbranch_scc1 L_exit
        buffer_store_dword v2, v1, s[4:7], 0 offen
        s_branch L_exit
        L_sp1:
        s_cmp_eq_u32 s2, 256
        s_cbranch_scc0 L_sp2
        buffer_store_dwordx2 v[2:3], v1, s[4:7], 0 offen offset:4
        s_branch L_exit
        L_sp2:
        s_cmp_eq_u32 s2, 487
        s_cbranch_scc0 L_sp3
        buffer_store_dwordx2 v[2:3], v1, s[4:7], 0 offen offset:56
        s_branch L_exit
        L_sp3:
        s_sub_u32 s9, s2, 200
        s_cmp_lt_u32 s9, 4
        s_cbranch_scc0 L_exit
        s_lshl_b32 s9, s9, 2
        buffer_store_dword v3, v1, s[4:7], s9 offen offset:40
        """)
    if CFG.get("probe"):
        role, mk, mode = CFG["probe"]
        lo, hi, half = dict(g1a=(0,12,1), g1b=(12,30,1), C=(30,32,1), idle=(0,12,0), ssm=(12,32,0), w0=(0,32,0))[role]
        N = (hi-lo)*8*4
        if mk == 'E': A("s_waitcnt vmcnt(0)"); prb(A, 'E')
        if mk == 'S': A(f"s_mov_b32 s{TSR+2}, s{TSR}")
        srd(A, 4, P_DBG, 0, 256)
        A(f"""
        v_mov_b32 v1, 0
        s_lshr_b32 s8, s2, 8
        s_cmp_lg_u32 s8, {half}
        s_cbranch_scc1 L_pb1
        s_cmp_lt_u32 s{S_J}, {lo}
        s_cbranch_scc1 L_pb1
        s_cmp_ge_u32 s{S_J}, {hi}
        s_cbranch_scc1 L_pb1
        s_mov_b32 s9, 2000
        L_pb0:
        s_sleep 20
        s_memrealtime vcc
        s_waitcnt lgkmcnt(0)
        s_sub_u32 s8, vcc_lo, s{TSR}
        s_cmp_ge_u32 s8, 2900
        s_cbranch_scc1 L_pb0x
        s_sub_u32 s9, s9, 1
        s_cbranch_scc0 L_pb0
        L_pb0x:
        v_mov_b32 v2, s{TSR+2}
        v_mov_b32 v3, 1
        s_mov_b64 exec, 1
        buffer_atomic_{'add' if mode == 'mean' else 'umax'} v2, v1, s[4:7], 0 offen
        s_waitcnt vmcnt(0)
        buffer_atomic_add v3, v1, s[4:7], 0 offen offset:128
        s_waitcnt vmcnt(0)
        s_mov_b64 exec, -1
        L_pb1:
        s_cmp_lg_u32 s2, 0
        s_cbranch_scc1 L_exit
        s_cmp_lg_u32 s{S_WAVE}, 0
        s_cbranch_scc1 L_exit
        s_mov_b32 s9, 20000
        L_pb2:
        v_mov_b32 v3, 0
        s_mov_b64 exec, 1
        buffer_atomic_add v3, v1, s[4:7], 0 offen offset:128 sc0
        s_waitcnt vmcnt(0)
        s_mov_b64 exec, -1
        v_readfirstlane_b32 s8, v3
        s_cmp_ge_u32 s8, {N}
        s_cbranch_scc1 L_pb3
        s_sleep 8
        s_sub_u32 s9, s9, 1
        s_cbranch_scc0 L_pb2
        L_pb3:
        v_mov_b32 v3, 0
        s_mov_b64 exec, 1
        buffer_atomic_add v3, v1, s[4:7], 0 offen sc0
        s_waitcnt vmcnt(0)
        s_mov_b64 exec, -1
        v_readfirstlane_b32 s8, v3
        """)
        if mode == 'mean':
            A(f"""
            s_sub_u32 s9, s{TSR}, 500
            s_mul_i32 s9, s9, {N}
            s_sub_u32 s8, s8, s9
            v_cvt_f32_u32 v3, s8
            v_mul_f32 v3, {fbits(1.0/N)}, v3
            v_cvt_u32_f32 v3, v3
            v_readfirstlane_b32 s8, v3
            """)
        else:
            A(f"s_sub_u32 s8, s8, s{TSR}\ns_add_u32 s8, s8, 500")
        A(f"""
        s_min_u32 s8, s8, 5000
        s_add_u32 s10, s8, 6000
        s_mov_b32 s9, 400000
        L_pad:
        s_memrealtime vcc
        s_waitcnt lgkmcnt(0)
        s_sub_u32 s8, vcc_lo, s{TSR}
        s_cmp_ge_u32 s8, s10
        s_cbranch_scc1 L_exit
        s_sub_u32 s9, s9, 1
        s_cbranch_scc0 L_pad
        """)
    if CFG.get("pad"):
        A(f"""
        s_cmp_lg_u32 s2, 0
        s_cbranch_scc1 L_exit
        s_mov_b32 s9, 200000
        L_pad:
        s_memrealtime vcc
        s_waitcnt lgkmcnt(0)
        s_sub_u32 s8, vcc_lo, s{TSR}
        s_cmp_ge_u32 s8, {CFG['pad']}
        s_cbranch_scc1 L_exit
        s_sub_u32 s9, s9, 1
        s_cbranch_scc0 L_pad
        """)
    A("L_exit:\ns_endpgm\nL_end:")

def build(verbose=False):
    kname = NAME + "_kernel"
    A = Asm(); A.kname = kname
    A(f".globl {kname}\n.p2align 8\n.type {kname},@function\n{kname}:")
    body(A)
    lines, nn = fix_hazards(A.lines, verbose)
    head = "; @launch grid=(512,1,1) block=(256,1,1) lds=81920\n.amdgcn_target \"amdgcn-amd-amdhsa--gfx950\"\n.text\n"
    desc = f""".section .rodata,"a"
.p2align 6
.amdhsa_kernel {kname}
  .amdhsa_next_free_vgpr 256
  .amdhsa_next_free_sgpr 102
  .amdhsa_accum_offset 256
  .amdhsa_group_segment_fixed_size 0
  .amdhsa_kernarg_size 120
  .amdhsa_user_sgpr_count 2
  .amdhsa_user_sgpr_kernarg_segment_ptr 1
  .amdhsa_system_sgpr_workgroup_id_x 1
.end_amdhsa_kernel
"""
    return head + "\n".join(lines) + "\n" + desc

if __name__ == "__main__":
    out = sys.argv[1] if len(sys.argv) > 1 else "f.s"
    src = build()
    open(out, "w").write(src)
    print("written", out, len(src))
```

```python
import sys, struct
sys.path.insert(0, "work")
from asmlib import *

NAME = "gated_mix__ssm_conv_s4d__geglu_ffn__prompt"
WS_H    = 0x100000
WS_AT   = 0x800000
WS_WD   = 0xC00000
WS_G    = 0xF00000
WS_UT   = 0x1000000
WS_TS   = 0x1400000
AT_ROW = 4224
UT_CH = 10368
H_BYTES, AT_BYTES, WD_BYTES, G_BYTES, UT_BYTES = 2048*1536*2, 640*AT_ROW, 1536*640*2, 2048*8, 256*UT_CH
X_BYTES = 2048*1280
FL_BYTES = 0x1c000
F_EP, F_G, F_WD, F_H, F_A, F_T = 0x0, 0x1000, 0x2000, 0x6000, 0x6000 + 240*128, 0x14000
P_U, P_LA, P_AI, P_CR, P_CI, P_DT, P_DS, P_BX = 36, 38, 40, 42, 44, 46, 48, 50
P_WG, P_WU, P_WD, P_GW, P_OUT, P_DBG, P_WS = 52, 54, 56, 58, 60, 62, 64
S_WAVE, S_J, S_X, S_TAG = 66, 67, 3, 1
LOG2E = 1.4426950408889634
SC = " sc1"
SPIN = 20000
CFG = dict(split=(8, 8, 6, 5, 5), wmod="", wdmod="", rot=(0,2,4,6,8), rotx=1, rotl=7, gostep=10, slp=6, slpH=8, nbU=3, kprio=3, nbA=3, nbB=12,
           umod="", wdelay=2, kmf0=40, warmat=2, nTA=0, nT0=1, waitT=True, tpub=2, slpI=16, marks='kuePHM', swap=True, cwarm=(4,0), nTS=None, dlyW=0, gnb=2, xl=2, fpos=0.6, dlyI=0, dlyC=0, iprio=3, hi0=12, wsp=8, slpU=8, cprio=3, xtouch=True, prio=True, skip=(), dbg=False, pk=False, hsc=SC, psc=SC, omod='', ra=6, kbar=16, y=False, gprio=0, p1=1, win=8, wlast=3, usc=SC, uend=0, fine=True, tpk=True, lateA=0, cmap=False, nTC=0)
def fbits(x): return "0x%08x" % struct.unpack("<I", struct.pack("<f", x))[0]

def srd(A, dst, ptr, off, nbytes):
    if off:
        A(f"s_add_u32 s{dst}, s{ptr}, {off}\ns_addc_u32 s{dst+1}, s{ptr+1}, 0")
    else:
        A(f"s_mov_b32 s{dst}, s{ptr}\ns_mov_b32 s{dst+1}, s{ptr+1}")
    A(f"s_mov_b32 s{dst+2}, {nbytes}\ns_mov_b32 s{dst+3}, 0x20000")

TSR = 92
def prb(A, n):
    p = CFG.get("probe")
    if p and p[1] == n:
        A(f"s_waitcnt lgkmcnt(0)\ns_memrealtime vcc\ns_waitcnt lgkmcnt(0)\ns_mov_b32 s{TSR+2}, vcc_lo")
def ts(A, i, named=False, g2=False):
    if CFG.get("g2d") and i <= 4 and not g2: return
    if not named: prb(A, f"G{i}")
    if CFG["dbg"]:
        A(f"s_waitcnt lgkmcnt(0)\ns_memtime vcc\ns_waitcnt lgkmcnt(0)\ns_mov_b32 s{TSR+2+i}, vcc_lo")
def tsn(A, n):
    prb(A, n)
    if n in CFG['marks']: ts(A, 1 + CFG['marks'].index(n), True)
def kwait(A):
    A(f"s_waitcnt lgkmcnt(0)\ns_load_dword s{S_TAG}, s[{P_WS}:{P_WS+1}], {F_EP}")
    if CFG["dbg"]:
        for i in range(1, 8): A(f"s_mov_b32 s{TSR+2+i}, 0")
def ts_end(A):
    A("s_waitcnt vmcnt(0)")
    ts(A, 7)
    A(f"s_memrealtime vcc\ns_waitcnt lgkmcnt(0)\ns_mov_b32 s{TSR+1}, vcc_lo")
    srd(A, 4, P_WS, WS_TS, 0x100000)
    A(f"s_lshl_b32 s8, s2, 2\ns_add_u32 s8, s8, s{S_WAVE}\ns_lshl_b32 s8, s8, 6\nv_mov_b32 v1, 0")
    for i in range(10): A(f"v_mov_b32 v{2+i}, s{TSR+i}")
    A("s_getreg_b32 s9, hwreg(HW_REG_HW_ID)\ns_getreg_b32 s10, hwreg(HW_REG_XCC_ID)\nv_mov_b32 v12, s9\nv_mov_b32 v13, s10")
    A("s_mov_b64 exec, 1")
    for i in range(3): A(f"buffer_store_dwordx4 {v(2+4*i,4)}, v1, s[4:7], s8 offen offset:{16*i}")

def prologue(A, nwg):
    if CFG["dbg"]: A(f"s_memrealtime s[{TSR}:{TSR+1}]\ns_memtime s[{TSR+2}:{TSR+3}]")
    if CFG.get("span") or CFG.get("pad") or CFG.get("probe"): A(f"s_memrealtime s[{TSR}:{TSR+1}]")
    A(f"""
    s_load_dwordx16 s[36:51], s[0:1], 0
    s_load_dwordx8 s[52:59], s[0:1], 64
    s_load_dwordx4 s[60:63], s[0:1], 96
    s_load_dwordx2 s[64:65], s[0:1], 112
    s_cmp_ge_u32 s2, {nwg}
    s_cbranch_scc1 L_exit
    v_lshrrev_b32 v1, 6, v0
    v_and_b32 v0, 63, v0
    v_readfirstlane_b32 s{S_WAVE}, v1
    s_and_b32 s{S_X}, s2, 7
    s_bfe_u32 s{S_J}, s2, 0x50003
    """)
    if CFG["cwarm"]:
        n, w0 = CFG["cwarm"]
        A(f"""
        s_lshr_b32 s70, s2, 3
        s_lshl_b32 s70, s70, 2
        s_add_u32 s70, s70, s{S_WAVE}
        s_sub_u32 s70, s70, {w0}
        s_cmp_ge_u32 s70, {n}
        s_cbranch_scc1 L_nocw
        s_getpc_b64 s[72:73]
        s_and_b32 s72, s72, 0xffffff00
        s_lshl_b32 s70, s70, 13
        v_lshl_add_u32 v1, v0, 7, s70
        v_min_u32 v1, L_end-{A.kname}-4, v1
        global_load_dword v255, v1, s[72:73]
        L_nocw:
        """)

def spin_tail(A, lab, done, cnt, slp=None):
    slp = CFG["slp"] if slp is None else slp
    if slp: A(f"s_sleep {slp}")
    A(f"s_sub_u32 s{cnt}, s{cnt}, 1\ns_cbranch_scc0 {lab}\n{done}:")

def mk_tag(A):
    A(f"s_mul_i32 s{S_TAG}, s{S_TAG}, 0x9e3779b1\ns_add_u32 s{S_TAG}, s{S_TAG}, 0x7f4a7c15\ns_or_b32 s{S_TAG}, s{S_TAG}, 1")

def poll(A, sfl, vt, va, cnt, preissued=False, slp=None):
    lab, done = A.label("poll"), A.label("pollok")
    A(f"s_mov_b32 s{cnt}, {12000000 // (64*(CFG['slp'] if slp is None else slp) + 600)}")
    if preissued:
        A(f"v_cmp_ne_u32 vcc, s{S_TAG}, v{vt}\ns_cbranch_vccz {done}")
    A(f"""{lab}:
    buffer_load_dword v{vt}, v{va}, s[{sfl}:{sfl+3}], 0 offen{SC}
    s_waitcnt vmcnt(0)
    v_cmp_ne_u32 vcc, s{S_TAG}, v{vt}
    s_cbranch_vccz {done}
    """)
    spin_tail(A, lab, done, cnt, slp)

def publish(A, sfl, soff, vt, vz):
    lab = A.label("pub")
    A(f"""
    s_cmp_lg_u32 s{S_WAVE}, 0
    s_cbranch_scc1 {lab}
    v_mov_b32 v{vt}, s{S_TAG}
    s_mov_b64 exec, 1
    buffer_store_dword v{vt}, v{vz}, s[{sfl}:{sfl+3}], s{soff} offen{SC}
    s_mov_b64 exec, -1
    {lab}:
    """)

IMG = 2688
HALF = "s_mov_b32 exec_lo, 0xffff\ns_mov_b32 exec_hi, 0xffff"
def p8_addr(A):
    A(f"""
    v_mul_u32_u24 v57, 1296, v61
    v_add_u32 v57, v57, v62
    s_mul_i32 s70, s{S_WAVE}, 20480
    v_add_u32 v57, s70, v57                 ; lds write address
    v_bfe_u32 v58, v0, 3, 1                 ; r>>1
    v_mul_u32_u24 v58, 20480, v58
    v_bfe_u32 v59, v0, 2, 1                 ; r&1
    v_mul_u32_u24 v59, 1296, v59
    v_add_u32 v58, v58, v59
    v_lshrrev_b32 v60, 4, v0                ; g
    v_lshl_add_u32 v58, v60, 5, v58
    v_and_b32 v59, 3, v0
    v_lshl_add_u32 v58, v59, 3, v58
    s_lshl_b32 s70, s{S_WAVE}, 7
    v_add_u32 v58, s70, v58
    v_mul_u32_u24 v60, 49152, v60
    v_and_b32 v59, 15, v0
    v_lshl_add_u32 v60, v59, 4, v60
    v_mov_b32 v61, 0
    """)
def p8_load(A, dst, sr, soff, mod, va=56):
    A(f"buffer_load_dwordx4 {v(dst,4)}, v{va}, s[{sr}:{sr+3}], {soff} offen{mod}")
    A(f"buffer_load_dwordx4 {v(dst+4,4)}, v{va}, s[{sr}:{sr+3}], {soff} offen offset:512{mod}")
    A(HALF)
    A(f"buffer_load_dwordx4 {v(dst+8,4)}, v{va}, s[{sr}:{sr+3}], {soff} offen offset:1024{mod}")
    A("s_mov_b64 exec, -1")
def p8_write(A, src, slot):
    A(f"ds_write_b128 v57, {v(src,4)} offset:{slot*IMG}\nds_write_b128 v57, {v(src+4,4)} offset:{slot*IMG+512}")
    A(HALF)
    A(f"ds_write_b128 v57, {v(src+8,4)} offset:{slot*IMG+1024}\ns_mov_b64 exec, -1")
def p8_out(A, dst, slot, sr, soff, va, step):
    for q in range(3):
        A(f"ds_read_b64_tr_b16 {v(dst+4*q,2)}, v58 offset:{slot*IMG+q*512}\nds_read_b64_tr_b16 {v(dst+4*q+2,2)}, v58 offset:{slot*IMG+q*512+40960}")
    sk = A.label("p8s")
    for q in range(3):
        if q == 2: A(f"s_cmp_ge_u32 s{S_WAVE}, 2\ns_cbranch_scc1 {sk}")
        A(f"s_waitcnt lgkmcnt({4-2*q})")
        if "pstore" not in CFG["skip"]: A(f"buffer_store_dwordx4 {v(dst+4*q,4)}, v{va}, s[{sr}:{sr+3}], s{soff} offen{CFG['psc']}")
        if q < 2: A(f"s_add_u32 s{soff}, s{soff}, {step}")
    A(f"{sk}:\ns_waitcnt lgkmcnt(0)")
def gate_dot(A, X, W):
    A("v_mov_b32 v52, 0")
    for j in range(12): A(f"v_dot2_f32_bf16 v52, v{X+j}, v{W+j}, v52")
    for sh in (8, 4, 2, 1):
        A(f"v_add_f32_dpp v52, v52, v52 row_ror:{sh} row_mask:0xf bank_mask:0xf")
    A("v_add_f32_dpp v52, v52, v52 row_bcast:15 row_mask:0xa bank_mask:0xf")
def gate_out(A, sr, soff):
    A(f"""
    v_cvt_pk_bf16_f32 v53, v53, v53
    v_lshlrev_b32 v53, 16, v53
    v_mul_f32 v53, {fbits(-LOG2E)}, v53
    v_exp_f32 v53, v53
    v_add_f32 v53, 1.0, v53
    v_rcp_f32 v53, v53
    v_cvt_pk_bf16_f32 v53, v53, v53
    v_lshlrev_b32 v54, 16, v53
    v_sub_f32 v53, 1.0, v54
    v_cvt_pk_bf16_f32 v53, v53, v53
    v_lshlrev_b32 v55, 16, v53
    s_mov_b32 exec_lo, 0xffff0000
    s_mov_b32 exec_hi, 0xffff0000
    buffer_store_dwordx2 v[54:55], v63, s[{sr}:{sr+3}], s{soff} offen{SC}
    s_mov_b64 exec, -1
    """)
NWDF = 16
def role_prep_w(A):
    NB = CFG["gnb"]
    GX, GW = 64, 16
    A(f"""
    s_lshl_b32 s79, s69, 7
    s_add_u32 s79, s79, {F_G}
    s_lshl_b32 s69, s69, 2
    s_add_u32 s69, s69, s{S_WAVE}
    s_mul_i32 s88, s69, {32*1280}
    s_lshl_b32 s89, s69, 8
    v_lshrrev_b32 v63, 5, v0                ; row&1
    v_and_b32 v62, 31, v0
    v_lshlrev_b32 v62, 4, v62
    v_mul_u32_u24 v56, 1280, v63
    v_add_u32 v56, v56, v62
    v_lshlrev_b32 v63, 3, v63
    v_and_b32 v61, 15, v0
    v_lshl_add_u32 v63, v61, 4, v63
    v_mov_b32 v8, 0
    s_mov_b32 s71, 0
    s_mov_b32 s82, {X_BYTES}
    s_mov_b32 s83, 0x20000
    s_mov_b32 s86, 1280
    s_mov_b32 s87, 0x20000
    """)
    for j in range(8, 12):
        for q in range(NB): A(f"v_mov_b32 v{GX+12*q+j}, 0")
        A(f"v_mov_b32 v{GW+j}, 0")
    kwait(A)
    if CFG["dlyC"]: A(f"s_sleep {CFG['dlyC']}")
    A(f"s_mov_b64 s[80:81], s[{P_U}:{P_U+1}]\ns_mov_b64 s[84:85], s[{P_GW}:{P_GW+1}]")
    p8_load(A, GW, 84, "0", "", va=62)
    for q in range(NB):
        p8_load(A, GX+12*q, 80, "s88", "")
        A("s_add_u32 s88, s88, 2560")
    srd(A, 16, P_WS, WS_G, G_BYTES)
    srd(A, 24, P_WS, 0, FL_BYTES)
    top = A.label("gl")
    A(f"s_mov_b32 s70, {16//NB - 1}\n{top}:\ns_cmp_eq_u32 s70, 0\ns_cselect_b32 s88, 0x8000000, s88")
    for q in range(NB):
        A(f"s_waitcnt vmcnt({3*(NB-1)})")
        gate_dot(A, GX+12*q, GW)
        p8_load(A, GX+12*q, 80, "s88", "")
        A("s_add_u32 s88, s88, 2560\nv_cmp_eq_u32 vcc, s71, v61\nv_cndmask_b32 v53, v53, v52, vcc\ns_add_u32 s71, s71, 1")
    A(f"s_sub_u32 s70, s70, 1\ns_cbranch_scc0 {top}\ns_waitcnt lgkmcnt(0)")
    gate_out(A, 16, 89)
    ts(A, 2)
    mk_tag(A)
    A(f"s_waitcnt vmcnt(0)\ns_barrier")
    publish(A, 24, 79, 9, 8)
    ts(A, 3)
    if CFG["y"]:
        A(f"""
        s_mul_i32 s70, s{S_WAVE}, {24*128}
        s_add_u32 s70, s70, {F_WD}
        v_min_u32 v42, 23, v0
        v_lshl_add_u32 v42, v42, 7, s70
        """)
        poll(A, 24, 16, 42, 72, slp=CFG["slpI"])
        if CFG["nTC"]:
            srd(A, 8, P_WS, WS_WD, WD_BYTES)
            A(f"""
            v_lshlrev_b32 v40, 7, v0
            s_sub_u32 s70, s{S_J}, 30
            s_mul_i32 s70, s70, {20*49152}
            s_mul_i32 s71, s{S_WAVE}, 12288
            s_add_u32 s70, s70, s71
            v_lshrrev_b32 v41, 5, v0
            v_mul_u32_u24 v41, {49152 - 4096}, v41
            v_add_u32 v41, v41, v40
            v_add_u32 v41, 8192, v41
            """)
            n = 0
            for b in range(0, 20, 2):
                for o in (f"v40, s[8:11], s70", None, f"v41, s[8:11], s70"):
                    if o is None:
                        A("s_add_u32 s71, s70, 49152"); o = "v40, s[8:11], s71"
                    if n >= CFG["nTC"]: A(f"s_waitcnt vmcnt({CFG['nTC']-1})")
                    A(f"buffer_load_dword v{44 + n % 16}, {o} offen{SC}"); n += 1
                A(f"s_add_u32 s70, s70, {2*49152}")
            ts(A, 4)
        A("s_mov_b32 s0, 0")
    elif not CFG["skip"]:
        ne = A.label("noep")
        A(f"""
        s_sub_u32 s70, s79, {F_G}
        s_or_b32 s70, s70, s{S_WAVE}
        s_cmp_lg_u32 s70, 0
        s_cbranch_scc1 {ne}
        """)
        bump(A)
        A(f"{ne}:")

def bump(A):
    A(f"""
    s_setprio 0
    v_mov_b32 v8, 0
    v_lshlrev_b32 v2, 7, v0
    v_add_u32 v2, {F_H}, v2
    s_mov_b32 s71, 7
    """)
    top = A.label("ep")
    A(f"{top}:\nv_min_u32 v3, {F_H + 399*128}, v2")
    poll(A, 24, 9, 3, 72, slp=32)
    A(f"""
    v_add_u32 v2, {64*128}, v2
    s_sub_u32 s71, s71, 1
    s_cmp_lg_u32 s71, 0
    s_cbranch_scc1 {top}
    v_min_u32 v3, 15, v0
    v_lshlrev_b32 v3, 7, v3
    v_add_u32 v3, {F_G}, v3
    """)
    poll(A, 24, 9, 3, 72, slp=32)
    if CFG["y"]:
        for h in range(2):
            A(f"v_min_u32 v3, 47, v0\nv_lshlrev_b32 v3, 7, v3\nv_add_u32 v3, {F_WD + h*48*128}, v3")
            poll(A, 24, 9, 3, 72, slp=32)
    A(f"""
    v_mov_b32 v2, s{S_TAG}
    s_mov_b64 exec, 1
    buffer_store_dword v2, v8, s[24:27], 0 offen{SC}
    s_mov_b64 exec, -1
    """)

def touch(A, k, dst, va, idle):
    base = (48*k) if idle else (48*CFG["nTA"] + 80*k - 48)
    A(f"""
    s_lshl_b32 s88, s{S_J}, 2
    s_add_u32 s88, s88, s{S_WAVE}
    s_add_u32 s88, s88, {base & 0xffffffff}
    s_lshl_b32 s88, s88, 13
    buffer_load_dword v{dst}, v{va}, s[8:11], s88 offen{SC}
    """)

def polln(A, n, va, r, cnt, preissued=False, slp=None):
    lab, done = A.label("poll"), A.label("pollok")
    def chk():
        o = "".join(f"v_xor_b32 v{r+q}, s{S_TAG}, v{r+q}\n" for q in range(n))
        o += f"v_or_b32 v{r}, v{r}, v{r+1}\n" + (f"v_or3_b32 v{r}, v{r}, v{r+2}, v{r+3}\n" if n == 4 else "")
        return o + f"v_cmp_ne_u32 vcc, 0, v{r}\ns_cbranch_vccz {done}"
    A(f"s_mov_b32 s{cnt}, {SPIN}")
    if preissued: A(chk())
    A(f"{lab}:\nbuffer_load_dwordx{n} {v(r,n)}, v{va}, s[24:27], 0 offen{SC}\ns_waitcnt vmcnt(0)")
    A(chk())
    spin_tail(A, lab, done, cnt, slp)
def poll4(A, va, r, cnt, preissued=False): polln(A, 4, va, r, cnt, preissued)
def poll2w(A, va, r, cnt): polln(A, 2, va, r, cnt)

def role_idle(A):
    if CFG["prio"]: A(f"s_setprio {CFG['iprio']}")
    QX, QO = 64, 128
    A(f"""
    s_mul_i32 s68, s{S_X}, 12
    s_add_u32 s68, s68, s{S_J}
    s_mul_i32 s90, s68, 20480
    s_mul_i32 s89, s{S_WAVE}, 2560
    s_add_u32 s90, s90, s89
    s_mov_b32 s6, {WD_BYTES}
    s_mov_b32 s7, 0x20000
    v_lshrrev_b32 v61, 5, v0                ; row&1
    v_and_b32 v62, 31, v0
    v_lshlrev_b32 v62, 4, v62               ; piece*16
    v_mul_u32_u24 v56, 1280, v61
    v_add_u32 v56, v56, v62
    """)
    kwait(A)
    if CFG["dlyI"]: A(f"s_sleep {CFG['dlyI']}")
    A(f"s_mov_b64 s[4:5], s[{P_WD}:{P_WD+1}]")
    for q in range(2):
        p8_load(A, QX+12*q, 4, "s90", CFG["wdmod"])
        if q == 0: A("s_add_u32 s90, s90, 10240")
    p8_addr(A)
    srd(A, 8, P_WS, WS_WD, WD_BYTES)
    srd(A, 24, P_WS, 0, FL_BYTES)
    A(f"""
    v_lshlrev_b32 v40, 7, v0
    v_min_u32 v41, 19, v0
    s_mul_i32 s70, s{S_X}, {20*128}
    s_add_u32 s70, s70, {F_A}
    v_lshl_add_u32 v41, v41, 7, s70
    s_mul_i32 s70, s{S_WAVE}, {24*128}
    s_add_u32 s70, s70, {F_WD}
    v_min_u32 v42, 23, v0
    v_lshl_add_u32 v42, v42, 7, s70
    s_lshl_b32 s78, s68, 7
    s_add_u32 s78, s78, {F_WD}
    s_lshr_b32 s90, s68, 1
    s_lshl_b32 s90, s90, 10
    s_and_b32 s70, s68, 1
    s_lshl_b32 s70, s70, 9
    s_add_u32 s90, s90, s70
    s_mul_i32 s70, s{S_WAVE}, {4*49152}
    s_add_u32 s90, s90, s70
    """)
    for q in range(2):
        A(f"s_waitcnt vmcnt({3*(1-q)})")
        p8_write(A, QX+12*q, q)
    tsn(A, 'p')
    A("s_waitcnt lgkmcnt(0)\ns_barrier")
    for q in range(2):
        A(f"s_add_u32 s91, s90, {q*256}")
        p8_out(A, QO+12*q, q, 8, 91, 60, 16*49152)
    tsn(A, 'y')
    mk_tag(A)
    A("s_waitcnt vmcnt(0)\ns_barrier")
    publish(A, 24, 78, 16, 61)
    if CFG["prio"]: A("s_setprio 0")
    tsn(A, 's')
    if "idle" in CFG["skip"]: A("s_branch L_done")
    if CFG["nTA"] or CFG["y"] == "z" or not (CFG["waitT"] or CFG["y"]):
        if CFG["dlyW"]: A(f"s_sleep {CFG['dlyW']}")
        poll(A, 24, 16, 42, 72, slp=CFG["slpI"])
        A("s_barrier")
        tsn(A, 'k')
        for k in range(CFG["nTA"]):
            touch(A, k, 237, 40, True)
            A("s_waitcnt vmcnt(0)")
    if CFG["y"] and CFG["y"] != "z":
        tsn(A, 'u')
        return
    if CFG["waitT"] and not CFG["y"]:
        nw = A.label("nw")
        A(f"s_cmp_lg_u32 s{S_WAVE}, 0\ns_cbranch_scc1 {nw}")
        poll(A, 24, 16, 41, 72, slp=CFG["slpI"])
        A(f"{nw}:\ns_barrier")
    A("s_mov_b32 s0, 0")
    tsn(A, 'u')

C1 = -2.0 * LOG2E * 0.7978845608028654
C2 = C1 * 0.044715
def role_g1(A0):
    def A(x):
        for l in x.split("\n"):
            t = l.strip()
            if "g1m" in CFG["skip"] and t.startswith("v_mfma"): l = "s_nop 7\ns_nop 7\ns_nop 7\ns_nop 5"
            if "g1r" in CFG["skip"] and t.startswith("ds_read"): l = "s_nop 0"
            if "g1n" in CFG["skip"] and t.startswith("v_mfma"): l = "s_nop 0"
            if "g1b" in CFG["skip"] and t.startswith("s_barrier"): l = "s_nop 0"
            if "g1e" in CFG["skip"] and (t.startswith("v_exp") or t.startswith("v_rcp") or t.startswith("v_fmaak") or t.startswith("v_mul_f32") or t.startswith("v_add_f32")): continue
            if "g1d" in CFG["skip"] and t.startswith("buffer_load") and t.endswith("lds") and "v10," in t: continue
            A0(l)
    A.label = A0.label
    split = CFG["split"]
    st = [sum(split[:i]) for i in range(5)]
    assert sum(split) == 32 and min(split) >= 4 and max(split) <= 9
    pack_c0 = sum(st[i] << (6*i) for i in range(5)); pack_nc = sum(split[i] << (6*i) for i in range(5))
    sline, sc0, snc, srot, sflag = 69, 68, 79, 72, 91
    AR, ACC0, BR = 96, 64, 32
    RS, RA, KBAR = 8, CFG['ra'], CFG['kbar']
    SB = 80
    VW, VX0, VX1, VT0, VT1 = 28, 29, 30, 14, 15
    VTOUCH, VHINT, VZ = 31, 13, 1
    if CFG["prio"]: A("s_setprio 2")
    A(f"""
    s_mul_i32 s68, s{S_J}, 43
    s_lshr_b32 s68, s68, 8               ; slot = j/6
    s_mul_i32 s69, s68, 6
    s_sub_u32 s69, s{S_J}, s69           ; j%6
    s_and_b32 s70, s{S_X}, 1             ; half
    s_add_u32 s72, s68, s69
    s_lshl_b32 s72, s72, 1
    s_add_u32 s72, s72, s70
    s_cmp_eq_u32 s69, 5
    s_cselect_b32 s12, 0x8000000, 0
    s_addc_u32 s72, s72, 0
    s_mul_i32 s73, s70, 5
    s_add_u32 s73, s73, s68
    s_mul_i32 s{sflag}, s73, {24*128}
    s_lshr_b32 s71, s{S_X}, 1            ; q
    s_mul_i32 s73, s71, 6
    s_add_u32 s69, s69, s73              ; line
    s_lshl_b32 s73, s69, 7
    s_add_u32 s{sflag}, s{sflag}, s73
    s_add_u32 s20, s{sflag}, {F_T}
    s_add_u32 s{sflag}, s{sflag}, {F_H}
    s_mul_i32 s73, s68, 6
    s_lshr_b32 s79, {pack_nc}, s73
    s_and_b32 s79, s79, 63               ; nc
    s_cmp_eq_u32 s79, 9
    s_cselect_b32 s0, s12, 0
    s_mul_i32 s14, s68, 5
    s_mul_i32 s15, s71, 3
    s_add_u32 s14, s14, s15
    s_cmp_lg_u32 s0, 0
    s_cselect_b32 s72, s14, s72
    s_lshr_b32 s68, {pack_c0}, s73
    s_and_b32 s68, s68, 63
    s_lshl_b32 s70, s70, 5
    s_add_u32 s68, s68, s70              ; c0
    s_mul_i32 s70, s72, 205
    s_lshr_b32 s70, s70, 11
    s_mul_i32 s70, s70, 10
    s_sub_u32 s72, s72, s70              ; rot
    s_lshl_b32 s71, s71, 1
    s_cmp_ge_u32 s71, s79
    s_cselect_b32 s13, 0x8000000, s12
    s_cselect_b32 s70, s79, 0
    s_sub_u32 s14, s71, s70              ; o0
    s_add_u32 s71, s71, 1
    s_cmp_ge_u32 s71, s79
    s_cselect_b32 s12, 0x8000000, s12
    s_cmp_lg_u32 s0, 0
    s_cselect_b32 s14, 8, s14
    s_cselect_b32 s13, 0, s13
    s_add_u32 s15, s14, 1
    s_cmp_eq_u32 s15, s79
    s_cselect_b32 s15, 0, s15            ; o1
    s_add_u32 s21, s15, 1
    s_cmp_eq_u32 s21, s79
    s_cselect_b32 s21, 0, s21            ; o2
    s_mul_i32 s21, s21, 40960
    s_mul_i32 s22, s79, 40960
    v_lshrrev_b32 v1, 3, v0                 ; lane>>3
    v_and_b32 v13, 7, v0                    ; chunk
    s_lshr_b32 s70, s{S_WAVE}, 1
    s_lshl_b32 s70, s70, 3
    v_add_u32 v16, s70, v1
    v_mul_u32_u24 v{VW}, 3072, v16
    v_bfe_u32 v17, v0, 4, 1
    s_and_b32 s70, s{S_WAVE}, 1
    s_lshl_b32 s70, s70, 2
    v_lshl_or_b32 v17, v17, 1, s70          ; swz
    v_xor_b32 v17, v17, v13
    v_lshl_add_u32 v{VW}, v17, 4, v{VW}
    s_lshl_b32 s71, s{sline}, 7
    v_add_u32 v{VW}, s71, v{VW}             ; W voffset
    s_lshl_b32 s70, s{S_WAVE}, 3
    v_add_u32 v{VX0}, s70, v1
    v_bfe_u32 v17, v{VX0}, 1, 3             ; swz
    v_xor_b32 v17, v17, v13
    v_mul_u32_u24 v{VX0}, 1280, v{VX0}
    v_lshl_add_u32 v{VX0}, v17, 4, v{VX0}
    s_mul_i32 s73, s{sc0}, 40960
    v_add_u32 v13, s73, v{VX0}
    s_mul_i32 s70, s14, 40960
    v_add_u32 v{VX0}, s70, v13
    s_mul_i32 s70, s15, 40960
    v_add_u32 v{VX1}, s70, v13
    s_lshl_b32 s74, s{S_WAVE}, 10           ; m0 base
    """)
    for b in range(10):
        A(f"s_lshl_b32 s{SB+b}, s72, 7\ns_add_u32 s72, s72, 1\ns_cmp_ge_u32 s72, 10\ns_cselect_b32 s72, 0, s72")
    A(f"""
    s_mov_b32 s90, 40960
    s_sub_u32 s75, s{snc}, 2
    v_add_u32 v10, s21, v13
    v_bfe_u32 v16, v0, 4, 1                 ; mat
    v_lshrrev_b32 v17, 5, v0                ; h
    v_bfe_u32 v18, v0, 2, 2                 ; r
    v_and_b32 v19, 1, v0                    ; c&1
    v_bfe_u32 v20, v0, 1, 1                 ; c>>1
    s_lshl_b32 s70, s{S_WAVE}, 1
    v_or_b32 v19, s70, v19                  ; chunk
    v_and_b32 v21, 2, v18
    v_lshl_or_b32 v21, v16, 2, v21          ; swz
    v_xor_b32 v19, v19, v21
    v_lshl_add_u32 v22, v17, 1, v16         ; mat + 2h
    v_lshlrev_b32 v{VT0}, 10, v22
    v_lshl_add_u32 v{VT0}, v18, 7, v{VT0}
    v_lshl_add_u32 v{VT0}, v19, 4, v{VT0}
    v_lshl_add_u32 v{VT0}, v20, 3, v{VT0}
    v_add_u32 v{VT1}, s90, v{VT0}
    v_and_b32 v16, 31, v0                   ; n
    v_bfe_u32 v18, v0, 1, 3                 ; (n>>1)&7
    v_xor_b32 v18, v18, v17
    v_lshlrev_b32 v2, 7, v16
    v_lshl_add_u32 v2, v18, 4, v2
    v_xor_b32 v3, 32, v2
    v_xor_b32 v4, 64, v2
    v_xor_b32 v5, 96, v2
    v_add_u32 v6, s90, v2
    v_add_u32 v7, s90, v3
    v_add_u32 v8, s90, v4
    v_add_u32 v9, s90, v5
    v_bfe_u32 v18, v0, 4, 1                 ; n>>4
    v_mul_u32_u24 v11, 49152, v18
    s_and_b32 s70, s{S_WAVE}, 1
    s_lshl_b32 s70, s70, 1
    v_add_u32 v18, s70, v17                 ; 2(w&1)+h
    v_lshlrev_b32 v18, 4, v18
    v_and_or_b32 v18, v0, 15, v18
    v_lshl_add_u32 v11, v18, 4, v11
    s_lshl_b32 s78, s{sline}, 1
    s_lshr_b32 s70, s{S_WAVE}, 1
    s_add_u32 s78, s78, s70
    s_lshl_b32 s78, s78, 10
    s_mul_i32 s70, s{sc0}, 98304
    s_add_u32 s28, s78, s70
    s_mul_i32 s70, s{snc}, 98304
    s_add_u32 s29, s28, s70
    s_mul_i32 s70, s14, 98304
    s_add_u32 s78, s28, s70
    v_mov_b32 v12, {fbits(C2)}
    v_mov_b32 v{VZ}, 0
    s_mov_b32 s10, {640*3072}
    s_mov_b32 s11, 0x20000
    s_mov_b32 s6, {X_BYTES}
    s_mov_b32 s7, 0x20000
    s_mul_i32 s73, s{SB}, 1536
    s_mov_b32 m0, s74
    """)
    if CFG.get("wcont"):
        A(f"""
        s_lshr_b32 s70, s{S_WAVE}, 1
        s_lshl_b32 s70, s70, 10
        s_mul_i32 s71, s{sline}, 81920
        s_add_u32 s70, s70, s71
        v_lshl_add_u32 v{VW}, v0, 4, s70
        s_mul_i32 s73, s{SB}, 64
        """)
    kwait(A)
    A(f"""
    s_bitcmp1_b32 s{S_WAVE}, 0
    s_cselect_b32 s8, s{P_WU}, s{P_WG}
    s_cselect_b32 s9, s{P_WU+1}, s{P_WG+1}
    """)
    XL = CFG["xl"]
    V2 = CFG["p1"] == 2
    steps = []
    for b in range(10):
        stp = [("W", b, ks) for ks in range(4)] + [("X0", b, 0)]
        if b in (XL, XL+1): stp.append(("X1", b-XL, 0))
        if b >= 6: stp.append(("X1", b-4, 0))
        steps.append(stp)
    steps.append([("X1", b, 0) for b in range(6, 10)])
    seq = [p for stp in steps for p in stp]
    assert len(seq) == 60
    stepof = {p: s_ for s_, stp in enumerate(steps) for p in stp}
    if V2:
        xs = [p for p in seq if p[0] != "W"]
        page = {p: 8 + i % 12 for i, p in enumerate(xs)}
        prev = {p: xs[i-12] for i, p in enumerate(xs) if i >= 12}
        for b in range(10):
            for ks in range(4): page[("W", b, ks)] = 4*(b & 1) + ks
        fin = {}
        for p in seq: fin[page[p]] = stepof[p] + 1
        PM = sorted(range(20), key=lambda q: (fin[q], q < 8, q))
    else:
        page = {p: i % 20 for i, p in enumerate(seq)}
        PM = list(range(20))
    for g in range(4):
        for kb in range(5): seq.append(("M", g, kb)); page[("M", g, kb)] = PM[5*g+kb]
    adv_ops = ["s_add_u32 s21, s21, s90", "s_cmp_eq_u32 s21, s22", "s_cselect_b32 s21, 0, s21",
               "s_sub_u32 s75, s75, 1", "s_cmp_gt_i32 s75, 0", "s_cselect_b32 s76, s21, 0x8000000", "v_add_u32 v10, s76, v13"]
    def piece(i):
        p = seq[i]; pg = page[p]
        pre = []
        if p[0] == "W":
            if p[2] == 0: pre.append(f"s_mul_i32 s73, s{SB+p[1]}, {64 if CFG.get('wcont') else 1536}")
            else: pre.append(f"s_add_u32 s73, s73, {2048 if CFG.get('wcont') else 49152}")
            if V2: return pre, [f"buffer_load_dwordx4 {v(AR+16*p[1]+4*p[2],4)}, v{VW}, s[8:11], s73 offen{CFG['wmod']}"]
            iss = [f"buffer_load_dwordx4 v{VW}, s[8:11], s73 offen{CFG['wmod']} lds"]
        elif p[0] in ("X0", "X1"):
            iss = [f"buffer_load_dwordx4 v{VX0 if p[0] == 'X0' else VX1}, s[4:7], s{SB+p[1]} offen{CFG['umod']} lds"]
        else:
            iss = [f"buffer_load_dwordx4 v10, s[4:7], s{SB+5*(p[1]&1)+p[2]} offen{CFG['umod']} lds"]
            if (p[1] & 1) and p[2] == 4: iss += adv_ops
        pre.append(f"s_add_u32 m0, s74, {pg*4096}")
        return pre, iss
    vm = []
    def wait_for(npieces):
        pos = vm.index(npieces - 1)
        n = len(vm) - 1 - pos
        assert n <= 63
        return n
    ust = []
    def can_issue(i, s_):
        if i >= 76: return False
        p = seq[i]
        if p[0] == "M": return fin[page[p]] <= s_
        wn = CFG["win"]
        if isinstance(wn, tuple):
            if stepof[p] > (wn[s_+1] if s_ + 1 < len(wn) else 99): return False
        elif stepof[p] > s_ + wn: return False
        if p[0] == "W": return p[1] < 9 or (s_ >= XL + 2 and not ust)
        return p not in prev or stepof[prev[p]] + 1 <= s_
    n0 = 20
    if V2:
        n0 = 0
        while can_issue(n0, -1): n0 += 1
    for i in range(n0):
        pre, iss = piece(i)
        if i == 0: pre = []
        for o in pre + iss: A(o)
        vm.append(i)
        if i == 0:
            A(f"s_mov_b32 s4, s{P_U}\ns_mov_b32 s5, s{P_U+1}")
        if i == 5:
            srd(A, 16, P_WS, WS_H, H_BYTES); srd(A, 24, P_WS, 0, FL_BYTES)
    UH, USO = AR + 144, (23, 30, 31, 77)
    srd(A, 32, P_WS, WS_UT, UT_BYTES)
    A(f"""
    v_bfe_u32 v16, v0, 2, 2                 ; r
    s_lshl_b32 s70, s{S_WAVE}, 3
    v_add_u32 v17, s70, v16                 ; row
    v_bfe_u32 v18, v17, 1, 3                ; swizzle
    v_lshrrev_b32 v19, 4, v0
    v_bfe_u32 v20, v0, 1, 1
    v_lshl_or_b32 v19, v19, 1, v20          ; chunk
    v_xor_b32 v18, v18, v19
    v_lshlrev_b32 v17, 7, v17
    v_lshl_add_u32 v17, v18, 4, v17
    v_and_b32 v20, 1, v0
    v_lshl_add_u32 v18, v20, 3, v17         ; tokens 0..3
    v_xor_b32 v19, 32, v18
    v_add_u32 v19, 512, v19                 ; tokens 4..7
    v_lshlrev_b32 v17, 4, v0
    v_add_u32 v20, s74, v17                 ; lds address of this lane inside a page
    """)
    NINE = max(split) == 9
    if NINE:
        assert XL == 2
        A(f"""
        s_cmp_lg_u32 s0, 0
        s_mov_b32 s70, {page[("X1", 0, 0)]*4096}
        s_cmov_b32 s70, {page[("X0", 2, 0)]*4096}
        v_add_u32 v21, s70, v18
        v_add_u32 v22, s70, v19
        """)
    for c in range(2):
        A(f"""
        s_add_u32 s70, s{sc0}, s{14+c}
        s_lshl_b32 s70, s70, 2
        s_add_u32 s70, s70, s{S_WAVE}
        s_mul_i32 s70, s70, {UT_CH}
        s_add_u32 s70, s70, s{13-c}
        """)
        for b in range(2): A(f"s_lshl_b32 s71, s{SB+b}, 3\ns_add_u32 s{USO[2*c+b]}, s70, s71")
        if NINE and c == 0: A(f"s_lshl_b32 s71, s{SB+2}, 3\ns_add_u32 s76, s70, s71")
    if NINE: A(f"s_cmp_lg_u32 s0, 0\ns_cselect_b32 s{USO[2]}, s76, s{USO[2]}")
    duty = {0: ("X0", 0, 0), 1: ("X0", 1, 1), XL: ("X1", 0, 2), XL+1: ("X1", 1, 3)}
    ust += [f"buffer_store_dwordx4 {v(UH+4*k,4)}, v17, s[32:35], s{USO[k]} offen{CFG['usc']}" for k in range(4)]
    upos = None; upub = False
    def epi_ops(acc):
        ops = []
        T = 16
        for g0 in (0, 4):
            E = range(g0, g0+4)
            ops += [f"v_mul_f32 v{T+e-g0}, v{acc+e}, v{acc+e}" for e in E]
            ops += [f"v_mul_f32 v{acc+8+e}, v{acc+e}, v{acc+8+e}" for e in E]
            ops += [f"v_fmaak_f32 v{T+e-g0}, v12, v{T+e-g0}, {fbits(C1)}" for e in E]
            ops += [f"v_mul_f32 v{T+e-g0}, v{T+e-g0}, v{acc+e}" for e in E]
            ops += [f"v_exp_f32 v{T+e-g0}, v{T+e-g0}" for e in E]
            ops += [f"v_add_f32 v{T+e-g0}, 1.0, v{T+e-g0}" for e in E]
            ops += [f"v_rcp_f32 v{T+e-g0}, v{T+e-g0}" for e in E]
            ops += [f"v_mul_f32 v{acc+8+e}, v{acc+8+e}, v{T+e-g0}" for e in E]
            ops += [f"v_cvt_pk_bf16_f32 v{24+(g0>>1)+p}, v{acc+8+g0+2*p}, v{acc+8+g0+2*p+1}" for p in range(2)]
        ops.append(f"buffer_store_dwordx4 v[24:27], v11, s[16:19], s78 offen{CFG['hsc']}")
        ops.append("s_add_u32 s78, s78, 98304\ns_cmp_eq_u32 s78, s29\ns_cselect_b32 s78, s28, s78")
        return ops
    def wgt(o): return 2.0 if ("v_exp" in o or "v_rcp" in o) else (0.0 if o.startswith("s_") else 1.0)
    def bread_at(pg, ks, slot):
        return f"ds_read_b128 {v(BR+4*(slot%RS),4)}, v{2+4*(pg>=10)+ks} offset:{(pg%10)*4096}"
    mf = []
    for s_, stp in enumerate(steps):
        L0 = [(0, 4*b+ks, page[(n, b, 0)], ks) for (n, b, _) in stp if n == "X0" for ks in range(4)]
        L1 = [(1, 4*b+ks, page[(n, b, 0)], ks) for (n, b, _) in stp if n == "X1" for ks in range(4)]
        if L0 and L1: L = [x for pr in zip(L0, L1) for x in pr]
        else: L = L0 + L1
        mf.append(L)
    allm = [m for L in mf for m in L]
    def frag_read(j):
        if j < 80: return bread_at(allm[j][2], allm[j][3], j)
        jj = j - 80
        return bread_at(PM[jj >> 2], jj & 3, j)
    nissued = n0; rd = 0; mi = 0
    E = 0
    started = [False, False]
    def emit(o):
        A(o)
        if o.startswith("buffer_store"): vm.append(None)
    def wput(b, ks):
        i = seq.index(("W", b, ks))
        A(f"s_waitcnt vmcnt({wait_for(i+1)})\nds_write_b128 v20, {v(AR+16*b+4*ks,4)} offset:{page[('W', b, ks)]*4096}")
    if V2:
        for ks in range(4): wput(0, ks)
    for s_ in range(12):
        if s_ <= 10:
            E += len(steps[s_])
            A(f"s_waitcnt vmcnt({wait_for(E)}) lgkmcnt(0)\ns_barrier")
            if s_ == 0: ts(A, 1)
            if upos is not None and not upub and len(vm) - wait_for(E) > upos:
                mk_tag(A); publish(A, 24, 20, 31, VZ); upub = True
                ts(A, 4)
            trs = []
            if s_ in duty:
                n, b, k = duty[s_]; pg = page[(n, b, 0)]
                assert pg <= 15
                if NINE and k == 2: trs += [f"ds_read_b64_tr_b16 {v(UH+4*k+2*t,2)}, v{21+t}" for t in range(2)]
                else: trs += [f"ds_read_b64_tr_b16 {v(UH+4*k+2*t,2)}, v{18+t} offset:{pg*4096}" for t in range(2)]
            for (n, b, ks) in steps[s_]:
                if n == "W":
                    pg = page[(n, b, ks)]
                    for hh in range(2):
                        trs.append(f"ds_read_b64_tr_b16 {v(AR+16*b+4*ks+2*hh,2)}, v{VT1 if pg >= 10 else VT0} offset:{(pg%10)*4096 + hh*512}")
            ndma = len(steps[s_-1]) if s_ else 0
            rlim = sum(len(mf[i]) for i in range(s_+1))
        else:
            trs = []; ndma = 0
        ms = mf[s_-1] if s_ else []
        if V2: dm = []
        else:
            dm = list(range(nissued, nissued + ndma)); nissued += ndma
        def nxt():
            nonlocal nissued
            if not V2: return dm.pop(0) if dm else None
            if s_ <= 10 and can_issue(nissued, s_):
                nissued += 1
                return nissued - 1
            return None
        wp = [(s_+1, ks) for ks in range(4)] if (V2 and s_ + 1 <= 9) else []
        last = (s_ == 11)
        ops = epi_ops(ACC0) if last else []
        tot = sum(wgt(o) for o in ops); oi = 0; done = 0.0
        def rd_more(limit, maxn):
            nonlocal rd
            n = 0
            while rd < limit and rd < mi + RS and n < maxn:
                A(frag_read(rd)); rd += 1; n += 1
        if not ms:
            rd_more(rlim, 99)
            for o in trs: A(o)
            trs = []
        elif not last: rd_more(rlim, 99)
        for k, (ac, kidx, pg, ks) in enumerate(ms):
            acc = ACC0 + 16*ac
            pi = nxt()
            pre, iss = piece(pi) if pi is not None else ([], [])
            for o in pre: A(o)
            if last: A(f"s_waitcnt lgkmcnt({min(15, rd - mi - 1)})")
            A(f"v_mfma_f32_32x32x16_bf16 {v(acc,16)}, {v(AR+4*kidx,4)}, {v(BR+4*(mi%RS),4)}, {v(acc,16) if started[ac] else 0}")
            started[ac] = True; mi += 1
            if last:
                if k == 12:
                    A(f"s_waitcnt vmcnt({wait_for(65)}) lgkmcnt(0)\ns_barrier")
                lim = 80 if k < 12 else 80 + RA
                rd_more(min(lim, mi + (RS if k < 12 else RA)), 3)
                if k >= 1:
                    tgt = tot * k / 14.0
                    while oi < len(ops) and done < tgt:
                        emit(ops[oi]); done += wgt(ops[oi]); oi += 1
            else:
                rd_more(rlim, 1)
                ntr = -(-len(trs) // max(1, (len(ms) - k) if not V2 else (len(ms)//2 - k)))
                for _ in range(min(ntr, len(trs))): A(trs.pop(0))
            for o in iss: A(o)
            if pi is not None: vm.append(pi)
            if s_ == XL + 2 and ust and not CFG["uend"]:
                A(ust.pop(0)); vm.append(None)
                if not ust: upos = len(vm) - 1
            if wp and k >= len(ms) - CFG["wlast"]: wput(*wp.pop(0))
        while True:
            pi = nxt()
            if pi is None: break
            pre, iss = piece(pi)
            for o in pre + iss: A(o)
            vm.append(pi)
        if s_ == XL + 1 + CFG["uend"]:
            while ust:
                A(ust.pop(0)); vm.append(None); upos = len(vm) - 1
        while wp: wput(*wp.pop(0))
        while oi < len(ops):
            emit(ops[oi]); oi += 1
    assert rd == 80 + RA and mi == 80 and nissued == 76 and upub, (rd, mi, nissued)
    ts(A, 2)
    tails = [A.label("g1tail"), A.label("g1tail")]
    A(f"s_sub_u32 s{snc}, s{snc}, 2\ns_cmp_eq_u32 s{snc}, 0\ns_cbranch_scc1 {tails[1]}")
    top = A.label("g1top")
    A(f"{top}:")
    cnt = RA
    for P in range(2):
        acc = ACC0 + 16*P
        ops = epi_ops(ACC0 + 16*(P ^ 1))
        tot = sum(wgt(o) for o in ops); oi = 0; done = 0.0
        issued = RA
        for k in range(40):
            kk = k % 20; stg = k // 20
            gs = 2*P + stg
            pi = None
            if kk == KBAR: pi = 60 + 5*gs
            elif kk in (0, 4, 8, 12): pi = 60 + 5*((gs - 1) & 3) + 1 + kk // 4
            pre, iss = piece(pi) if pi is not None else ([], [])
            for o in pre: A(o)
            A(f"s_waitcnt lgkmcnt({issued - k - 1})")
            A(f"v_mfma_f32_32x32x16_bf16 {v(acc,16)}, {v(AR+4*k,4)}, {v(BR+4*((40*P+k)%RS),4)}, {v(acc,16) if k else 0}")
            if kk == KBAR:
                A("s_waitcnt vmcnt(10) lgkmcnt(0)\ns_barrier")
            lim = 20*(stg+1) if kk < KBAR else 99
            n = 0
            while issued < min(k + 1 + RA, lim) and n < 3:
                j = (40*P + issued) % 80
                A(bread_at(PM[j >> 2], j & 3, cnt)); cnt += 1; issued += 1; n += 1
            for o in iss: A(o)
            if k >= 1:
                tgt = tot * k / 38.0
                while oi < len(ops) and done < tgt:
                    A(ops[oi]); done += wgt(ops[oi]); oi += 1
        while oi < len(ops):
            A(ops[oi]); oi += 1
        A(f"s_sub_u32 s{snc}, s{snc}, 1\ns_cmp_eq_u32 s{snc}, 0\ns_cbranch_scc1 {tails[P]}" if P == 0 else
          f"s_sub_u32 s{snc}, s{snc}, 1\ns_cmp_lg_u32 s{snc}, 0\ns_cbranch_scc1 {top}")
    end = A.label("g1end")
    for P in (1, 0):
        A(f"{tails[P]}:")
        if CFG["y"]:
            A(f"""
            s_waitcnt lgkmcnt(0)
            s_mul_i32 s70, s{S_WAVE}, {24*128}
            s_add_u32 s70, s70, {F_WD}
            v_min_u32 v42, 23, v0
            v_lshl_add_u32 v42, v42, 7, s70
            buffer_load_dword v43, v42, s[24:27], 0 offen{SC}
            s_nop 4
            """)
        else: A("s_nop 8")
        for o in epi_ops(ACC0 + 16*P): A(o)
        if P == 1: A(f"s_branch {end}")
    A(f"{end}:")
    if CFG["y"] == "z":
        zz = A.label("g1z")
        A(f"s_cmp_ge_u32 s{S_J}, 12\ns_cbranch_scc1 {zz}\ns_waitcnt vmcnt(0) lgkmcnt(0)\ns_barrier")
        publish(A, 24, sflag, 31, VZ)
        ts(A, 3)
        A(f"s_branch L_done\n{zz}:")
    if CFG["y"]:
        ts(A, 3)
        A(f"s_mov_b32 s0, s{sflag}\ns_waitcnt vmcnt(1)")
        poll(A, 24, 43, 42, 72, preissued=True, slp=CFG["slpI"])
        if CFG["prio"]: A(f"s_setprio {CFG['gprio']}")
        return
    A(f"s_waitcnt vmcnt(0) lgkmcnt(0)\ns_barrier")
    publish(A, 24, sflag, 31, VZ)
    if CFG["prio"]: A("s_setprio 0")
    ts(A, 3)

def cmul(r, x, y, t, conj_out=False, pk=True):
    if pk:
        i1 = f"v_pk_mul_f32 {v(t,2)}, {v(x,2)}, {v(y,2)} op_sel_hi:[0,1]"
        i2 = f"v_pk_fma_f32 {v(r,2)}, {v(x,2)}, {v(y,2)}, {v(t,2)} op_sel:[1,1,0] op_sel_hi:[1,0,1] neg_lo:[0,1,0]"
        if conj_out: i2 += " neg_hi:[0,1,1]"
        return [i1, i2]
    o = [f"v_mul_f32 v{t}, v{x+1}, v{y+1}", f"v_mul_f32 v{t+1}, v{x+1}, v{y}"]
    if r == x or r == y:
        assert r == x and r != y
        o += [f"v_fma_f32 v{r+1}, v{x}, v{y+1}, v{t+1}" if not conj_out else f"v_fma_f32 v{r+1}, -v{x}, v{y+1}, -v{t+1}",
              f"v_fma_f32 v{r}, v{x}, v{y}, -v{t}"]
    else:
        o += [f"v_fma_f32 v{r+1}, v{x}, v{y+1}, v{t+1}" if not conj_out else f"v_fma_f32 v{r+1}, -v{x}, v{y+1}, -v{t+1}",
              f"v_fma_f32 v{r}, v{x}, v{y}, -v{t}"]
    return o

def interleave(*streams):
    out = []; idx = [0]*len(streams); tot = sum(len(x) for x in streams)
    while len(out) < tot:
        best = min((idx[i]/len(x), i) for i, x in enumerate(streams) if idx[i] < len(x))[1]
        out.append(streams[best][idx[best]]); idx[best] += 1
    return out

def role_ssm(A):
    sq = 68
    TB = 5760
    VKW, VKL, VKH = 241, 158, 159
    TBL, CS, MB = 5760, 1984, 9856
    C1_ = CS + 2
    WM = 216
    VF0, VF1, VG, VWA, VWB, VMW, VMR, VOUT = 243, 244, 245, 246, 249, 248, 250, 247
    PK = CFG["pk"]
    st_ = [sum(CFG["split"][:i]) for i in range(5)]
    sl_ = [max(q for q in range(5) if st_[q] <= c) for c in range(32)]
    LS = [sum(sl_[16*h+c] << (4*c) for c in range(16)) for h in range(2)]
    LQ = [sum((((16*h + c - st_[sl_[16*h+c]]) >> 1) & 3) << (2*c) for c in range(16)) for h in range(2)]
    LX = [sum((16*h + c - st_[sl_[16*h+c]] == 8) << c for c in range(16)) for h in range(2)]
    KA = 48
    FA, FB = 64, 96
    if CFG["prio"]: A(f"s_setprio 3")
    A(f"""
    s_lshl_b32 s70, s{sq}, 2
    s_add_u32 s70, s70, s{S_WAVE}           ; channel d
    s_mul_i32 s71, s70, 384
    s_lshl_b32 s72, s70, 1
    v_lshlrev_b32 v1, 2, v0
    v_lshlrev_b32 v2, 1, v0
    v_mov_b32 v3, 0
    s_mul_i32 s76, s{S_WAVE}, 20480         ; wave lds base
    s_mov_b32 m0, s76
    s_add_u32 s78, s76, {TBL}
    """)
    for d in (8, 12, 16, 20): A(f"s_mov_b32 s{d+2}, {640*384}\ns_mov_b32 s{d+3}, 0x20000")
    for d in (4, 32): A(f"s_mov_b32 s{d+2}, 1280\ns_mov_b32 s{d+3}, 0x20000")
    A("""
    v_and_b32 v45, 15, v0                   ; lane & 15
    v_lshrrev_b32 v40, 4, v0                ; g
    v_lshlrev_b32 v41, 3, v40               ; 8g
    v_sub_u32 v42, v41, v45
    v_add_u32 v42, 16, v42
    v_min_u32 v42, 31, v42
    """)
    BANDS = [(11, 13), (3, 5), (6, 10), (5, 11), (4, 12), (12, 13)]
    def band(q):
        lo, hi = BANDS[q]
        A(f"s_mov_b32 s79, {(((1 << (hi-lo+1)) - 1) << lo) << 16}\nv_lshrrev_b32 v43, v42, s79")
        for r in range(4):
            A(f"v_bfe_u32 v44, v43, {2*r}, 1\nv_bfe_u32 v46, v43, {2*r+1}, 1\nv_lshl_or_b32 v44, v46, 16, v44\nv_mul_u32_u24 v{WM+4*q+r}, 0x3f80, v44")
    for q in range(3): band(q)
    def params():
        pm = CFG.get("pmod", "")
        for d, p in ((4, P_DT), (8, P_LA)): A(f"s_mov_b64 s[{d}:{d+1}], s[{p}:{p+1}]")
        A(f"""
        buffer_load_ushort v16, v3, s[4:7], s72 offen
        buffer_load_dword v4, v1, s[8:11], s71 offen{pm}
        buffer_load_ushort v5, v2, s[8:11], s71 offen offset:256{pm}
        """)
        for d, p in ((12, P_AI), (16, P_CR), (20, P_CI), (32, P_DS)): A(f"s_mov_b64 s[{d}:{d+1}], s[{p}:{p+1}]")
        A(f"""
        buffer_load_dword v6, v1, s[12:15], s71 offen{pm}
        buffer_load_ushort v7, v2, s[12:15], s71 offen offset:256{pm}
        buffer_load_dword v8, v1, s[16:19], s71 offen{pm}
        buffer_load_ushort v9, v2, s[16:19], s71 offen offset:256{pm}
        buffer_load_dword v10, v1, s[20:23], s71 offen{pm}
        buffer_load_ushort v11, v2, s[20:23], s71 offen offset:256{pm}
        buffer_load_ushort v17, v3, s[32:35], s72 offen
        """)
    NINE_SSM = "" if not (LX[0] or LX[1]) else f"""
    s_bitcmp1_b32 s{S_WAVE}, 0
    s_mov_b32 s81, {LX[0]}
    s_cmov_b32 s81, {LX[1]}
    s_lshr_b32 s80, s{sq}, 4
    s_add_u32 s80, s80, 20
    v_mul_u32_u24 v43, 5, v46
    v_sub_u32 v43, s80, v43
    v_mul_u32_u24 v47, 205, v43
    v_lshrrev_b32 v47, 11, v47
    v_mul_u32_u24 v47, 10, v47
    v_sub_u32 v43, v43, v47
    v_mul_u32_u24 v43, 86, v43
    v_lshrrev_b32 v43, 8, v43
    v_mad_u32_u24 v43, v43, 6, 5
    v_lshrrev_b32 v47, v45, s81
    v_and_b32 v47, 1, v47
    v_cmp_eq_u32 vcc, 1, v47
    v_cndmask_b32 v44, v44, v43, vcc
    """
    kwait(A)
    params()
    for q in range(3, 6): band(q)
    A(f"""
    s_add_u32 s79, s76, {TB}
    v_mul_u32_u24 v14, 208, v0
    v_add_u32 v{VKW}, s79, v14
    v_bfe_u32 v14, v0, 3, 1                 ; q>>1
    v_lshrrev_b32 v15, 5, v0                ; h
    v_lshlrev_b32 v14, 3, v14
    v_lshl_add_u32 v14, v15, 1, v14
    v_mul_u32_u24 v14, 208, v14
    v_add_u32 v14, s79, v14
    v_bfe_u32 v15, v0, 2, 1                 ; comp
    v_and_b32 v43, 3, v0
    v_bfe_u32 v44, v0, 4, 1
    v_lshl_add_u32 v{VKL}, v15, 6, v14
    v_lshl_add_u32 v{VKL}, v44, 5, v{VKL}
    v_lshl_add_u32 v{VKL}, v43, 3, v{VKL}
    v_lshlrev_b32 v46, 5, v15
    v_lshl_add_u32 v46, v43, 3, v46
    v_add_u32 v46, 128, v46
    v_lshlrev_b32 v15, 3, v15
    v_add_u32 v15, 192, v15
    v_cmp_eq_u32 vcc, 1, v44
    v_cndmask_b32 v46, v46, v15, vcc
    v_add_u32 v{VKH}, v14, v46
    ; conv addresses
    v_and_b32 v43, 1, v0
    v_mul_u32_u24 v43, {C1_}, v43
    v_add_u32 v43, v43, v41
    v_lshlrev_b32 v44, 1, v45
    v_sub_u32 v43, v43, v44
    v_add_u32 v{VF0}, s78, v43
    v_add_u32 v{VF1}, 1024, v{VF0}
    v_mul_u32_u24 v43, 272, v45
    v_add3_u32 v{VG}, v43, v41, s76
    v_lshl_add_u32 v43, v45, 4, v41         ; 16k + 8g
    v_add_u32 v44, 624, v43
    v_lshrrev_b32 v46, 7, v44
    v_lshlrev_b32 v46, 4, v46
    v_lshl_add_u32 v44, v44, 1, v46
    v_add_u32 v{VWA}, s76, v44
    v_add_u32 v44, 616, v43
    v_lshrrev_b32 v46, 7, v44
    v_lshlrev_b32 v46, 4, v46
    v_lshl_add_u32 v44, v44, 1, v46
    v_add_u32 v{VWB}, s76, v44
    s_add_u32 s79, s76, {MB}
    v_mul_u32_u24 v43, 528, v45
    v_lshl_add_u32 v43, v40, 4, v43
    v_add_u32 v{VMW}, s79, v43
    v_lshrrev_b32 v43, 3, v45
    v_add_u32 v43, v43, v40
    v_lshlrev_b32 v43, 4, v43
    v_lshl_add_u32 v43, v45, 6, v43
    v_add_u32 v{VMR}, s79, v43
    v_and_b32 v41, 1, v40                   ; g&1
    v_lshrrev_b32 v42, 1, v40               ; g>>1
    v_lshlrev_b32 v{VOUT}, 5, v45
    v_lshl_add_u32 v{VOUT}, v41, 9, v{VOUT}
    v_lshl_add_u32 v{VOUT}, v42, 4, v{VOUT}
    s_bitcmp1_b32 s{S_WAVE}, 0
    s_mov_b32 s80, {LS[0] & 0xffffffff}
    s_mov_b32 s81, {LS[0] >> 32}
    s_cmov_b32 s80, {LS[1] & 0xffffffff}
    s_cmov_b32 s81, {LS[1] >> 32}
    s_mov_b32 s82, {LQ[0]}
    s_cmov_b32 s82, {LQ[1]}
    v_lshlrev_b32 v43, 2, v45
    v_lshrrev_b64 v[46:47], v43, s[80:81]
    v_and_b32 v46, 7, v46                   ; slot
    v_lshlrev_b32 v43, 1, v45
    v_lshrrev_b32 v43, v43, s82
    v_and_b32 v43, 3, v43                   ; q
    s_lshr_b32 s79, s{S_WAVE}, 1            ; half
    s_lshr_b32 s80, s{sq}, 4
    s_add_u32 s80, s80, 10
    s_sub_u32 s80, s80, s79
    v_lshlrev_b32 v44, 1, v46
    v_sub_u32 v44, s80, v44
    v_subrev_u32 v47, 10, v44
    v_min_u32 v44, v44, v47
    v_lshrrev_b32 v44, 1, v44
    v_mad_u32_u24 v44, v43, 6, v44
    {NINE_SSM}
    v_mad_u32_u24 v44, v46, 24, v44
    s_mul_i32 s79, s79, {120*128}
    s_add_u32 s79, s79, {F_T}
    v_lshl_add_u32 v44, v44, 7, s79
    s_mul_i32 s79, s{S_WAVE}, {24*128}
    s_add_u32 s79, s79, {F_WD - 16*128}
    v_min_u32 v252, 39, v0
    v_lshl_add_u32 v252, v252, 7, s79
    v_cmp_gt_u32 vcc, 16, v0
    v_cndmask_b32 v252, v252, v44, vcc
    v_lshlrev_b32 v255, 7, v0
    v_lshrrev_b32 v43, 2, v0
    v_mul_u32_u24 v253, {UT_CH}, v43
    v_and_b32 v44, 3, v0
    v_lshl_add_u32 v253, v44, 4, v253
    v_mul_u32_u24 v240, 20480, v44
    v_lshl_add_u32 v240, v43, 4, v240
    s_mul_i32 s79, s{S_WAVE}, 1088
    s_add_u32 s79, s79, 1360
    v_add_u32 v240, s79, v240               ; u lds write address
    v_mov_b32 v254, 0
    """)
    for q in range(64): A(f"v_mov_b32 v{FA+q}, 0")
    srd(A, 24, P_WS, 0, FL_BYTES)
    for q in range(16): A(f"v_mov_b32 v{KA+q}, 0")
    A("s_waitcnt vmcnt(0) lgkmcnt(0)")
    tsn(A, 'q')
    Z, C = 20, 26
    A(f"""
    v_lshlrev_b32 v16, 16, v16
    v_mul_f32 v16, {fbits(LOG2E)}, v16
    v_exp_f32 v16, v16
    v_lshlrev_b32 v{Z}, 16, v4
    v_and_b32 v{Z+2}, 0xffff0000, v4
    v_lshlrev_b32 v{Z+4}, 16, v5
    v_cvt_pk_bf16_f32 v16, v16, v16
    v_lshlrev_b32 v16, 16, v16              ; dt
    """)
    for t in range(3): A(f"v_mul_f32 v{Z+2*t}, {fbits(LOG2E)}, v{Z+2*t}")
    for t in range(3): A(f"v_exp_f32 v{Z+2*t}, v{Z+2*t}")
    A(f"""
    v_lshlrev_b32 v{Z+1}, 16, v6
    v_and_b32 v{Z+3}, 0xffff0000, v6
    v_lshlrev_b32 v{Z+5}, 16, v7
    v_cvt_pk_bf16_f32 v4, v{Z}, v{Z+2}
    v_cvt_pk_bf16_f32 v5, v{Z+4}, v{Z+4}
    v_lshlrev_b32 v{Z}, 16, v4
    v_and_b32 v{Z+2}, 0xffff0000, v4
    v_lshlrev_b32 v{Z+4}, 16, v5
    v_lshlrev_b32 v{C}, 16, v8
    v_and_b32 v{C+2}, 0xffff0000, v8
    v_lshlrev_b32 v{C+4}, 16, v9
    v_lshlrev_b32 v{C+1}, 16, v10
    v_and_b32 v{C+3}, 0xffff0000, v10
    v_lshlrev_b32 v{C+5}, 16, v11
    v_add_f32 v18, v16, v16                 ; 2 dt
    v_lshlrev_b32 v242, 16, v17             ; D skip (persist)
    """)
    for q in range(6): A(f"v_mul_f32 v{Z+q}, v16, v{Z+q}")
    for q in range(6): A(f"v_mul_f32 v{C+q}, v18, v{C+q}")
    for t in range(3):
        A(f"v_mul_f32 v{Z+2*t}, {fbits(-LOG2E)}, v{Z+2*t}\nv_mul_f32 v{Z+2*t+1}, {fbits(0.15915494309189535)}, v{Z+2*t+1}")
    E1, E256, E2, E4, E8 = 32, 34, 36, 38, 40
    def exps():
        return [
            f"v_exp_f32 v4, v{Z}", f"v_fract_f32 v5, v{Z+1}", f"v_mul_f32 v6, 0x43800000, v{Z}", f"v_mul_f32 v7, 0x43800000, v{Z+1}",
            f"v_cos_f32 v8, v5", f"v_sin_f32 v9, v5", f"v_fract_f32 v7, v7", f"v_exp_f32 v6, v6", f"v_cos_f32 v10, v7", f"v_sin_f32 v11, v7",
            f"v_mul_f32 v{E1}, v4, v8", f"v_mul_f32 v{E1+1}, v4, v9", f"v_mul_f32 v{E256}, v6, v10", f"v_mul_f32 v{E256+1}, v6, v11"]
    for o in exps(): A(o)
    mk_tag(A)
    tsn(A, 'p')
    if "kgen" in CFG["skip"]: A("s_branch L_done")
    srd(A, 4, P_WS, WS_UT, UT_BYTES)
    srd(A, 32, P_WS, WS_AT, AT_BYTES)
    srd(A, 8, P_WS, WS_WD, WD_BYTES)
    A(f"""
    s_mul_i32 s72, s{S_WAVE}, {64*UT_CH}
    s_lshl_b32 s73, s{sq}, 6
    s_add_u32 s72, s72, s73
    """)
    if CFG["prio"]: A(f"s_setprio {CFG['kprio']}")
    A("v_mov_b32 v19, 0\ns_mov_b32 s77, 3")
    def utload():
        for j in range(4):
            A(f"buffer_load_dwordx4 {v(160+4*j,4)}, v253, s[4:7], s72 offen{SC}")
            if j < 3: A(f"s_add_u32 s72, s72, {16*UT_CH}")
    top = A.label("kgen")
    A(f"{top}:")
    tsn(A, 'a')
    cm = lambda r, x, y, t, conj_out=False: cmul(r, x, y, t, conj_out, PK)
    def pair(dre, dim, x, y):
        xr, xi = (f"v{x}", f"v{x+1}") if x is not None else ("1.0", "0")
        return [f"v_cvt_pk_bf16_f32 v{dre}, {xr}, v{y}", f"v_cvt_pk_bf16_f32 v{dim}, {xi}, v{y+1}"]
    wr = lambda r, off: [f"ds_write_b128 v{VKW}, {v(r,4)} offset:{off}"]
    pre = cm(E2, E1, E1, 42) + cm(E4, E2, E2, 42) + cm(E8, E4, E4, 42, True)
    LA, LB, LT, SL = 128, 130, 132, 200
    lo = pair(SL, SL+4, None, E8)
    for i in range(2, 32, 2):
        b = SL + 8*((i//8) & 1); o = (i % 8)//2
        lo += cm(LA, LB if i > 2 else E8, E8, LT) + cm(LB, LA, E8, LT) + pair(b+o, b+4+o, LA, LB)
        if o == 3: lo += wr(b, 16*(i//8)) + wr(b+4, 64 + 16*(i//8))
    HA, HB_, HT, GA, GB, GT, S1, S3 = 134, 136, 138, 140, 142, 144, 146, 154
    hi = cm(HA, C, E1, HT) + pair(S1, S1+4, C, HA)
    for o in range(1, 4): hi += cm(HB_, HA, E1, HT) + cm(HA, HB_, E1, HT) + pair(S1+o, S1+4+o, HB_, HA)
    hi += wr(S1, 128) + wr(S1+4, 160)
    hi += cm(GA, C, E256, GT) + cm(HA, GA, E2, HT) + pair(S3, S3+2, GA, HA)
    hi += cm(HB_, HA, E2, HT) + cm(HA, HB_, E2, HT) + pair(S3+1, S3+3, HB_, HA) + wr(S3, 192)
    hi += cm(GB, GA, E256, GT) + cm(HA, GB, E4, HT) + pair(S1, S1+4, GB, HA)
    hi += cm(GA, GB, E256, GT) + cm(HA, GA, E4, HT) + pair(S1+2, S1+6, GA, HA)
    hi += cm(GB, GA, E256, GT) + cm(GA, GB, E256, GT) + pair(S1+1, S1+5, GB, GA)
    hi += cm(GB, GA, E256, GT) + cm(GA, GB, E256, GT) + pair(S1+3, S1+7, GB, GA)
    hi += wr(S1, 144) + wr(S1+4, 176)
    hi += [f"v_fma_f32 v19, v{GA}, v{E256}, v19", f"v_fma_f32 v19, -v{GA+1}, v{E256+1}, v19"]
    hi0 = hi[:CFG["hi0"]]
    st = interleave(pre, hi0) + interleave(lo, hi[len(hi0):])
    if "kw" in CFG["skip"]: st = [o for o in st if not o.startswith("ds_write")]
    if "kv" in CFG["skip"]: st = [o for o in st if o.startswith("ds_write")]
    DL = CFG["wdelay"]
    out = []; pend = []; gap = 99
    for o in st:
        if o.startswith("ds_write"): pend.append([o, DL])
        else:
            out.append(o); gap += 1
            for x in pend: x[1] -= 1
            if pend and pend[0][1] <= 0 and gap >= CFG["wsp"]: out.append(pend.pop(0)[0]); gap = 0
    out += [x[0] for x in pend]
    kmf = lambda k: f"v_mfma_f32_32x32x16_bf16 {v(KA,16)}, {v(FA+4*k,4)}, {v(FB+4*k,4)}, {v(KA,16)}"
    nw = 0; k = 0
    for n, o in enumerate(out):
        if k < 8 and n >= CFG["kmf0"] + 14*k:
            A((f"s_waitcnt lgkmcnt({min(15, nw)})\n" if k == 0 else "") + kmf(k)); k += 1
        if n == int(len(out)*CFG["fpos"]) and "poll" not in CFG["skip"]:
            nf = A.label("nf")
            A(f"s_cmp_lg_u32 s77, 1\ns_cbranch_scc1 {nf}\nbuffer_load_dword v196, v252, s[24:27], 0 offen{SC}\n{nf}:")
        A(o)
        if o.startswith("ds_write"): nw += 1
    tsn(A, 'b')
    for q in range(4): A(f"v_mov_b32 v{Z+q}, v{Z+2+q}\nv_mov_b32 v{C+q}, v{C+2+q}")
    ex = exps()
    for k in range(8):
        for t in range(2):
            off = (16*(k >> 1) + 4*(k & 1) + t)*208
            A(f"ds_read_b64_tr_b16 {v(FA+4*k+2*t,2)}, v{VKH} offset:{off}\nds_read_b64_tr_b16 {v(FB+4*k+2*t,2)}, v{VKL} offset:{off}")
            for o in ex[2*k+t:2*k+t+1]: A(o)
    tsn(A, 'd')
    for nm, val in (('1', 3), ('2', 2), ('3', 1)):
        if (nm in CFG['marks'] and CFG['dbg']) or (CFG.get("probe") and CFG["probe"][1] == nm):
            lb = A.label("cm"); A(f"s_cmp_lg_u32 s77, {val}\ns_cbranch_scc1 {lb}"); tsn(A, nm); A(f"{lb}:")
    A(f"s_sub_u32 s77, s77, 1\ns_cmp_lg_u32 s77, 0\ns_cbranch_scc1 {top}")
    if "poll" in CFG["skip"]: A("s_branch L_done")
    A("s_waitcnt vmcnt(0)")
    poll(A, 24, 196, 252, 73, preissued=True, slp=CFG["slpU"])
    utload()
    tsn(A, 'f')
    side = f"""
    v_add_f32_dpp v19, v19, v19 row_ror:8 row_mask:0xf bank_mask:0xf
    v_lshlrev_b32 v4, 4, v0
    v_add_u32 v5, s78, v4
    v_add_f32_dpp v19, v19, v19 row_ror:4 row_mask:0xf bank_mask:0xf
    v_add_u32 v4, s76, v4
    v_mov_b32 v8, 0
    v_add_f32_dpp v19, v19, v19 row_ror:2 row_mask:0xf bank_mask:0xf
    v_mov_b32 v9, 0
    v_mov_b32 v10, 0
    v_add_f32_dpp v19, v19, v19 row_ror:1 row_mask:0xf bank_mask:0xf
    v_mov_b32 v11, 0
    ds_write_b128 v5, v[8:11]
    v_add_f32_dpp v19, v19, v19 row_bcast:15 row_mask:0xa bank_mask:0xf
    ds_write_b128 v5, v[8:11] offset:1024
    v_add_f32_dpp v19, v19, v19 row_bcast:31 row_mask:0xc bank_mask:0xf
    ds_write_b128 v5, v[8:11] offset:2048
    ds_write_b128 v5, v[8:11] offset:3072
    ds_write_b128 v4, v[8:11]
    s_mov_b64 exec, 0x1fffff
    ds_write_b128 v4, v[8:11] offset:1024
    s_mov_b64 exec, -1
    v_readlane_b32 s75, v19, 63
    v_and_b32 v4, 31, v0                    ; i
    v_lshrrev_b32 v5, 5, v0                 ; h
    v_lshlrev_b32 v6, 4, v4
    v_sub_u32 v6, s78, v6                   ; base - 16 i   (seg1)
    v_lshlrev_b32 v7, 3, v5
    v_sub_u32 v7, v6, v7                    ; seg0
    v_add_u32 v12, {CS + 1084}, v7
    v_add_u32 v13, {C1_ + 566}, v6
    v_and_b32 v14, 30, v0                   ; 2 i2
    v_sub_u32 v14, s78, v14
    v_lshlrev_b32 v15, 5, v5
    v_sub_u32 v14, v14, v15                 ; base - 32h - 2 i2
    v_sub_u32 v15, v14, v15                 ; base - 64h - 2 i2
    v_and_b32 v18, 1, v0
    v_cmp_eq_u32 vcc, 1, v18
    v_mov_b32 v18, 1474
    v_mov_b32 v19, 1184
    v_mov_b32 v20, {1794 - 32}
    v_mov_b32 v24, 1280
    v_mov_b32 v25, 1376
    v_mov_b32 v26, {1632 - 32}
    v_cndmask_b32 v18, v18, v24, vcc
    v_cndmask_b32 v19, v19, v25, vcc
    v_cndmask_b32 v20, v20, v26, vcc
    v_add_u32 v18, v14, v18                 ; VA
    v_add_u32 v19, v14, v19                 ; VB
    v_add_u32 v20, v15, v20                 ; VC7
    v_add_u32 v21, 32, v20                  ; VC6
    s_add_u32 s72, s78, 1410
    s_add_u32 s73, s78, 1824
    v_mov_b32 v24, s72
    v_mov_b32 v25, s73
    v_cmp_eq_u32 vcc, 0, v0
    v_cndmask_b32 v18, v18, v24, vcc
    v_cndmask_b32 v21, v21, v25, vcc
    v_cndmask_b32 v22, v254, v242, vcc      ; skip term on lag 0
    v_cvt_pk_bf16_f32 v27, s75, s75
    """.strip().split("\n")
    side = [x.strip() for x in side]
    nw = 0; per = -(-len(side) // 8)
    for k in range(8):
        A(f"s_waitcnt lgkmcnt({min(15, 28 - 4*k + nw)})\n" + kmf(k))
        for o in side[per*k:per*(k+1)]:
            A(o)
            if o.startswith("ds_write"): nw += 1
    if CFG["prio"]: A(f"s_setprio {CFG['cprio']}")
    tsn(A, 'k')
    if "conv" in CFG["skip"]: A("s_branch L_done")
    A(f"s_mul_i32 s78, s70, {AT_ROW}")
    a0, a1, a2, a3 = KA, KA+1, KA+2, KA+3
    b0, b1, b2, b3 = KA+8, KA+9, KA+10, KA+11
    A(f"""
    v_cmp_eq_u32 vcc, 0, v0
    v_add_f32 v{a0}, v{a0}, v22
    v_cndmask_b32 v24, v{KA+4}, v{KA+6}, vcc
    v_cvt_pk_bf16_f32 v64, v{b3}, v{b2}
    v_cvt_pk_bf16_f32 v65, v{b2}, v{b2}
    v_cvt_pk_bf16_f32 v66, v{b1}, v{b0}
    v_cvt_pk_bf16_f32 v67, v{b0}, v{b0}
    v_cvt_pk_bf16_f32 v68, v{b2}, v{b1}
    v_cvt_pk_bf16_f32 v69, v{KA+4}, v{KA+4}
    v_cvt_pk_bf16_f32 v70, v24, v{KA+5}
    v_cvt_pk_bf16_f32 v71, v{KA+6}, v{KA+7}
    v_cvt_pk_bf16_f32 v72, v{a3}, v{a2}
    v_cvt_pk_bf16_f32 v73, v{a1}, v{a0}
    v_cvt_pk_bf16_f32 v74, v{a2}, v{a1}
    s_mov_b32 exec_hi, 0
    ds_write2_b32 v6, v64, v65 offset0:141 offset1:142
    ds_write2_b32 v6, v66, v67 offset0:143 offset1:144
    ds_write_b16 v6, v64 offset:{C1_ + 564}
    ds_write2_b32 v13, v65, v68 offset0:0 offset1:1
    ds_write_b32 v6, v67 offset:{C1_ + 574}
    ds_write_b16 v6, v67 offset:{C1_ + 578}
    s_mov_b32 exec_lo, 1
    ds_write2_b32 v6, v69, v69 offset0:15 offset1:16
    ds_write_b16 v6, v69 offset:{C1_ + 60}
    ds_write_b32 v6, v69 offset:{C1_ + 62}
    ds_write_b16 v6, v69 offset:{C1_ + 66}
    s_mov_b32 exec_lo, 0
    s_mov_b32 exec_hi, 1
    ds_write_b16 v6, v27 offset:1666
    ds_write_b16 v6, v27 offset:{1666 + C1_}
    s_mov_b64 exec, -1
    ds_write_b16 v7, v72 offset:1082
    ds_write_b32 v7, v74 offset:1084
    ds_write_b16_d16_hi v7, v73 offset:1088
    ds_write2_b32 v12, v72, v73 offset0:0 offset1:1
    """)
    for c in (0, C1_):
        A(f"ds_write_b16 v18, v70 offset:{c}\nds_write_b16_d16_hi v19, v70 offset:{c}\nds_write_b16 v21, v71 offset:{c}\nds_write_b16_d16_hi v20, v71 offset:{c}")
    tsn(A, 'c')
    ACC, GR, FR, WIN, F2, FX = 16, 48, 130, 142, 190, 120
    XA, XB, XU, XF = 48, 72, 96, 112
    lds = []
    def lop(txt, tag=None):
        A(txt); lds.append(tag)
    def lwait(*tags):
        pos = max(max(i for i, t in enumerate(lds) if t == tg) for tg in tags)
        A(f"s_waitcnt lgkmcnt({min(15, len(lds) - 1 - pos)})")
    def fread(dst, Y, h, tag):
        off = 2*Y - 32*h; va = VF0
        if off > 1016: off -= 1024; va = VF1
        lop(f"ds_read2_b32 {v(dst,2)}, v{va} offset0:{off//4} offset1:{off//4+1}", tag)
    def gread(j):
        z = 640 + 16*j
        lop(f"ds_read_b64 {v(GR+2*(j+33),2)}, v{VG} offset:{2*z + 16*(z >> 7)}", ("G", j))
    def aread(s_):
        r = FR + 4*(s_ % 3)
        fread(r, 544, 2*s_+1, ("A", s_)); fread(r+2, 544, 2*s_, ("A", s_))
    aread(0); aread(1)
    for j in range(4):
        if j == 0: A("s_waitcnt vmcnt(0)")
        lop(f"ds_write_b128 v240, {v(160+4*j,4)} offset:{j*272}")
    A(f"s_lshl_b32 s79, s{sq}, 7\ns_add_u32 s0, s79, {F_A}")
    A("s_waitcnt lgkmcnt(0)\ns_barrier")
    tsn(A, 'u')
    for j in range(-1, 8): gread(j)
    nTS = -(-(240 - 48*CFG["nTA"]) // 80) if CFG["nTS"] is None else CFG["nTS"]
    TD = [214, 215, 15]
    extra = []
    for d in (2, 3, 4):
        r = F2 + 8*(d-2)
        extra += [("F", r, 624, d, "F2"), ("F", r+2, 720, d, "F2"), ("F", r+4, 672, d, "F2"), ("F", r+6, 768, d, "F2")]
    for kt in range(6):
        extra += [("W", WIN+8*kt, VWA, kt), ("W", WIN+8*kt+4, VWB, kt)]
    m16 = lambda d, a, b, c: f"v_mfma_f32_16x16x32_bf16 {v(d,4)}, {v(a,4)}, {v(b,4)}, {c}"
    def warm():
        for k in range(nTS): touch(A, k, TD[k], 255, False)
    for s_ in range(17):
        side = []
        if s_ + 2 <= 16: side.append(lambda s_=s_: aread(s_+2))
        if s_ + 1 <= 16: side += [lambda j=-2*s_-2: gread(j), lambda j=-2*s_-3: gread(j)]
        if s_ >= 3:
            for _ in range(2):
                if extra:
                    x = extra.pop(0)
                    if x[0] == "F": side.append(lambda x=x: fread(x[1], x[2], x[3], x[4]))
                    else: side.append(lambda x=x: lop(f"ds_read_b128 {v(x[1],4)}, v{x[2]} offset:{544*x[3]}", ("W", x[3])))
        for n, T in enumerate(range(8) if s_ == 0 else range(7, -1, -1)):
            j = T - 2*s_ - 1
            if s_ == 0: lwait(("A", 0), ("G", j+1))
            elif n == 0: lwait(("A", s_))
            elif T == 1: lwait(("G", -2*s_))
            elif T == 0: lwait(("G", -2*s_-1))
            A(m16(ACC+4*T, FR+4*(s_%3), GR+2*(j+33), v(ACC+4*T,4) if s_ else 0))
            if n >= 1 and side: side.pop(0)()
        assert not side
        if s_ == CFG["warmat"]: warm()
    assert not extra
    tsn(A, 'g')
    gen = []
    for kt in range(6):
        wa, wb = WIN+8*kt, WIN+8*kt+4
        gen += [(XA+4*kt, wa, 0, kt), (XA+4*kt+2, wa, 1, kt), (XB+4*kt, wa, 2, kt), (XB+4*kt+2, wb, 2, kt)]
        if kt < 4: gen += [(XU+4*kt, wa, 3, kt), (XU+4*kt+2, wb, 4, kt), (XF+2*kt, wa, 5, kt)]
    TMP = [FR, FR+4, FR+8, 124]
    side = [lambda T=T: lop(f"ds_write_b128 v{VMW}, {v(ACC+4*T,4)} offset:{64*T}") for T in range(7, -1, -1)]
    side += [lambda T=T: lop(f"ds_read_b128 {v(ACC+4*T,4)}, v{VMR} offset:{1056*T}", ("C", T)) for T in range(8)]
    side += [lambda: fread(FX, 976, 4, "FX")]
    F3 = WIN
    for d in (4, 5, 6, 7):
        side += [lambda d=d: fread(F3+4*(d-4), 880, d, ("F3", d)), lambda d=d: fread(F3+4*(d-4)+2, 960, d, ("F3", d))]
    LAG = 3
    def cv(q):
        t = TMP[q % 4]; dst = gen[q][0]
        A(f"v_cvt_pk_bf16_f32 v{dst}, v{t}, v{t+1}\nv_cvt_pk_bf16_f32 v{dst+1}, v{t+2}, v{t+3}")
    lwait(("W", 5))
    for q, (dst, w, b, kt) in enumerate(gen):
        A(m16(TMP[q % 4], w, WM+4*b, 0))
        if q >= LAG: cv(q - LAG)
        if q >= 2 and side and (q % 4 != 3 or len(side) > 34 - q): side.pop(0)()
    A(f"v_mov_b32 v{FX+2}, 0\nv_mov_b32 v{FX+3}, 0")
    for q in range(len(gen) - LAG, len(gen)): cv(q)
    assert not side
    main = []
    for T in range(2, 8):
        for d in (2, 3, 4):
            if T - d >= 0: main += [(T, XA+4*(T-d), F2+8*(d-2), None), (T, XB+4*(T-d), F2+8*(d-2)+4, None)]
        for d in (4, 5, 6, 7):
            if T - d >= 0: main.append((T, XU+4*(T-d), F3+4*(d-4), ("F3", d)))
        if T >= 4: main.append((T, XF+2*(T-4), FX, "FX"))
    def fin(p):
        o = WM + 4*p
        r = []
        for T in (2*p, 2*p+1):
            for h in range(2): r.append(f"v_cvt_pk_bf16_f32 v{o+2*(T&1)+h}, v{ACC+4*T+2*h}, v{ACC+4*T+2*h+1}")
        r += [f"v_permlane16_swap_b32 v{o}, v{o+2}", f"v_permlane16_swap_b32 v{o+1}, v{o+3}",
              f"buffer_store_dwordx4 {v(o,4)}, v{VOUT}, s[32:35], s78 offen offset:{1024*p}{SC}"]
        return r
    seen = set(); pend = []; hold = 0
    for q, (T, a, b, tag) in enumerate(main):
        tags = []
        if ("C", T) not in seen: tags.append(("C", T)); seen.add(("C", T))
        if tag and tag not in seen: tags.append(tag); seen.add(tag)
        if tags: lwait(*tags)
        if q == 0: pend += fin(0)
        if q and main[q-1][0] != T and T in (4, 6): pend += fin(T//2 - 1); hold = 4
        A(m16(ACC+4*T, a, b, v(ACC+4*T,4)))
        if hold: hold -= 1
        elif pend: A(pend.pop(0))
    for o in pend: A(o)
    for o in fin(3): A(o)
    tsn(A, 'e')
    if CFG["y"]:
        A("v_mov_b32 v10, 0\ns_waitcnt vmcnt(0)\ns_barrier")
        publish(A, 24, 0, 5, 10)
        tsn(A, 'A')
        if not CFG["skip"]:
            ne = A.label("noep")
            A(f"s_cmp_lg_u32 s{sq}, 19\ns_cbranch_scc1 {ne}\ns_cmp_lg_u32 s{S_WAVE}, 0\ns_cbranch_scc1 {ne}")
            bump(A)
            A(f"{ne}:")
        return
    if CFG["prio"]: A("s_setprio 0")

def role_g2(A):
    split = CFG["split"]
    st = [sum(split[:i]) for i in range(5)] + [32]
    slot_of = [max(s for s in range(5) if st[s] <= c) for c in range(32)]
    pk0 = [sum(slot_of[2*t] << (4*(t % 8)) for t in range(8*h, 8*h+8)) for h in range(2)]
    pk1 = [sum(slot_of[2*t+1] << (4*(t % 8)) for t in range(8*h, 8*h+8)) for h in range(2)]
    ACC, WR, HB, AT = 16, 96, 196, 244
    KO = 80
    STG, SDT = 68, 69
    VL, VK0, VK1, VF, VT, VAL, VAG, VTOK, VLW, VZ, VG = 1, 2, 3, 4, 5, 6, 7, 8, 9, 10, 14
    srd(A, 4, P_WS, WS_H, H_BYTES)
    srd(A, 8, P_WS, WS_WD, WD_BYTES)
    srd(A, 12, P_WS, WS_AT, AT_BYTES)
    srd(A, 16, P_WS, WS_G, G_BYTES)
    srd(A, 20, P_OUT, 0, X_BYTES)
    A(f"""
    s_lshr_b32 s70, s{S_J}, 3               ; r
    s_lshl_b32 s{STG}, s{S_X}, 2
    s_add_u32 s{STG}, s{STG}, s70           ; tg
    s_and_b32 s{SDT}, s{S_J}, 7             ; dt
    v_mov_b32 v{VZ}, 0
    v_lshlrev_b32 v{VL}, 4, v0
    s_mul_i32 s72, s70, 3
    s_mul_i32 s73, s{SDT}, 3
    s_lshr_b32 s73, s73, 1
    s_add_u32 s72, s72, s73
    s_cmp_ge_u32 s72, 12
    s_cselect_b32 s73, 12, 0
    s_sub_u32 s72, s72, s73                 ; rot
    """)
    for p in range(12):
        A(f"s_lshl_b32 s{KO+p}, s72, 10")
        if p < 11: A("s_add_u32 s72, s72, 1\ns_cmp_ge_u32 s72, 12\ns_cselect_b32 s72, 0, s72")
    A(f"""
    s_mul_i32 s70, s{S_WAVE}, 12288
    s_mul_i32 s71, s{STG}, {4*49152}
    s_add_u32 s71, s71, s70                 ; h base
    s_mul_i32 s72, s{SDT}, {5*49152}
    s_add_u32 s72, s72, s70
    """)
    for i in range(4):
        A(f"s_add_u32 s73, s{S_WAVE}, {1+i}\ns_and_b32 s73, s73, 3\ns_mul_i32 s73, s73, 49152\ns_add_u32 s{74+i}, s71, s73")
    WS_ = [32, 33, 34, 35, 78]
    for m in range(5): A(f"s_add_u32 s{WS_[m]}, s72, {m*49152}")
    A(f"""
    s_mul_i32 s79, s{S_WAVE}, 20480
    v_add_u32 v{VLW}, s79, v{VL}            ; own lds region + lane*16
    v_and_b32 v{VTOK}, 15, v0
    s_lshl_b32 s70, s{STG}, 6
    s_lshl_b32 s71, s{S_WAVE}, 4
    s_add_u32 s70, s70, s71
    v_add_u32 v{VTOK}, s70, v{VTOK}         ; token
    v_lshlrev_b32 v{VG}, 3, v{VTOK}
    """)
    kv = [0]
    def kaddr(p):
        r = (VK0, VK1)[kv[0] & 1]; kv[0] += 1
        A(f"v_add_u32 v{r}, s{KO+p}, v{VL}")
        return r
    def wload(dst, m, va): return f"buffer_load_dwordx4 {v(dst+4*m,4)}, v{va}, s[8:11], s{WS_[m]} offen{SC}"
    def prefetch(nb):
        plan = [(6, ACC), (7, ACC+20), (8, ACC+40), (9, HB), (0, ACC+60)] + [(1+q, WR+20*q) for q in range(5)]
        n = 0; wr = 0
        for (p, dst) in plan:
            va = kaddr(p)
            for m in range(5):
                if n >= nb: A(f"s_waitcnt vmcnt({nb-1})")
                if n == nb:
                    np_ = A.label("nopub")
                    A(f"s_barrier\ns_cmp_eq_u32 s0, 0\ns_cbranch_scc1 {np_}")
                    publish(A, 24, 0, VT, VZ)
                    A(f"{np_}:")
                while wr < 20 and wr <= n - nb:
                    q, mm = divmod(wr, 5)
                    A(f"ds_write_b128 v{VLW}, {v(plan[q][1]+4*mm,4)} offset:{wr*1024}"); wr += 1
                A(wload(dst, m, va)); n += 1
        assert wr == 20
    slow, jn = A.label("g2slow"), A.label("g2pj")
    A(f"s_cmp_lt_u32 s{S_J}, 12\ns_cbranch_scc1 {slow}")
    prefetch(CFG["nbB"])
    A(f"s_branch {jn}\n{slow}:")
    prefetch(CFG["nbA"])
    A(f"""{jn}:
    s_and_b32 s70, s{STG}, 7
    s_lshl_b32 s70, s70, 2
    s_bitcmp1_b32 s{STG}, 3
    s_mov_b32 s71, {pk0[0]}
    s_cmov_b32 s71, {pk0[1]}
    s_mov_b32 s72, {pk1[0]}
    s_cmov_b32 s72, {pk1[1]}
    s_lshr_b32 s71, s71, s70
    s_lshr_b32 s72, s72, s70
    s_and_b32 s71, s71, 15
    s_and_b32 s72, s72, 15
    s_lshr_b32 s70, s{STG}, 4
    s_mul_i32 s70, s70, 5
    s_add_u32 s71, s71, s70
    s_add_u32 s72, s72, s70
    s_mul_i32 s71, s71, {24*128}
    s_mul_i32 s72, s72, {24*128}
    v_mov_b32 v11, s71
    v_mov_b32 v12, s72
    v_cmp_gt_u32 vcc, 32, v0
    v_cndmask_b32 v11, v12, v11, vcc
    v_and_b32 v12, 31, v0
    v_min_u32 v12, 23, v12
    v_lshl_add_u32 v{VF}, v12, 7, v11
    v_add_u32 v{VF}, {F_H}, v{VF}
    ; a^T: global and lds addresses
    v_lshrrev_b32 v11, 3, v0
    v_and_b32 v12, 7, v0
    v_mul_u32_u24 v{VAL}, 160, v11
    v_lshl_add_u32 v{VAL}, v12, 4, v{VAL}
    s_add_u32 s70, s79, 15360
    v_add_u32 v{VAL}, s70, v{VAL}
    s_lshl_b32 s70, s{S_WAVE}, 3
    v_add_u32 v11, s70, v11
    v_mul_u32_u24 v{VAG}, {AT_ROW}, v11
    v_lshl_add_u32 v{VAG}, v12, 4, v{VAG}
    v_min_u32 v13, 19, v0
    s_mul_i32 s70, s{SDT}, {20*128}
    s_add_u32 s70, s70, {F_A}
    v_lshl_add_u32 v13, v13, 7, s70         ; a flags
    s_lshr_b32 s70, s{STG}, 1
    s_lshl_b32 s70, s70, 7
    s_add_u32 s70, s70, {F_G}
    v_mov_b32 v12, s70
    v_cmp_gt_u32 vcc, 20, v0
    v_cndmask_b32 v13, v12, v13, vcc
    s_mul_i32 s70, s{SDT}, {80*AT_ROW}
    s_lshl_b32 s71, s{STG}, 7
    s_add_u32 s70, s70, s71
    s_add_u32 s71, s70, {32*AT_ROW}
    s_add_u32 s72, s70, {64*AT_ROW}
    s_cmp_ge_u32 s{S_WAVE}, 2
    s_cselect_b32 s72, 0x8000000, s72
    s_waitcnt vmcnt(0) lgkmcnt(0)
    """)
    if CFG['y']: ts(A, 5)
    else: tsn(A, 'P')
    nw = A.label("g2nw")
    A(f"s_cmp_lg_u32 s{S_WAVE}, 0\ns_cbranch_scc1 {nw}")
    LATE = CFG["lateA"]
    if not LATE: A(f"buffer_load_dword v12, v13, s[24:27], 0 offen{SC}")
    poll(A, 24, VT, VF, 73, slp=CFG['slpH'])
    if not LATE: poll(A, 24, 12, 13, 73, slp=CFG['slpH'], preissued=True)
    A(f"{nw}:\ns_barrier")
    if CFG['y']: ts(A, 6)
    else: tsn(A, 'H')
    vm = []
    def vmw(tag):
        pos = max(i for i, t in enumerate(vm) if t == tag)
        return len(vm) - 1 - pos
    def hloads(p):
        va = kaddr(p)
        return [(f"buffer_load_dwordx4 {v(HB+16*(p%3)+4*i,4)}, v{va}, s[4:7], s{74+i} offen{SC}", ("h", p, i)) for i in range(4)]
    def iss(x):
        A(x[0]); vm.append(x[1])
    for p in range(3):
        for x in hloads(p): iss(x)
    def aloads(sg, sa):
        iss((f"buffer_load_dwordx2 v[{VG}:{VG+1}], v{VG}, s[16:19], {sg} offen{SC}", "g"))
        for r in range(3):
            iss((f"buffer_load_dwordx4 {v(AT+4*r,4)}, v{VAG}, s[12:15], s{sa[r]} offen{SC}", "at"))
    if not LATE: aloads("0", (70, 71, 72))
    aslot = {0: ACC+60, 1: WR, 2: WR+20, 3: WR+40, 4: WR+60, 5: WR+80, 6: WR+40, 7: WR+60, 8: WR+80, 9: WR+40, 10: WR, 11: WR+20}
    def mfma(p, i, m):
        acc = v(ACC + (i*5+m)*4, 4)
        return f"v_mfma_f32_16x16x32_bf16 {acc}, {v(aslot[p]+4*m,4)}, {v(HB+16*(p%3)+4*i,4)}, {acc if p else 0}"
    lds = []
    for p in range(9):
        FINE = CFG["fine"]
        w = f"s_waitcnt vmcnt({vmw(('h', p, 0 if FINE else 3))})"
        if p >= 6:
            pos = max(i for i, t in enumerate(lds) if t == p)
            w += f" lgkmcnt({len(lds) - 1 - pos})"
        A(w)
        if CFG.get("g2d") and p in (0, 5): ts(A, 1 if p == 0 else 2, True, True)
        side = {}
        def add(k, x): side.setdefault(k, []).append(x)
        va = None
        hl = None
        if p in (2, 3):
            q = p + 8
            add(0, ("K", q))
            for m in range(5): add(1 + 3*m, ("WL", q, m))
        if 4 <= p <= 7:
            q = p + 2
            for m in range(5): add(1 + 3*m, ("SR", q, m))
        wva = None
        hq = []
        for i in range(4):
            for m in range(5):
                k = 5*i + m
                if FINE and m == 0 and i: A(f"s_waitcnt vmcnt({vmw(('h', p, i))})")
                A(mfma(p, i, m))
                for x in side.get(k, []):
                    if x[0] == "K": wva = kaddr(x[1])
                    elif x[0] == "WL": iss((wload(aslot[x[1]], x[2], wva), ("w", x[1])))
                    elif x[0] == "SR":
                        A(f"ds_read_b128 {v(aslot[x[1]]+4*x[2],4)}, v{VLW} offset:{((x[1]-6)*5+x[2])*1024}"); lds.append(x[1])
                if k == 3:
                    A(f"v_add_u32 v{VF}, s{KO+p+3}, v{VL}")
                if m == 4:
                    iss((f"buffer_load_dwordx4 {v(HB+16*(p%3)+4*i,4)}, v{VF}, s[4:7], s{74+i} offen{SC}", ("h", p+3, i)))
        if LATE and p == LATE: iss((f"buffer_load_dword v12, v13, s[24:27], 0 offen{SC}", "fa"))
    if LATE:
        A(f"""
        s_waitcnt vmcnt({vmw("fa")})
        v_cmp_ne_u32 vcc, s{S_TAG}, v12
        s_cmp_eq_u64 vcc, 0
        s_cselect_b32 s30, 0, 0x8000000
        s_add_u32 s28, s70, s30
        s_add_u32 s29, s71, s30
        s_add_u32 s31, s72, s30
        """)
        aloads("s30", (28, 29, 31))
    pend = []
    A("s_waitcnt lgkmcnt(0)")
    for i in range(4):
        for p in (9, 10, 11):
            if i == 0 or FINE:
                n = vmw(("h", p, i if FINE else 3))
                if p >= 10: n = min(n, vmw(("w", p)))
                A(f"s_waitcnt vmcnt({n})")
            for m in range(5):
                A(mfma(p, i, m))
                k = 5*(p-9) + m
                if pend and k >= 2 and k % 2 == 0: A(pend.pop(0))
        assert not pend, pend
        if i < 3:
            pend = [f"ds_write_b128 v{VLW}, {v(ACC+(i*5+m)*4,4)} offset:{(i*5+m)*1024}" for m in range(5)]
            if not LATE: pend.append(f"ds_write_b128 v{VAL}, {v(AT+4*i,4)} offset:{1280*i}")
    if not CFG['y']: tsn(A, 'M')
    if CFG.get("g2d"): ts(A, 3, True, True)
    for d in range(1, 4):
        A(f"s_add_u32 s73, s{S_WAVE}, {d}\ns_and_b32 s73, s73, 3\ns_mul_i32 s73, s73, 20480\nv_add_u32 v{1+d}, s73, v{VL}")
    A(f"""
    v_lshrrev_b32 v11, 5, v0                ; g>>1
    v_mul_u32_u24 v11, 20480, v11
    v_bfe_u32 v12, v0, 2, 3                 ; 4(g&1)+r
    v_mul_u32_u24 v12, 160, v12
    v_add_u32 v11, v11, v12
    v_and_b32 v12, 3, v0
    v_lshl_add_u32 v11, v12, 3, v11
    s_lshl_b32 s73, s{S_WAVE}, 5
    s_add_u32 s73, s73, 15360
    v_add_u32 v11, s73, v11
    """)
    if LATE:
        ok = A.label("aok")
        A(f"s_cmp_eq_u32 s30, 0\ns_cbranch_scc1 {ok}")
        poll(A, 24, 12, 13, 73, slp=CFG['slpH'])
        A(f"v_lshlrev_b32 v{VG}, 3, v{VTOK}")
        aloads("0", (70, 71, 72))
        A(f"{ok}:\ns_waitcnt vmcnt(0)")
        for i in range(3): A(f"ds_write_b128 v{VAL}, {v(AT+4*i,4)} offset:{1280*i}")
    A("s_waitcnt lgkmcnt(0)\ns_barrier")
    if CFG.get("g2d"): ts(A, 4, True, True)
    RD = WR
    for d in range(1, 4):
        for m in range(5):
            A(f"ds_read_b128 {v(RD+((d-1)*5+m)*4,4)}, v{1+d} offset:{((3-d)*5+m)*1024}")
    AF = HB
    for m in range(5):
        A(f"ds_read_b64_tr_b16 {v(AF+2*m,2)}, v11 offset:{(m&1)*40960 + (m>>1)*1280}")
    A(f"""
    v_mul_u32_u24 v5, 1280, v{VTOK}
    v_lshrrev_b32 v6, 4, v0                 ; g
    v_and_b32 v7, 1, v6
    v_lshrrev_b32 v9, 1, v6
    v_lshlrev_b32 v7, 5, v7
    v_lshl_add_u32 v7, v9, 4, v7
    v_add_u32 v7, v5, v7
    v_lshl_add_u32 v6, v6, 3, v5
    s_mul_i32 s73, s{SDT}, 160
    """)
    F = ACC + 60
    for d in range(3):
        A(f"s_waitcnt lgkmcnt({min(15, 15 - 5*d)})")
        if CFG["tpk"]:
            for q in range(0, 20, 2): A(f"v_pk_add_f32 {v(F+q,2)}, {v(F+q,2)}, {v(RD+d*20+q,2)}")
        else:
            for q in range(20): A(f"v_add_f32 v{F+q}, v{F+q}, v{RD+d*20+q}")
    A("s_waitcnt lgkmcnt(0)")
    G, OM = VG, VG+1
    O = HB + 16
    for m in range(5):
        for h in range(2):
            if CFG["tpk"]:
                t = 12 if h == 0 else RD
                A(f"""
                v_lshlrev_b32 v{t}, 16, v{AF+2*m+h}
                v_and_b32 v{t+1}, 0xffff0000, v{AF+2*m+h}
                v_pk_mul_f32 {v(F+4*m+2*h,2)}, {v(F+4*m+2*h,2)}, {v(G,2)} op_sel:[0,1] op_sel_hi:[1,1]
                v_pk_fma_f32 {v(F+4*m+2*h,2)}, {v(t,2)}, {v(G,2)}, {v(F+4*m+2*h,2)} op_sel_hi:[1,0,1]
                v_cvt_pk_bf16_f32 v{O+2*m+h}, v{F+4*m+2*h}, v{F+4*m+2*h+1}
                """)
                continue
            A(f"""
            v_lshlrev_b32 v12, 16, v{AF+2*m+h}
            v_and_b32 v13, 0xffff0000, v{AF+2*m+h}
            v_mul_f32 v{F+4*m+2*h}, v{OM}, v{F+4*m+2*h}
            v_mul_f32 v{F+4*m+2*h+1}, v{OM}, v{F+4*m+2*h+1}
            v_fmac_f32 v{F+4*m+2*h}, v{G}, v12
            v_fmac_f32 v{F+4*m+2*h+1}, v{G}, v13
            v_cvt_pk_bf16_f32 v{O+2*m+h}, v{F+4*m+2*h}, v{F+4*m+2*h+1}
            """)
        if m & 1:
            b = O + 2*(m-1); p = m >> 1
            A(f"v_permlane16_swap_b32 v{b}, v{b+2}\nv_permlane16_swap_b32 v{b+1}, v{b+3}")
            A(f"buffer_store_dwordx4 {v(b,4)}, v7, s[20:23], s73 offen offset:{64*p}{CFG['omod']}")
    A(f"buffer_store_dwordx2 {v(O+8,2)}, v6, s[20:23], s73 offen offset:128{CFG['omod']}")

def body(A):
    prologue(A, 512)
    skip = CFG["skip"]
    A(f"""
    s_cmp_{'lt' if CFG['swap'] else 'ge'}_u32 s2, 256
    s_cbranch_scc1 L_half1
    s_cmp_ge_u32 s{S_J}, 30
    s_cbranch_scc1 L_prepC
    """)
    if "g1" in skip: A("s_waitcnt lgkmcnt(0)\ns_branch L_done")
    if "few" in skip: A(f"s_waitcnt lgkmcnt(0)\ns_cmp_ge_u32 s{S_J}, 6\ns_cbranch_scc1 L_done")
    role_g1(A)
    A(f"""
    s_branch {"L_g2" if CFG["y"] else "L_done"}
    L_prepC:
    s_lshl_b32 s69, s{S_X}, 1
    s_add_u32 s69, s69, s{S_J}
    s_sub_u32 s69, s69, 30
    """)
    if CFG["cmap"]:
        A(f"""
        s_and_b32 s69, s{S_X}, 1
        s_lshl_b32 s69, s69, 3
        s_and_b32 s70, s{S_X}, 6
        s_add_u32 s69, s69, s70
        s_add_u32 s69, s69, s{S_J}
        s_sub_u32 s69, s69, 30
        """)
    if "C" in skip: A("s_waitcnt lgkmcnt(0)\ns_branch L_done")
    role_prep_w(A)
    A(f"""
    s_branch {"L_g2" if CFG["y"] else "L_done"}
    L_half1:
    {"s_waitcnt lgkmcnt(0)" if "half1" in skip else ""}
    {"s_branch L_done" if "half1" in skip else ""}
    s_cmp_ge_u32 s{S_J}, 12
    s_cbranch_scc1 L_ssm
    """)
    role_idle(A)
    A(f"""
    s_branch {"L_done" if CFG["y"] is True else "L_g2"}
    L_ssm:
    s_mul_i32 s68, s{S_X}, 20
    s_add_u32 s68, s68, s{S_J}
    s_sub_u32 s68, s68, 12
    """)
    role_ssm(A)
    if CFG["y"]: A("s_branch L_done")
    A("L_g2:")
    if "g2" in skip: A("s_branch L_done")
    role_g2(A)
    A("L_done:")
    if CFG["dbg"]: ts_end(A)
    if CFG.get("span"):
        A("s_waitcnt vmcnt(0)\ns_memrealtime vcc\ns_waitcnt lgkmcnt(0)")
        srd(A, 4, P_DBG, 0, 256)
        A(f"""
        s_cmp_lg_u32 s{S_WAVE}, 0
        s_cbranch_scc1 L_exit
        v_mov_b32 v1, 0
        v_mov_b32 v2, s{TSR}
        v_mov_b32 v3, vcc_lo
        s_mov_b64 exec, 1
        s_cmp_lt_u32 s2, 6
        s_cbranch_scc0 L_sp1
        s_lshl_b32 s9, s2, 2
        buffer_store_dword v3, v1, s[4:7], s9 offen offset:16
        s_cmp_lg_u32 s2, 0
        s_cbranch_scc1 L_exit
        buffer_store_dword v2, v1, s[4:7], 0 offen
        s_branch L_exit
        L_sp1:
        s_cmp_eq_u32 s2, 256
        s_cbranch_scc0 L_sp2
        buffer_store_dwordx2 v[2:3], v1, s[4:7], 0 offen offset:4
        s_branch L_exit
        L_sp2:
        s_cmp_eq_u32 s2, 487
        s_cbranch_scc0 L_sp3
        buffer_store_dwordx2 v[2:3], v1, s[4:7], 0 offen offset:56
        s_branch L_exit
        L_sp3:
        s_sub_u32 s9, s2, 200
        s_cmp_lt_u32 s9, 4
        s_cbranch_scc0 L_exit
        s_lshl_b32 s9, s9, 2
        buffer_store_dword v3, v1, s[4:7], s9 offen offset:40
        """)
    if CFG.get("probe"):
        role, mk, mode = CFG["probe"]
        lo, hi, half = dict(g1a=(0,12,1), g1b=(12,30,1), C=(30,32,1), idle=(0,12,0), ssm=(12,32,0), w0=(0,32,0))[role]
        N = (hi-lo)*8*4
        if mk == 'E': A("s_waitcnt vmcnt(0)"); prb(A, 'E')
        if mk == 'S': A(f"s_mov_b32 s{TSR+2}, s{TSR}")
        srd(A, 4, P_DBG, 0, 256)
        A(f"""
        v_mov_b32 v1, 0
        s_lshr_b32 s8, s2, 8
        s_cmp_lg_u32 s8, {half}
        s_cbranch_scc1 L_pb1
        s_cmp_lt_u32 s{S_J}, {lo}
        s_cbranch_scc1 L_pb1
        s_cmp_ge_u32 s{S_J}, {hi}
        s_cbranch_scc1 L_pb1
        s_mov_b32 s9, 2000
        L_pb0:
        s_sleep 20
        s_memrealtime vcc
        s_waitcnt lgkmcnt(0)
        s_sub_u32 s8, vcc_lo, s{TSR}
        s_cmp_ge_u32 s8, 2900
        s_cbranch_scc1 L_pb0x
        s_sub_u32 s9, s9, 1
        s_cbranch_scc0 L_pb0
        L_pb0x:
        v_mov_b32 v2, s{TSR+2}
        v_mov_b32 v3, 1
        s_mov_b64 exec, 1
        buffer_atomic_{'add' if mode == 'mean' else 'umax'} v2, v1, s[4:7], 0 offen
        s_waitcnt vmcnt(0)
        buffer_atomic_add v3, v1, s[4:7], 0 offen offset:128
        s_waitcnt vmcnt(0)
        s_mov_b64 exec, -1
        L_pb1:
        s_cmp_lg_u32 s2, 0
        s_cbranch_scc1 L_exit
        s_cmp_lg_u32 s{S_WAVE}, 0
        s_cbranch_scc1 L_exit
        s_mov_b32 s9, 20000
        L_pb2:
        v_mov_b32 v3, 0
        s_mov_b64 exec, 1
        buffer_atomic_add v3, v1, s[4:7], 0 offen offset:128 sc0
        s_waitcnt vmcnt(0)
        s_mov_b64 exec, -1
        v_readfirstlane_b32 s8, v3
        s_cmp_ge_u32 s8, {N}
        s_cbranch_scc1 L_pb3
        s_sleep 8
        s_sub_u32 s9, s9, 1
        s_cbranch_scc0 L_pb2
        L_pb3:
        v_mov_b32 v3, 0
        s_mov_b64 exec, 1
        buffer_atomic_add v3, v1, s[4:7], 0 offen sc0
        s_waitcnt vmcnt(0)
        s_mov_b64 exec, -1
        v_readfirstlane_b32 s8, v3
        """)
        if mode == 'mean':
            A(f"""
            s_sub_u32 s9, s{TSR}, 500
            s_mul_i32 s9, s9, {N}
            s_sub_u32 s8, s8, s9
            v_cvt_f32_u32 v3, s8
            v_mul_f32 v3, {fbits(1.0/N)}, v3
            v_cvt_u32_f32 v3, v3
            v_readfirstlane_b32 s8, v3
            """)
        else:
            A(f"s_sub_u32 s8, s8, s{TSR}\ns_add_u32 s8, s8, 500")
        A(f"""
        s_min_u32 s8, s8, 5000
        s_add_u32 s10, s8, 6000
        s_mov_b32 s9, 400000
        L_pad:
        s_memrealtime vcc
        s_waitcnt lgkmcnt(0)
        s_sub_u32 s8, vcc_lo, s{TSR}
        s_cmp_ge_u32 s8, s10
        s_cbranch_scc1 L_exit
        s_sub_u32 s9, s9, 1
        s_cbranch_scc0 L_pad
        """)
    if CFG.get("pad"):
        A(f"""
        s_cmp_lg_u32 s2, 0
        s_cbranch_scc1 L_exit
        s_mov_b32 s9, 200000
        L_pad:
        s_memrealtime vcc
        s_waitcnt lgkmcnt(0)
        s_sub_u32 s8, vcc_lo, s{TSR}
        s_cmp_ge_u32 s8, {CFG['pad']}
        s_cbranch_scc1 L_exit
        s_sub_u32 s9, s9, 1
        s_cbranch_scc0 L_pad
        """)
    A("L_exit:\ns_endpgm\nL_end:")

def build(verbose=False):
    kname = NAME + "_kernel"
    A = Asm(); A.kname = kname
    A(f".globl {kname}\n.p2align 8\n.type {kname},@function\n{kname}:")
    body(A)
    lines, nn = fix_hazards(A.lines, verbose)
    head = "; @launch grid=(512,1,1) block=(256,1,1) lds=81920\n.amdgcn_target \"amdgcn-amd-amdhsa--gfx950\"\n.text\n"
    desc = f""".section .rodata,"a"
.p2align 6
.amdhsa_kernel {kname}
  .amdhsa_next_free_vgpr 256
  .amdhsa_next_free_sgpr 102
  .amdhsa_accum_offset 256
  .amdhsa_group_segment_fixed_size 0
  .amdhsa_kernarg_size 120
  .amdhsa_user_sgpr_count 2
  .amdhsa_user_sgpr_kernarg_segment_ptr 1
  .amdhsa_system_sgpr_workgroup_id_x 1
.end_amdhsa_kernel
"""
    return head + "\n".join(lines) + "\n" + desc

if __name__ == "__main__":
    out = sys.argv[1] if len(sys.argv) > 1 else "f.s"
    src = build()
    open(out, "w").write(src)
    print("written", out, len(src))
```
